```python
import torch

def _softmax(x, axis=-1):
    return torch.softmax(x, dim=axis)
def _gelu(x):
    return torch.nn.functional.gelu(x, approximate="tanh")
def _silu(x):
    return torch.nn.functional.silu(x)
def _sigmoid(x):
    return torch.sigmoid(x)
def _layernorm(x, axis=-1, eps=1e-5):
    m = x.mean(dim=axis, keepdim=True)
    v = x.var(dim=axis, keepdim=True, unbiased=False)
    return (x - m) / torch.sqrt(v + eps)
def _scatter_add(tgt, idx, src, axis=0):
    return tgt.clone().index_add_(axis, idx, src)
def _segment_sum(src, seg, n):
    out = torch.zeros((n,) + src.shape[1:], dtype=src.dtype)
    return out.index_add_(0, seg, src)
def _pad(x, pw):
    flat = tuple(v for pair in reversed(pw) for v in pair)
    return torch.nn.functional.pad(x, flat)

kernel_name = 'parallel_sum__softmax_full_mha__glu_gated_glu__prompt'

def setup_inputs():

    _w = (lambda a: (lambda t: t.to(torch.bfloat16) if t.is_floating_point() else t)(torch.as_tensor(a)))
    def _A_setup():
        B, S, D = 1, 2048, 512
        return {
            "x": _w((lambda *s: torch.randn(*s, dtype=torch.bfloat16) * 0.05)(B, S, D)),
            "wqkv": _w((lambda *s: torch.randn(*s, dtype=torch.bfloat16) * 0.2)(D, 3 * D)),
            "wo": _w((lambda *s: torch.randn(*s, dtype=torch.bfloat16) * 0.1)(D, D)),
        }
    _A_in = _A_setup()

    def _B_setup():
        B, S, D, F = 1, 2048, 512, 1792
        return {
            "x": _w((lambda *s: torch.randn(*s, dtype=torch.bfloat16) * 0.05)(B, S, D)),
            "w_gate": _w((lambda *s: torch.randn(*s, dtype=torch.bfloat16) * 0.8)(D, F)),
            "w_up": _w((lambda *s: torch.randn(*s, dtype=torch.bfloat16) * 0.2)(D, F)),
            "w_down": _w((lambda *s: torch.randn(*s, dtype=torch.bfloat16) * 0.2)(F, D)),
        }
    _B_in = _B_setup()

    return {
        "A_x": _A_in["x"],
        "A_wqkv": _A_in["wqkv"],
        "A_wo": _A_in["wo"],
        "B_x": _B_in["x"],
        "B_w_gate": _B_in["w_gate"],
        "B_w_up": _B_in["w_up"],
        "B_w_down": _B_in["w_down"],
    }

def reference(A_x, A_wqkv, A_wo, B_x, B_w_gate, B_w_up, B_w_down):
    def _A_ref(x, wqkv, wo):
        B, S, D = x.shape
        H = 32; Dh = D // H
        qkv = (lambda x, *d: x.permute(*d))((x @ wqkv).reshape(B, S, 3, H, Dh), 2, 0, 3, 1, 4)
        q, k, v = qkv[0], qkv[1], qkv[2]
        scale = Dh ** -0.5
        scores = torch.einsum("bhqd,bhkd->bhqk", q, k) * scale
        p = _softmax(scores, axis=-1)
        o = torch.einsum("bhqk,bhkd->bhqd", p, v)
        return (lambda x, *d: x.permute(*d))(o, 0, 2, 1, 3).reshape(B, S, D) @ wo

    def _B_ref(x, w_gate, w_up, w_down):
        g = torch.einsum("bsd,df->bsf", x, w_gate)
        u = torch.einsum("bsd,df->bsf", x, w_up)
        h = _sigmoid(g) * u
        return torch.einsum("bsf,fd->bsd", h, w_down)

    x = A_x
    xn = _layernorm(x, axis=-1)
    return x + _A_ref(xn, A_wqkv, A_wo) + _B_ref(xn, B_w_gate, B_w_up, B_w_down)
```

```python
import re

TRANS = ("v_exp_f32","v_log_f32","v_rcp_f32","v_rsq_f32","v_sqrt_f32","v_sin_f32","v_cos_f32",
         "v_exp_f16","v_log_f16","v_rcp_f16","v_rsq_f16","v_sqrt_f16","v_rcp_iflag_f32")

def v(i, n=1):
    return f"v{i}" if n == 1 else f"v[{i}:{i+n-1}]"
def a(i, n=1):
    return f"a{i}" if n == 1 else f"a[{i}:{i+n-1}]"
def s(i, n=1):
    return f"s{i}" if n == 1 else f"s[{i}:{i+n-1}]"

_reg_re = re.compile(r"^(-|\|)?(v|a|s)(\d+|\[(\d+):(\d+)\])\|?$")
def regs_of(tok):
    tok = tok.strip()
    m = re.match(r"^-?\|?(abs\()?-?([vas])(?:(\d+)|\[(\d+):(\d+)\])\)?\|?$", tok)
    if m:
        k = m.group(2)
        if m.group(3) is not None:
            return {(k, int(m.group(3)))}
        return {(k, i) for i in range(int(m.group(4)), int(m.group(5)) + 1)}
    if tok in ("vcc",): return {("s", 106), ("s", 107)}
    if tok == "vcc_lo": return {("s", 106)}
    if tok == "vcc_hi": return {("s", 107)}
    if tok == "exec": return {("s", 126), ("s", 127)}
    if tok == "exec_lo": return {("s", 126)}
    if tok == "exec_hi": return {("s", 127)}
    if tok == "m0": return {("s", 124)}
    return set()

class Ins:
    __slots__ = ("text","mn","ops","mods","defs","uses","kind","passes","A","B","C","D","trans","lds_dma","wide_store","data","is_dpp","is_perm","opsel")
    def __init__(self, text):
        self.text = text
        t = text.split(";")[0].strip()
        parts = t.split(None, 1)
        self.mn = mn = parts[0]
        rest = parts[1] if len(parts) > 1 else ""
        ops, cur, depth = [], "", 0
        for ch in rest:
            if ch in "[(": depth += 1
            if ch in "])": depth -= 1
            if ch == "," and depth == 0:
                ops.append(cur.strip()); cur = ""
            else:
                cur += ch
        if cur.strip(): ops.append(cur.strip())
        mods = ""
        if ops:
            last = ops[-1].split(None, 1)
            if len(last) > 1 and not ops[-1].startswith("hwreg"):
                ops[-1] = last[0]; mods = last[1]
        self.ops = ops; self.mods = mods
        self.defs = set(); self.uses = set()
        self.kind = "other"; self.passes = 0
        self.A = self.B = self.C = self.D = set()
        self.trans = False; self.lds_dma = False; self.wide_store = False; self.data = set()
        self.is_dpp = ("dpp" in mn) or ("row_" in mods) or ("quad_perm" in mods) or ("row_" in rest) or ("quad_perm" in rest) or ("wave_" in mods)
        self.is_perm = mn.startswith("v_permlane")
        self.opsel = ("op_sel" in mods and not mn.startswith("v_pk_") and not mn.startswith("v_mfma") and not mn.startswith("v_dot")) or ("sdwa" in mn) or ("dst_sel" in mods)
        R = regs_of
        if mn.startswith("v_mfma") or mn.startswith("v_smfmac"):
            self.kind = "mfma"
            self.D = R(ops[0]); self.A = R(ops[1]); self.B = R(ops[2]); self.C = R(ops[3])
            self.defs = set(self.D); self.uses = self.A | self.B | self.C
            if "32x32x16" in mn or "32x32x8" in mn: self.passes = 8
            elif "16x16x32" in mn or "16x16x16" in mn: self.passes = 4
            else: raise ValueError("unknown mfma " + mn)
        elif mn.startswith("v_"):
            self.kind = "valu"
            self.trans = any(mn.startswith(x) for x in TRANS)
            base = mn
            if base.startswith("v_cmp"):
                self.defs = R(ops[0]); srcs = ops[1:]
                if base.startswith("v_cmpx"): self.defs |= R("exec")
            elif base.startswith(("v_add_co", "v_sub_co", "v_subrev_co", "v_addc_co", "v_subb_co", "v_div_scale", "v_mad_u64_u32")):
                self.defs = R(ops[0]) | R(ops[1]); srcs = ops[2:]
            elif base.startswith("v_permlane") and "swap" in base:
                self.defs = R(ops[0]) | R(ops[1]); srcs = ops[0:2]
            elif base.startswith(("v_nop",)):
                srcs = []
            else:
                self.defs = R(ops[0]); srcs = ops[1:]
                if base.startswith(("v_fmac", "v_mac", "v_dot2c", "v_dot4c", "v_writelane", "v_pk_fmac")) or "UNUSED_PRESERVE" in mods \
                   or (base.startswith("v_cvt_pk_fp8") and "op_sel" in mods) or self.is_dpp:
                    srcs = srcs + [ops[0]]
            for x in srcs: self.uses |= R(x)
            if base.startswith("v_cndmask") and len(ops) == 3: self.uses |= R("vcc")
            if base.startswith(("v_addc_co", "v_subb_co")): pass
        elif mn.startswith("buffer_") or mn.startswith("global_") or mn.startswith("flat_"):
            self.kind = "vmem"
            toks = ops
            is_lds = bool(re.search(r"\blds\b", mods)) or "load_lds" in mn
            if mn.startswith("buffer_load") and is_lds:
                self.lds_dma = True
                for x in toks: self.uses |= R(x)
                self.uses |= R("m0")
            elif mn.startswith("global_load_lds"):
                self.lds_dma = True
                for x in toks: self.uses |= R(x)
                self.uses |= R("m0")
            elif mn.startswith("buffer_load"):
                self.defs = R(toks[0])
                for x in toks[1:]: self.uses |= R(x)
            elif mn.startswith("buffer_store"):
                self.data = R(toks[0])
                for x in toks: self.uses |= R(x)
                self.wide_store = "x3" in mn or "x4" in mn
            elif mn.startswith("buffer_atomic"):
                self.data = R(toks[0])
                for x in toks: self.uses |= R(x)
                if "sc0" in mods: self.defs = R(toks[0])
            elif mn.startswith("global_load"):
                self.defs = R(toks[0])
                for x in toks[1:]: self.uses |= R(x)
            elif mn.startswith("global_store"):
                self.data = R(toks[1])
                for x in toks: self.uses |= R(x)
                self.wide_store = "x3" in mn or "x4" in mn
            elif mn.startswith("global_atomic"):
                if "sc0" in mods:
                    self.defs = R(toks[0]);
                    for x in toks[1:]: self.uses |= R(x)
                else:
                    for x in toks: self.uses |= R(x)
            elif mn.startswith("buffer_inv") or mn.startswith("buffer_wbl2"):
                pass
            else:
                raise ValueError("unknown vmem " + text)
        elif mn.startswith("ds_"):
            self.kind = "ds"
            if mn.startswith("ds_read") or mn.startswith("ds_bpermute") or mn.startswith("ds_permute") or mn.startswith("ds_swizzle") or "_rtn" in mn:
                self.defs = R(ops[0])
                for x in ops[1:]: self.uses |= R(x)
            else:
                for x in ops: self.uses |= R(x)
        elif mn.startswith("s_"):
            self.kind = "salu"
            if mn.startswith(("s_cmp", "s_cbranch", "s_branch", "s_waitcnt", "s_nop", "s_barrier", "s_endpgm", "s_sleep", "s_setprio", "s_bitcmp", "s_setreg", "s_sendmsg")):
                for x in ops: self.uses |= R(x)
            else:
                if ops: self.defs = R(ops[0])
                for x in ops[1:]: self.uses |= R(x)
                if "saveexec" in mn: self.defs |= R("exec"); self.uses |= R("exec")
        else:
            raise ValueError("unknown instr " + text)

    def states(self):
        if self.mn == "s_nop": return int(self.ops[0], 0) + 1
        return 1

def need(p, c):
    n = 0
    pv = {r for r in p.defs if r[0] != "s"}
    ps = {r for r in p.defs if r[0] == "s"}
    cv_use = {r for r in c.uses if r[0] != "s"}
    cv_def = {r for r in c.defs if r[0] != "s"}
    cs_use = {r for r in c.uses if r[0] == "s"}
    if p.kind == "valu":
        if c.kind == "mfma" and pv & c.uses: n = max(n, 2)
        if p.trans and c.kind == "valu" and not c.trans and pv & cv_use: n = max(n, 1)
        if p.trans and c.kind == "valu" and c.trans and pv & cv_use: n = max(n, 1)
        if p.opsel and c.kind == "valu" and pv & (cv_use | cv_def): n = max(n, 1)
        if ps:
            if c.kind == "valu" and ps & cs_use:
                n = max(n, 4 if c.mn.startswith(("v_readlane", "v_writelane")) else 2)
            if c.kind == "vmem" and ps & cs_use: n = max(n, 5)
            if c.kind == "salu" and ps & cs_use: n = max(n, 1)
            if ("s", 126) in ps:
                if c.kind == "mfma": n = max(n, 4)
                if c.kind == "valu" and (c.is_dpp): n = max(n, 5)
                if c.mn.startswith(("v_readlane","v_readfirstlane","v_writelane","v_permlane")): n = max(n, 4)
        if c.kind == "valu" and c.mn.startswith(("v_readfirstlane", "v_readlane")) and pv & cv_use: n = max(n, 1)
        if c.kind == "valu" and (c.is_perm or c.is_dpp) and pv & cv_use: n = max(n, 2)
    if p.kind == "valu" and p.mn.startswith("v_dot"):
        if pv & (cv_use | cv_def):
            same_c = False
            if c.mn == p.mn:
                srcab = set()
                ab = c.ops[1:3]
                for x in ab: srcab |= regs_of(x)
                same_c = not (pv & srcab)
            if not same_c: n = max(n, 3)
    if p.kind == "mfma":
        P = p.passes
        big = {2: 5, 4: 8, 8: 12, 16: 20}[P]
        ovl = {2: 4, 4: 6, 8: 10, 16: 18}[P]
        war = {2: 1, 4: 3, 8: 7, 16: 15}[P]
        if c.kind == "mfma":
            if p.D & c.C:
                if p.D == c.C and p.passes == c.passes: n = max(n, 0 if P >= 4 else 2)
                else: n = max(n, ovl)
            if p.D & (c.A | c.B): n = max(n, big)
            if p.D & c.D and not (p.D & c.C):
                n = max(n, ovl)
        else:
            if c.kind == "valu" and p.D & (cv_use | cv_def): n = max(n, big)
            if c.kind in ("vmem", "ds") and p.D & (cv_use | cv_def): n = max(n, big)
            if c.kind == "valu" and p.C & cv_def: n = max(n, war)
    if p.kind == "salu":
        if ("s", 124) in ps and c.lds_dma: n = max(n, 1)
    if p.kind == "vmem" and p.wide_store:
        if p.data & cv_def: n = max(n, 2 if c.kind == "valu" else 1)
    return n

class Asm:
    def __init__(self):
        self.items = []
    def I(self, text):
        for line in text.split("\n"):
            line = line.strip()
            if not line: continue
            if line.startswith(";"):
                self.items.append("    " + line); continue
            if line.endswith(":") or line.startswith("."):
                self.items.append(line); continue
            self.items.append(Ins(line))
    def __call__(self, text): self.I(text)
    def label(self, name): self.items.append(name + ":")
    def raw(self, t): self.items.append(t)
    def nop(self, n):
        while n > 0:
            k = min(n, 16); self.I(f"s_nop {k-1}"); n -= k

    @staticmethod
    def pad(items, window=24, insert=True, prefix=None):
        out = []
        hist = list(prefix or [])
        nins = 0
        for it in items:
            if not isinstance(it, Ins):
                out.append(it); continue
            dist = 0; req = 0
            for p in reversed(hist[-window:]):
                nd = need(p, it)
                if nd > dist: req = max(req, nd - dist)
                dist += p.states()
                if dist >= 20: break
            if req > 0:
                if not insert:
                    raise RuntimeError(f"hazard: need {req} more states before: {it.text}")
                k = req
                while k > 0:
                    m = min(k, 16)
                    nop = Ins(f"s_nop {m-1}")
                    out.append(nop); hist.append(nop); k -= m; nins += 1
            out.append(it); hist.append(it)
        return out, hist

    def finish(self):
        items, _ = Asm.pad(self.items)
        labels = {}
        for i, it in enumerate(items):
            if isinstance(it, str) and it.endswith(":"): labels[it[:-1]] = i
        fix = []
        for i, it in enumerate(items):
            if isinstance(it, Ins) and it.mn.startswith(("s_cbranch", "s_branch")):
                tgt = it.ops[0]
                if tgt in labels:
                    j = labels[tgt]
                    if j < i:
                        body = items[j:i+1]
                        hist = [x for x in body if isinstance(x, Ins)]
                        try:
                            Asm.pad(body[:60], insert=False, prefix=hist[-24:])
                        except RuntimeError as e:
                            raise RuntimeError(f"back-edge hazard at loop {tgt}: {e}")
                    else:
                        hist = [x for x in items[max(0,i-30):i+1] if isinstance(x, Ins)]
                        try:
                            Asm.pad(items[j:j+40], insert=False, prefix=hist[-24:])
                        except RuntimeError as e:
                            raise RuntimeError(f"forward-branch hazard to {tgt}: {e}")
        txt = []
        for it in items:
            txt.append(("    " + it.text) if isinstance(it, Ins) else it)
        return "\n".join(txt) + "\n"
```

```python
from common import *

ATT_OFFSET = 96.0
def emit_att(a, pfx="AT", ns=2):
    SWS = 12
    srd(a, SWS, KA_WS, WS_BYTES)
    a("v_and_b32 v1, 63, v0")
    a("v_lshrrev_b32 v2, 6, v0")
    a("v_readfirstlane_b32 s16, v2")
    a("s_and_b32 s17, s2, 31")
    a("s_lshr_b32 s18, s2, 5")
    Qf, NEG, S0, S1, O, KR, VR, P = 4, 8, 24, 40, 56, 72, 80, 96
    vK, vV, vKn, vVn, vL16, vVo = 104, 105, 106, 107, 108, 109
    T = 110
    a(f"v_lshlrev_b32 v{vL16}, 4, v1")
    a(f"v_lshrrev_b32 v2, 5, v1")
    a(f"v_lshlrev_b32 v{vVo}, 8, v2")
    a(f"v_and_b32 v2, 15, v1")
    a(f"v_lshl_add_u32 v{vVo}, v2, 4, v{vVo}")
    a(f"v_add_u32 v{vVo}, 8192, v{vVo}")
    a("s_lshl_b32 s19, s17, 16")
    a("s_lshl_b32 s20, s18, 3")
    a("s_add_u32 s20, s20, s16")
    a("s_lshl_b32 s21, s20, 10")
    a("s_add_u32 s21, s21, s19")
    a(f"s_add_u32 s21, s21, {QF_OFF}")
    a("s_lshl_b32 s22, s16, 10")
    a("s_add_u32 s23, s19, s22")
    a(f"s_add_u32 s23, s23, {KF_OFF}")
    a("s_mov_b32 s40, 0x0000ffff")
    a("s_mov_b32 s41, 0x0000ffff")
    a("s_waitcnt lgkmcnt(0)")
    a(f"buffer_load_dwordx4 v[{Qf}:{Qf+3}], v{vL16}, s[{SWS}:{SWS+3}], s21 offen")
    def dma(soff, m0expr):
        a(f"s_mov_b32 m0, {m0expr}")
        a(f"buffer_load_dwordx4 v{vL16}, s[{SWS}:{SWS+3}], {soff} offen lds")
        a(f"s_add_u32 s27, {soff}, {VF_OFF-KF_OFF}")
        a(f"s_add_u32 m0, {m0expr}, 8192")
        a(f"buffer_load_dwordx4 v{vL16}, s[{SWS}:{SWS+3}], s27 offen lds")
    dma("s23", "s22")
    a("s_add_u32 s24, s23, 8192")
    a("s_add_u32 s25, s22, 16384")
    dma("s24", "s25")
    a("s_add_u32 s24, s24, 8192")
    a("s_add_u32 s25, s25, 16384")
    a(f"v_mov_b32 v{VR}, 0x3f803f80")
    for r in range(1, 16): a(f"v_mov_b32 v{VR+r}, v{VR}")
    for r in range(16): a(f"v_mov_b32 v{O+r}, 0")
    for r in range(4, 8): a(f"v_mov_b32 v{P+r}, 0")
    a(f"v_mov_b32 v{vK}, v{vL16}")
    a(f"v_mov_b32 v{vV}, v{vVo}")
    a(f"v_add_u32 v{vKn}, 16384, v{vL16}")
    a(f"v_add_u32 v{vVn}, 16384, v{vVo}")
    a("s_waitcnt vmcnt(2)")
    a("s_barrier")
    mark(a, 0)
    for t in range(ns):
        a(f"ds_read_b128 v[{KR+4*(t%2)}:{KR+4*(t%2)+3}], v{vK} offset:{t*1024}")
    assert ns == 2
    a("s_waitcnt lgkmcnt(1)")
    a(mfma(S0, KR, Qf, "0"))
    a("s_waitcnt lgkmcnt(0)")
    a(mfma(S1, KR+4, Qf, "0"))
    a("s_mov_b64 exec, s[40:41]")
    a(f"ds_read_b128 v[{VR}:{VR+3}], v{vV}")
    a(f"ds_read_b128 v[{VR+4}:{VR+7}], v{vV} offset:512")
    a("s_mov_b64 exec, -1")
    m = T
    a(f"v_max3_f32 v{m}, v{S0}, v{S0+1}, v{S0+2}")
    for r in range(3, 15, 2):
        a(f"v_max3_f32 v{m}, v{m}, v{S0+r}, v{S0+r+1}")
    a(f"v_max3_f32 v{m}, v{m}, v{S0+15}, v{S1}")
    for r in range(1, 15, 2):
        a(f"v_max3_f32 v{m}, v{m}, v{S1+r}, v{S1+r+1}")
    a(f"v_max_f32 v{m}, v{m}, v{S1+15}")
    a(f"v_mov_b32 v{m+1}, v{m}")
    a(f"v_permlane32_swap_b32 v{m}, v{m+1}")
    a(f"v_max_f32 v{m}, v{m}, v{m+1}")
    a(f"v_add_f32 v{m}, {hexf(ATT_OFFSET)}, v{m}")
    a(f"v_sub_f32 v{NEG}, 0, v{m}")
    for r in range(1, 16): a(f"v_mov_b32 v{NEG+r}, v{NEG}")
    a(mfma(S0, KR, Qf, NEG))
    a("s_mov_b32 s26, 0")
    a("s_mov_b32 s28, 16384")
    a("s_nop 7")
    mark(a, 1)
    a.label(f"{pfx}_LOOP")
    a("s_waitcnt vmcnt(0)")
    a("s_barrier")
    a("s_cmp_ge_u32 s26, 6")
    a(f"s_cbranch_scc1 {pfx}_NODMA")
    dma("s24", "s25")
    a("s_add_u32 s24, s24, 8192")
    a("s_add_u32 s25, s25, 16384")
    a("s_and_b32 s25, s25, 0xffff")
    a.label(f"{pfx}_NODMA")
    E = lambda r: a(f"v_exp_f32 v{r}, v{r}")
    C = lambda d, r: a(f"v_cvt_pk_bf16_f32 v{d}, v{r}, v{r+1}")
    lq = Q(a, "lgkmcnt", 15)
    lq.issue(("K", 1)); lq.issue(("V", 0)); lq.issue(("V", 0))
    for t in range(8):
        Sa = S0 if t % 2 == 0 else S1
        Sb = S1 if t % 2 == 0 else S0
        Kn = KR + 4*((t+1) % 2)
        Kl = KR + 4*(t % 2)
        Vc = VR + 8*(t % 2); Vp = VR + 8*((t+1) % 2)
        lq.wait(("K", t+1))
        a(mfma(Sb, Kn, Qf, NEG))
        if t + 2 < 8: a(f"ds_read_b128 v[{Kl}:{Kl+3}], v{vK} offset:{(t+2)*1024}")
        else: a(f"ds_read_b128 v[{Kl}:{Kl+3}], v{vKn} offset:{(t+2-8)*1024}")
        lq.issue(("K", t+2))
        E(Sa+0); E(Sa+1); E(Sa+2); E(Sa+3)
        C(P+0, Sa+0); E(Sa+4); C(P+1, Sa+2); E(Sa+5); E(Sa+6); E(Sa+7)
        a(mfma(O, Vp+4, P+4, O))
        a("s_mov_b64 exec, s[40:41]")
        if t + 1 < 8:
            a(f"ds_read_b128 v[{Vp}:{Vp+3}], v{vV} offset:{(t+1)*1024}")
            a(f"ds_read_b128 v[{Vp+4}:{Vp+7}], v{vV} offset:{(t+1)*1024+512}")
        else:
            a(f"ds_read_b128 v[{Vp}:{Vp+3}], v{vVn}")
            a(f"ds_read_b128 v[{Vp+4}:{Vp+7}], v{vVn} offset:512")
        a("s_mov_b64 exec, -1")
        lq.issue(("V", t+1)); lq.issue(("V", t+1))
        E(Sa+8); C(P+2, Sa+4); E(Sa+9); C(P+3, Sa+6); E(Sa+10); E(Sa+11)
        E(Sa+12); C(P+4, Sa+8)
        lq.wait(("V", t))
        a(mfma(O, Vc, P, O))
        E(Sa+13); C(P+5, Sa+10); E(Sa+14); E(Sa+15)
        C(P+6, Sa+12); C(P+7, Sa+14)
    a(f"v_mov_b32 v{vK}, v{vKn}")
    a(f"v_mov_b32 v{vV}, v{vVn}")
    a("s_add_u32 s28, s28, 16384")
    a("s_and_b32 s28, s28, 0xffff")
    a(f"v_add_u32 v{vKn}, s28, v{vL16}")
    a(f"v_add_u32 v{vVn}, s28, v{vVo}")
    a("s_add_u32 s26, s26, 1")
    a("s_cmp_lt_u32 s26, 8")
    a(f"s_cbranch_scc1 {pfx}_LOOP")
    mark(a, 2)
    a(mfma(O, VR+8+4, P+4, O))
    a("s_waitcnt lgkmcnt(0)")
    a.label(f"{pfx}_FIN")
    a("s_mov_b32 s30, 0x207")
    a("s_mov_b32 s31, 0x2ff")
    a(f"v_cmp_class_f32 s[32:33], v{O+8}, s31")
    for r in range(8):
        a(f"v_cmp_class_f32 vcc, v{O+r}, s30")
        a("s_or_b64 s[32:33], s[32:33], vcc")
    a("s_cmp_lg_u64 s[32:33], 0")
    a(f"s_cbranch_scc1 {pfx}_SLOW")
    a.label(f"{pfx}_OUT")
    a(f"v_rcp_f32 v{T}, v{O+8}")
    for r in range(8): a(f"v_mul_f32 v{O+r}, v{O+r}, v{T}")
    for d in range(4): a(f"v_cvt_pk_bf16_f32 v{T+2+d}, v{O+2*d}, v{O+2*d+1}")
    a("s_lshl_b32 s34, s20, 15")
    a("s_lshl_b32 s35, s17, 10")
    a("s_add_u32 s34, s34, s35")
    a(f"s_add_u32 s34, s34, {OF_OFF}")
    a(f"buffer_store_dwordx4 v[{T+2}:{T+5}], v{vL16}, s[{SWS}:{SWS+3}], s34 offen")
    a(f"s_branch {pfx}_END")
    a.label(f"{pfx}_SLOW")
    a("s_lshl_b32 s19, s17, 16")
    a(f"s_add_u32 s36, s19, {KF_OFF}")
    a(f"v_mov_b32 v{m}, 0xff800000")
    a("s_mov_b32 s26, 0")
    a.label(f"{pfx}_SL1")
    a(f"buffer_load_dwordx4 v[{KR}:{KR+3}], v{vL16}, s[{SWS}:{SWS+3}], s36 offen")
    a("s_waitcnt vmcnt(0)")
    a(mfma(S0, KR, Qf, "0"))
    for r in range(0, 16, 2):
        a(f"v_max3_f32 v{m}, v{m}, v{S0+r}, v{S0+r+1}")
    a("s_add_u32 s36, s36, 1024")
    a("s_add_u32 s26, s26, 1")
    a("s_cmp_lt_u32 s26, 64")
    a(f"s_cbranch_scc1 {pfx}_SL1")
    a(f"v_mov_b32 v{m+1}, v{m}")
    a(f"v_permlane32_swap_b32 v{m}, v{m+1}")
    a(f"v_max_f32 v{m}, v{m}, v{m+1}")
    a(f"v_sub_f32 v{NEG}, 0, v{m}")
    for r in range(1, 16): a(f"v_mov_b32 v{NEG+r}, v{NEG}")
    for r in range(16): a(f"v_mov_b32 v{O+r}, 0")
    a(f"s_add_u32 s36, s19, {KF_OFF}")
    a(f"v_subrev_u32 v{vV}, 8192, v{vVo}")
    a("s_mov_b32 s26, 0")
    a.label(f"{pfx}_SL2")
    a(f"buffer_load_dwordx4 v[{KR}:{KR+3}], v{vL16}, s[{SWS}:{SWS+3}], s36 offen")
    a(f"s_add_u32 s37, s36, {VF_OFF-KF_OFF}")
    a("s_mov_b64 exec, s[40:41]")
    a(f"buffer_load_dwordx4 v[{VR}:{VR+3}], v{vV}, s[{SWS}:{SWS+3}], s37 offen")
    a(f"buffer_load_dwordx4 v[{VR+4}:{VR+7}], v{vV}, s[{SWS}:{SWS+3}], s37 offen offset:512")
    a("s_mov_b64 exec, -1")
    a("s_waitcnt vmcnt(0)")
    a(mfma(S0, KR, Qf, NEG))
    for r in range(16): E(S0+r)
    for d in range(8): C(P+d, S0+2*d)
    a(mfma(O, VR, P, O))
    a(mfma(O, VR+4, P+4, O))
    a("s_add_u32 s36, s36, 1024")
    a("s_add_u32 s26, s26, 1")
    a("s_cmp_lt_u32 s26, 64")
    a(f"s_cbranch_scc1 {pfx}_SL2")
    a("s_nop 15")
    a(f"s_branch {pfx}_OUT")

def gen_att(label):
    k = Kernel(label, 256, 512, 65536, 128)
    a = k.a
    a("s_cmp_ge_u32 s2, 256")
    a("s_cbranch_scc1 AT_END")
    emit_att(a)
    a.label("AT_END")
    return k
```

```python
from asmlib import *

NAME = "parallel_sum__softmax_full_mha__glu_gated_glu__prompt"
HEADER = open("cdna_kernels/%s.s.ref" % NAME).read().split("; Override launch")[0]

KA_X, KA_WQKV, KA_WO, KA_BX, KA_WG, KA_WU, KA_WD, KA_OUT, KA_DBG, KA_WS = [8*i for i in range(10)]
XN_OFF = 0x000000
QF_OFF = 0x200000
KF_OFF = 0x400000
VF_OFF = 0x600000
OF_OFF = 0x800000
HF_OFF = 0xA00000
BF_OFF = 0x1100000
WS_BYTES = 0x10000000

TS_OFF = 0x4000000
TS_ENABLE = [False, 0]
class Q:
    def __init__(self, asm, name, maxn):
        self.asm = asm; self.name = name; self.maxn = maxn
        self.order = []
        self.done = 0
    def issue(self, tag=None):
        self.order.append(tag)
    def wait(self, tag):
        idx = max(i for i, t in enumerate(self.order) if t == tag)
        if idx < self.done: return
        n = len(self.order) - 1 - idx
        n = min(n, self.maxn)
        self.asm(f"s_waitcnt {self.name}({n})")
        self.done = len(self.order) - n
    def wait_all(self):
        if self.done < len(self.order) or True:
            self.asm(f"s_waitcnt {self.name}(0)")
        self.done = len(self.order)
    def known_all(self):
        self.done = len(self.order)

class Kernel:
    def __init__(self, label, grid, block, lds, vgpr, sgpr=96):
        self.label = label; self.grid = grid; self.block = block; self.lds = lds; self.vgpr = vgpr; self.sgpr = sgpr
        self.a = Asm()
        self.ts = None
        if TS_ENABLE[0]:
            self.ts = TS_ENABLE[1]; TS_ENABLE[1] += 1
            self.a("s_memrealtime s[92:93]")
            self.a("s_memtime s[82:83]")
            self.a("s_mov_b32 s91, s2")
            self.a("v_lshrrev_b32 v127, 6, v0") if False else None
    def text(self):
        if self.ts is not None:
            a = self.a
            a("s_memrealtime s[94:95]")
            a("s_memtime s[80:81]")
            a("s_load_dwordx2 s[84:85], s[0:1], 72")
            a("s_mov_b32 s86, 0x10000000")
            a("s_mov_b32 s87, 0x00020000")
            a("s_waitcnt lgkmcnt(0)")
            a("s_mov_b64 exec, 1")
            a("s_getreg_b32 s90, hwreg(HW_REG_HW_ID)")
            a("s_lshl_b32 s91, s91, 4")
            a("s_and_b32 s89, s16, 15")
            a("s_add_u32 s91, s91, s89")
            a("s_lshl_b32 s91, s91, 6")
            a(f"s_add_u32 s91, s91, {TS_OFF + self.ts*0x100000}")
            a("v_mov_b32 v0, 0")
            a("v_mov_b32 v4, s92")
            a("v_mov_b32 v5, s94")
            a("v_mov_b32 v6, s90")
            a("s_sub_u32 s80, s80, s82")
            a("v_mov_b32 v7, s80")
            a("buffer_store_dwordx4 v[4:7], v0, s[84:87], s91 offen")
            for g in range(3):
                for d in range(4):
                    m = 50 + 2*(4*g+d)
                    a(f"s_sub_u32 s{m}, s{m}, s82")
                    a(f"v_mov_b32 v{8+4*g+d}, s{m}")
                a(f"buffer_store_dwordx4 v[{8+4*g}:{11+4*g}], v0, s[84:87], s91 offen offset:{16+16*g}")
        body = self.a.finish()
        return (f".globl {self.label}\n.p2align 8\n.type {self.label},@function\n{self.label}:\n" + body + "    s_endpgm\n")
    def desc(self):
        acc = (self.vgpr + 3) // 4 * 4
        return (f".p2align 6\n.amdhsa_kernel {self.label}\n  .amdhsa_next_free_vgpr {self.vgpr}\n  .amdhsa_next_free_sgpr {self.sgpr}\n"
                f"  .amdhsa_accum_offset {acc}\n  .amdhsa_group_segment_fixed_size 0\n  .amdhsa_kernarg_size 80\n"
                f"  .amdhsa_user_sgpr_count 2\n  .amdhsa_user_sgpr_kernarg_segment_ptr 1\n  .amdhsa_system_sgpr_workgroup_id_x 1\n.end_amdhsa_kernel\n")

def build_file(kernels, launches=None):
    launches = launches or kernels
    t = HEADER
    for k in launches:
        t += f"; @launch kernel={k.label} grid=({k.grid},1,1) block=({k.block},1,1) lds={k.lds}\n"
    t += '.amdgcn_target "amdgcn-amd-amdhsa--gfx950"\n.text\n'
    for k in kernels: t += k.text()
    t += '.section .rodata,"a"\n'
    for k in kernels: t += k.desc()
    return t

def srd(a, d, ka_off, nbytes):
    a(f"s_load_dwordx2 s[{d}:{d+1}], s[0:1], {ka_off}")
    a(f"s_mov_b32 s{d+2}, {nbytes}")
    a(f"s_mov_b32 s{d+3}, 0x00020000")

def mfma(D, A, B, C, at="v"):
    c = C if isinstance(C, str) else f"v[{C}:{C+15}]"
    return f"v_mfma_f32_32x32x16_bf16 v[{D}:{D+15}], v[{A}:{A+3}], v[{B}:{B+3}], {c}"

import struct
def hexf(x):
    return "0x%08x" % struct.unpack("<I", struct.pack("<f", x))[0]

def mark(a, i):
    if TS_ENABLE[0]: a(f"s_memtime s[{50+2*i}:{51+2*i}]")
```

```python
from common import *

def emit_splitk(a, mode, pfx):
    SWS, SW, SX, SO = 12, 4, 8, 20
    nks = 28 if mode == "D" else 8
    fr_off = HF_OFF if mode == "D" else OF_OFF
    fr_stride = 114688 if mode == "D" else 32768
    srd(a, SWS, KA_WS, WS_BYTES)
    srd(a, SW, KA_WD if mode == "D" else KA_WO, (1792 if mode == "D" else 512)*512*2)
    if mode == "O":
        srd(a, SX, KA_X, 2097152); srd(a, SO, KA_OUT, 2097152)
    a("v_and_b32 v1, 63, v0")
    a("v_lshrrev_b32 v2, 6, v0")
    a("v_readfirstlane_b32 s16, v2")
    a("s_and_b32 s19, s2, 7")
    a("s_lshr_b32 s24, s2, 3")
    a("s_lshl_b32 s19, s19, 2")
    a("s_and_b32 s25, s24, 3")
    a("s_add_u32 s17, s19, s25")
    a("s_lshr_b32 s18, s24, 2")
    a("s_and_b32 s26, s16, 1")
    a("s_lshr_b32 s27, s16, 1")
    vL16, vWo, vT = 2, 3, 4
    a(f"v_lshlrev_b32 v{vL16}, 4, v1")
    a("v_lshrrev_b32 v5, 2, v1")
    a(f"v_lshlrev_b32 v{vWo}, 10, v5")
    a("v_and_b32 v5, 3, v1")
    a(f"v_lshl_add_u32 v{vWo}, v5, 4, v{vWo}")
    a(f"s_mul_i32 s28, s27, {nks}")
    a("s_add_u32 s29, s28, s26")
    a("s_lshl_b32 s29, s29, 14")
    a("s_lshl_b32 s30, s18, 7")
    a("s_add_u32 s29, s29, s30")
    a("s_lshl_b32 s30, s27, 12")
    a("s_lshl_b32 s31, s26, 11")
    a("s_add_u32 s30, s30, s31")
    a("s_lshl_b32 s31, s17, 1")
    a("s_add_u32 s31, s31, s26")
    a(f"s_mul_i32 s31, s31, {fr_stride}")
    a("s_lshl_b32 s32, s28, 10")
    a("s_add_u32 s31, s31, s32")
    a(f"s_add_u32 s31, s31, {fr_off}")
    a("v_lshrrev_b32 v5, 5, v1")
    a("v_bfe_u32 v6, v1, 2, 2")
    a("v_lshl_add_u32 v5, v5, 2, v6")
    a(f"v_lshlrev_b32 v{vT}, 6, v5")
    a("v_bfe_u32 v6, v1, 4, 1")
    a(f"v_lshl_add_u32 v{vT}, v6, 5, v{vT}")
    a("v_and_b32 v6, 3, v1")
    a(f"v_lshl_add_u32 v{vT}, v6, 3, v{vT}")
    a("s_lshl_b32 s33, s27, 12")
    a(f"v_add_u32 v{vT}, s33, v{vT}")
    vF = 5
    a("v_lshrrev_b32 v6, 3, v1")
    a(f"v_lshlrev_b32 v{vF}, 10, v6")
    a("v_and_b32 v7, 7, v1")
    a(f"v_lshl_add_u32 v{vF}, v7, 4, v{vF}")
    a("s_lshl_b32 s34, s17, 16")
    a("s_lshl_b32 s35, s16, 13")
    a("s_add_u32 s34, s34, s35")
    a("s_lshl_b32 s35, s18, 7")
    a("s_add_u32 s34, s34, s35")
    vR = 8
    a("v_lshrrev_b32 v9, 2, v7")
    a(f"v_lshlrev_b32 v{vR}, 12, v9")
    a("v_and_b32 v9, 3, v7")
    a(f"v_lshl_add_u32 v{vR}, v9, 10, v{vR}")
    a(f"v_lshl_add_u32 v{vR}, v6, 4, v{vR}")
    a("s_lshr_b32 s35, s16, 2")
    a("s_lshl_b32 s35, s35, 13")
    a("s_and_b32 s36, s16, 3")
    a("s_lshl_b32 s36, s36, 7")
    a("s_add_u32 s35, s35, s36")
    a(f"v_add_u32 v{vR}, s35, v{vR}")
    vWr = 9
    a("s_lshl_b32 s35, s27, 14")
    a("s_lshl_b32 s36, s26, 13")
    a("s_add_u32 s35, s35, s36")
    a(f"v_add_u32 v{vWr}, s35, v{vL16}")
    a("s_waitcnt lgkmcnt(0)")
    NST = nks // 2
    NB = 4
    vq = Q(a, "vmcnt", 63); lq = Q(a, "lgkmcnt", 15)
    ACC = 16; HB = 48; FR = 96
    XR = 80
    def dma(st):
        b = st % NB
        for nt in range(2):
            a(f"s_add_u32 m0, s30, {b*16384 + nt*1024}")
            a(f"s_add_u32 s37, s29, {st*32768 + nt*64}")
            a(f"buffer_load_dwordx4 v{vWo}, s[{SW}:{SW+3}], s37 offen lds"); vq.issue(st)
        for kk in range(2):
            r = HB + 8*(st % 4) + 4*kk
            a(f"s_add_u32 s37, s31, {(2*st+kk)*1024}")
            a(f"buffer_load_dwordx4 v[{r}:{r+3}], v{vL16}, s[{SWS}:{SWS+3}], s37 offen"); vq.issue(st)
    def reads(st, kk):
        b = st % NB; f = FR + 8*((2*st+kk) % 2)
        for nt in range(2):
            o = b*16384 + kk*2048 + nt*1024
            a(f"ds_read_b64_tr_b16 v[{f+4*nt}:{f+4*nt+1}], v{vT} offset:{o}"); lq.issue((st, kk))
            a(f"ds_read_b64_tr_b16 v[{f+4*nt+2}:{f+4*nt+3}], v{vT} offset:{o+512}"); lq.issue((st, kk))
    def mm(st, kk):
        f = FR + 8*((2*st+kk) % 2)
        hb = HB + 8*(st % 4) + 4*kk
        lq.wait((st, kk))
        for nt in range(2):
            acc = ACC + 16*nt
            a(mfma(acc, f+4*nt, hb, "0" if (st == 0 and kk == 0) else acc))
    PD = 3 if NST > 3 else NST
    for st in range(min(PD, NST)): dma(st)
    if mode == "O":
        a(f"buffer_load_dwordx4 v[{XR}:{XR+3}], v{vF}, s[{SX}:{SX+3}], s34 offen"); vq.issue("x")
        a(f"s_add_u32 s38, s34, {BF_OFF}")
        a(f"buffer_load_dwordx4 v[{XR+4}:{XR+7}], v{vF}, s[{SWS}:{SWS+3}], s38 offen"); vq.issue("x")
    mark(a, 0)
    for st in range(NST):
        if st > 0: lq.wait((st-1, 1))
        vq.wait(st)
        a("s_barrier")
        if st == 0: mark(a, 1)
        reads(st, 0)
        if st > 0: mm(st-1, 1)
        if st + PD < NST: dma(st + PD)
        reads(st, 1)
        mm(st, 0)
    mm(NST-1, 1)
    mark(a, 2)
    a("s_barrier")
    for nt in range(2):
        for q in range(4):
            r = ACC + 16*nt + 4*q
            a(f"ds_write_b128 v{vWr}, v[{r}:{r+3}] offset:{nt*4096 + q*1024}")
    a("s_waitcnt lgkmcnt(0)")
    a("s_barrier")
    RS = 48
    for ks in range(4):
        for h in range(2):
            r = RS + 8*ks + 4*h
            a(f"ds_read_b128 v[{r}:{r+3}], v{vR} offset:{ks*16384 + h*512}")
    a("s_waitcnt lgkmcnt(4)")
    for i in range(8): a(f"v_add_f32 v{RS+i}, v{RS+i}, v{RS+8+i}")
    a("s_waitcnt lgkmcnt(0)")
    for i in range(8): a(f"v_add_f32 v{RS+16+i}, v{RS+16+i}, v{RS+24+i}")
    for i in range(8): a(f"v_add_f32 v{RS+i}, v{RS+i}, v{RS+16+i}")
    for d in range(4): a(f"v_cvt_pk_bf16_f32 v{RS+8+d}, v{RS+2*d}, v{RS+2*d+1}")
    if mode == "D":
        a(f"s_add_u32 s38, s34, {BF_OFF}")
        a(f"buffer_store_dwordx4 v[{RS+8}:{RS+11}], v{vF}, s[{SWS}:{SWS+3}], s38 offen")
    else:
        a("s_waitcnt vmcnt(0)")
        U = RS + 16
        def unpack(dst, src):
            for d in range(4):
                a(f"v_lshlrev_b32 v{dst+2*d}, 16, v{src+d}")
                a(f"v_and_b32 v{dst+2*d+1}, 0xffff0000, v{src+d}")
        unpack(U, RS+8); unpack(U+8, XR)
        for i in range(8): a(f"v_add_f32 v{U+i}, v{U+i}, v{U+8+i}")
        for d in range(4): a(f"v_cvt_pk_bf16_f32 v{RS+8+d}, v{U+2*d}, v{U+2*d+1}")
        unpack(U, RS+8); unpack(U+8, XR+4)
        for i in range(8): a(f"v_add_f32 v{U+i}, v{U+i}, v{U+8+i}")
        for d in range(4): a(f"v_cvt_pk_bf16_f32 v{RS+8+d}, v{U+2*d}, v{U+2*d+1}")
        a(f"buffer_store_dwordx4 v[{RS+8}:{RS+11}], v{vF}, s[{SO}:{SO+3}], s34 offen")
    a(f"s_branch {pfx}_END")

def gen_splitk(label, mode):
    k = Kernel(label, 256, 512, 65536, 128)
    a = k.a
    pfx = "D" if mode == "D" else "O"
    a("s_cmp_ge_u32 s2, 256")
    a(f"s_cbranch_scc1 {pfx}_END")
    emit_splitk(a, mode, pfx)
    a.label(f"{pfx}_END")
    return k
```

```python
from common import *

def emit_g(a, pfx="G"):
    SWS, SG, SU = 12, 4, 8
    srd(a, SWS, KA_WS, WS_BYTES); srd(a, SG, KA_WG, 512*1792*2); srd(a, SU, KA_WU, 512*1792*2)
    a("v_and_b32 v1, 63, v0")
    a("v_lshrrev_b32 v2, 6, v0")
    a("v_readfirstlane_b32 s16, v2")
    a("s_and_b32 s19, s2, 7")
    a("s_lshr_b32 s20, s2, 3")
    a("s_lshr_b32 s21, s19, 1")
    a("s_lshl_b32 s21, s21, 2")
    a("s_and_b32 s22, s20, 3")
    a("s_add_u32 s17, s21, s22")
    a("s_and_b32 s21, s19, 1")
    a("s_mul_i32 s21, s21, 7")
    a("s_lshr_b32 s22, s20, 2")
    a("s_add_u32 s18, s21, s22")
    vL16, vGo, vUo, vX, vT0, vT1 = 2, 3, 4, 5, 6, 7
    a(f"v_lshlrev_b32 v{vL16}, 4, v1")
    a("v_lshrrev_b32 v8, 4, v1")
    a("v_bfe_u32 v9, v1, 1, 3")
    a("v_lshlrev_b32 v10, 1, v8")
    a("v_xor_b32 v11, v9, v10")
    a("v_mul_u32_u24 v12, 3584, v8")
    a("v_and_b32 v13, 1, v1")
    a("v_lshl_add_u32 v12, v13, 4, v12")
    a(f"v_lshl_add_u32 v{vGo}, v11, 5, v12")
    a("v_xor_b32 v11, 1, v11")
    a(f"v_lshl_add_u32 v{vUo}, v11, 5, v12")
    a("s_lshr_b32 s21, s16, 1")
    a("s_lshl_b32 s22, s17, 2")
    a("s_add_u32 s22, s22, s21")
    a("s_lshl_b32 s22, s22, 15")
    a("s_and_b32 s23, s16, 1")
    a("s_lshl_b32 s23, s23, 10")
    a("s_add_u32 s24, s22, s23")
    if XN_OFF: a(f"s_add_u32 s24, s24, {XN_OFF}")
    a("s_mul_i32 s25, s16, 14336")
    a("s_lshl_b32 s26, s18, 8")
    a("s_add_u32 s25, s25, s26")
    a("s_lshl_b32 s26, s16, 10")
    a("v_lshrrev_b32 v8, 5, v1")
    a("v_bfe_u32 v9, v1, 2, 2")
    a("v_bfe_u32 v10, v1, 4, 1")
    a("v_bfe_u32 v11, v1, 1, 1")
    a("v_and_b32 v12, 1, v1")
    a("v_lshl_add_u32 v13, v8, 3, v9")
    a("v_lshlrev_b32 v13, 8, v13")
    a("v_lshl_add_u32 v13, v11, 13, v13")
    a("v_lshl_add_u32 v13, v10, 4, v13")
    a("v_lshl_add_u32 v13, v12, 3, v13")
    a("v_add_u32 v13, 24576, v13")
    a("v_lshl_add_u32 v14, v9, 1, v11")
    a("s_and_b32 s27, s16, 6")
    a("v_xor_b32 v15, s27, v14")
    a(f"v_lshl_add_u32 v{vT0}, v15, 5, v13")
    a("v_xor_b32 v15, 1, v15")
    a(f"v_lshl_add_u32 v{vT1}, v15, 5, v13")
    a("s_and_b32 s28, s16, 1")
    a("s_lshl_b32 s28, s28, 12")
    a(f"v_add_u32 v{vX}, s28, v{vL16}")
    a("s_waitcnt lgkmcnt(0)")
    NST = 16
    vq = Q(a, "vmcnt", 63); lq = Q(a, "lgkmcnt", 15)
    def dma(st):
        b = st % 3
        a(f"s_add_u32 m0, s26, {b*8192}")
        a(f"s_add_u32 s29, s24, {st*2048}")
        a(f"buffer_load_dwordx4 v{vL16}, s[{SWS}:{SWS+3}], s29 offen lds"); vq.issue(st)
        a(f"s_add_u32 m0, s26, {24576 + b*16384}")
        a(f"s_add_u32 s29, s25, {st*32*3584}")
        a(f"buffer_load_dwordx4 v{vGo}, s[{SG}:{SG+3}], s29 offen lds"); vq.issue(st)
        a(f"s_add_u32 m0, s26, {24576 + b*16384 + 8192}")
        a(f"buffer_load_dwordx4 v{vUo}, s[{SU}:{SU+3}], s29 offen lds"); vq.issue(st)
    ACC = 16
    FR = 80
    def reads(st, kk):
        b = st % 3; f = FR + 16*((2*st+kk) % 2)
        for nt in range(2):
            vt = vT0 if nt == 0 else vT1
            o = b*16384 + kk*4096
            a(f"ds_read_b64_tr_b16 v[{f+4*nt}:{f+4*nt+1}], v{vt} offset:{o}"); lq.issue((st, kk))
            a(f"ds_read_b64_tr_b16 v[{f+4*nt+2}:{f+4*nt+3}], v{vt} offset:{o+1024}"); lq.issue((st, kk))
        for mt in range(2):
            a(f"ds_read_b128 v[{f+8+4*mt}:{f+8+4*mt+3}], v{vX} offset:{b*8192 + mt*2048 + kk*1024}"); lq.issue((st, kk))
    def mm(st, kk):
        f = FR + 16*((2*st+kk) % 2)
        lq.wait((st, kk))
        for mt in range(2):
            for nt in range(2):
                acc = ACC + 16*(2*mt+nt)
                a(mfma(acc, f+4*nt, f+8+4*mt, "0" if (st == 0 and kk == 0) else acc))
    dma(0); dma(1)
    mark(a, 0)
    for st in range(NST):
        if st > 0:
            lq.wait((st-1, 1))
        vq.wait(st)
        a("s_barrier")
        if st == 0: mark(a, 1)
        if st + 2 < NST: dma(st + 2)
        reads(st, 0)
        if st > 0: mm(st-1, 1)
        reads(st, 1)
        mm(st, 0)
    mm(NST-1, 1)
    mark(a, 2)
    a("s_lshl_b32 s30, s17, 2")
    a("s_and_b32 s31, s16, 1")
    a("s_lshl_b32 s31, s31, 1")
    a("s_add_u32 s30, s30, s31")
    a("s_mul_i32 s30, s30, 114688")
    a("s_lshl_b32 s31, s18, 3")
    a("s_add_u32 s31, s31, s27")
    a("s_lshl_b32 s31, s31, 10")
    a("s_add_u32 s30, s30, s31")
    a(f"s_add_u32 s30, s30, {HF_OFF}")
    a("s_add_u32 s31, s30, 114688")
    NL = 8
    a(f"v_mov_b32 v{NL}, {hexf(-1.4426950408889634)}")
    for mt in range(2):
        for nt in range(2):
            acc = ACC + 16*(2*mt+nt)
            gs = [acc+b for b in range(4)] + [acc+8+b for b in range(4)]
            us = [acc+4+b for b in range(4)] + [acc+12+b for b in range(4)]
            for g in gs: a(f"v_mul_f32 v{g}, v{NL}, v{g}")
            for g in gs: a(f"v_exp_f32 v{g}, v{g}")
            for g in gs: a(f"v_add_f32 v{g}, 1.0, v{g}")
            for g in gs: a(f"v_rcp_f32 v{g}, v{g}")
            for g, u in zip(gs, us): a(f"v_mul_f32 v{g}, v{g}, v{u}")
            o = FR + 4*(2*mt+nt)
            for d in range(4): a(f"v_cvt_pk_bf16_f32 v{o+d}, v{gs[2*d]}, v{gs[2*d+1]}")
            a(f"buffer_store_dwordx4 v[{o}:{o+3}], v{vL16}, s[{SWS}:{SWS+3}], s{30+mt} offen offset:{nt*1024}")
    a(f"s_branch {pfx}_END")

def gen_g(label):
    k = Kernel(label, 224, 512, 73728, 128)
    a = k.a
    a("s_cmp_ge_u32 s2, 224")
    a("s_cbranch_scc1 G_END")
    emit_g(a)
    a.label("G_END")
    return k
```

```python
from common import *

def gen_k1(label):
    k = Kernel(label, 256, 512, 163840, 256)
    a = k.a
    lq = Q(a, "lgkmcnt", 15); vq = Q(a, "vmcnt", 63)
    SX, SW, SWS = 4, 8, 12
    sw, srb, scb = 16, 17, 18
    a("s_cmp_ge_u32 s2, 256")
    a("s_cbranch_scc1 K1_END")
    srd(a, SX, KA_X, 2097152); srd(a, SW, KA_WQKV, 512*1536*2); srd(a, SWS, KA_WS, WS_BYTES)
    a("v_and_b32 v1, 63, v0")
    a("v_lshrrev_b32 v2, 6, v0")
    a("v_readfirstlane_b32 s16, v2")
    a("s_and_b32 s19, s2, 7")
    a("s_lshr_b32 s20, s2, 3")
    a("s_lshr_b32 s21, s19, 1")
    a("s_lshl_b32 s21, s21, 3")
    a("s_and_b32 s22, s20, 7")
    a("s_add_u32 s17, s21, s22")
    a("s_and_b32 s21, s19, 1")
    a("s_lshl_b32 s21, s21, 2")
    a("s_lshr_b32 s22, s20, 3")
    a("s_add_u32 s18, s21, s22")
    a("v_lshrrev_b32 v4, 3, v1")
    a("v_and_b32 v5, 7, v1")
    a("v_lshlrev_b32 v3, 10, v4")
    a("v_lshl_add_u32 v3, v5, 4, v3")
    a("s_lshl_b32 s23, s17, 16")
    a("s_lshl_b32 s24, s16, 13")
    a("s_add_u32 s23, s23, s24")
    a("v_lshrrev_b32 v6, 2, v1")
    a("v_mul_u32_u24 v6, 3072, v6")
    a("v_and_b32 v7, 3, v1")
    a("v_lshl_add_u32 v6, v7, 4, v6")
    a("s_mul_i32 s25, s16, 98304")
    a("s_lshl_b32 s26, s18, 7")
    a("s_add_u32 s25, s25, s26")
    a("s_lshl_b32 s26, s16, 11")
    a("s_add_u32 s26, s26, 65536")
    a("s_waitcnt lgkmcnt(0)")
    X = 16
    for i in range(8):
        a(f"buffer_load_dwordx4 v[{X+4*i}:{X+4*i+3}], v3, s[{SX}:{SX+3}], s23 offen offset:{128*i}")
        vq.issue(("x", i))
    def wdma(half):
        for t in range(6):
            for g in range(2):
                go = g*49152 + 1024*(t//2) + 64*(t%2) + half*256*3072
                lo = t*16384 + g*1024
                a(f"s_add_u32 s27, s25, {go}")
                a(f"s_add_u32 m0, s26, {lo}")
                a(f"buffer_load_dwordx4 v6, s[{SW}:{SW+3}], s27 offen lds")
                vq.issue(("w", half))
    wdma(0)
    a("v_lshrrev_b32 v9, 1, v5")
    a("v_lshlrev_b32 v9, 10, v9")
    a("v_and_b32 v10, 1, v5")
    a("v_lshl_add_u32 v9, v10, 9, v9")
    a("s_and_b32 s28, s16, 3")
    a("s_lshl_b32 s28, s28, 7")
    a("s_lshr_b32 s29, s16, 2")
    a("s_lshl_b32 s30, s29, 15")
    a("s_add_u32 s30, s30, s28")
    a("v_xor_b32 v10, v4, v5")
    a("v_lshl_add_u32 v8, v10, 4, v9")
    a("v_add_u32 v8, s30, v8")
    a("v_lshl_add_u32 v11, v4, 4, v9")
    a("v_add_u32 v11, s28, v11")
    a("s_lshl_b32 s31, s17, 1")
    a("s_add_u32 s31, s31, s29")
    a("s_lshl_b32 s31, s31, 15")
    a("s_lshl_b32 s32, s18, 12")
    a("s_add_u32 s31, s31, s32")
    if XN_OFF: a(f"s_add_u32 s31, s31, {XN_OFF}")
    a("v_lshrrev_b32 v2, 5, v1")
    for q in range(4):
        a(f"v_add_u32 v10, {2*q}, v2")
        a(f"v_xor_b32 v10, v10, v1")
        a(f"v_lshlrev_b32 v{12+q}, 4, v10")
    a("v_lshrrev_b32 v10, 5, v1")
    a("v_lshlrev_b32 v7, 9, v10")
    a("v_bfe_u32 v10, v1, 2, 2")
    a("v_lshl_add_u32 v7, v10, 6, v7")
    a("v_bfe_u32 v10, v1, 4, 1")
    a("v_lshl_add_u32 v7, v10, 5, v7")
    a("v_and_b32 v10, 3, v1")
    a("v_lshl_add_u32 v7, v10, 3, v7")
    a("s_sub_u32 s33, s16, 4")
    a("s_lshr_b32 s34, s33, 1")
    a("s_add_u32 s34, s34, 4")
    a("s_cmp_lt_u32 s16, 4")
    a("s_cselect_b32 s34, s16, s34")
    a("s_lshl_b32 s35, s34, 14")
    a("s_add_u32 s35, s35, 65536")
    a("v_add_u32 v7, s35, v7")
    a("s_and_b32 s36, s33, 1")
    a("s_cmp_lt_u32 s16, 4")
    a("s_cselect_b32 s36, 0, s36")
    a("s_lshl_b32 s37, s36, 15")
    for q in range(4):
        a(f"v_add_u32 v{12+q}, s37, v{12+q}")
    mark(a, 0)
    ONES, A1, B1, A2, B2 = 48, 49, 50, 51, 52
    a(f"v_mov_b32 v{ONES}, 0x3f803f80")
    for r in (A1, B1, A2, B2): a(f"v_mov_b32 v{r}, 0")
    for i in range(8):
        vq.wait(("x", i))
        for d in range(4):
            r = X + 4*i + d
            a(f"v_dot2c_f32_bf16 v{A1 if d%2==0 else B1}, v{r}, v{ONES}")
            a(f"v_dot2c_f32_bf16 v{A2 if d%2==0 else B2}, v{r}, v{r}")
    mark(a, 1)
    a(f"v_add_f32 v{A1}, v{A1}, v{B1}")
    a(f"v_add_f32 v{A2}, v{A2}, v{B2}")
    for mod in ("quad_perm:[1,0,3,2]", "quad_perm:[2,3,0,1]", "row_half_mirror"):
        a(f"v_add_f32_dpp v{A1}, v{A1}, v{A1} {mod} row_mask:0xf bank_mask:0xf")
        a(f"v_add_f32_dpp v{A2}, v{A2}, v{A2} {mod} row_mask:0xf bank_mask:0xf")
    a(f"v_mul_f32 v{A1}, 0x3b000000, v{A1}")
    a(f"v_mul_f32 v{A2}, 0x3b000000, v{A2}")
    a(f"v_fma_f32 v{A2}, -v{A1}, v{A1}, v{A2}")
    a(f"v_max_f32 v{A2}, 0, v{A2}")
    a(f"v_add_f32 v{A2}, 0x3727c5ac, v{A2}")
    SC, BI = 54, 56
    a(f"v_rsq_f32 v{SC}, v{A2}")
    a(f"v_mul_f32 v{BI}, v{A1}, v{SC}")
    a(f"v_sub_f32 v{BI}, 0, v{BI}")
    T = 58
    for kx in range(32):
        r = X + kx; t = T + 2*(kx % 3)
        a(f"v_lshlrev_b32 v{t}, 16, v{r}")
        a(f"v_and_b32 v{t+1}, 0xffff0000, v{r}")
        a(f"v_pk_fma_f32 v[{t}:{t+1}], v[{t}:{t+1}], v[{SC}:{SC+1}], v[{BI}:{BI+1}] op_sel_hi:[1,0,0]")
        a(f"v_cvt_pk_bf16_f32 v{r}, v{t}, v{t+1}")
        if kx % 4 == 3:
            i = kx // 4
            a(f"ds_write_b128 v8, v[{X+4*i}:{X+4*i+3}] offset:{i*4096}")
            lq.issue(("xw", i))
    mark(a, 2)
    vq.wait_all(); lq.wait_all()
    a("s_barrier")
    mark(a, 3)
    WF = 64
    def trread(s):
        r = WF + (s % 16)*4; o = (s % 16)*1024
        a(f"ds_read_b64_tr_b16 v[{r}:{r+1}], v7 offset:{o}")
        lq.issue(("w", s))
        a(f"ds_read_b64_tr_b16 v[{r+2}:{r+3}], v7 offset:{o+256}")
        lq.issue(("w", s))
    for s_ in range(16): trread(s_)
    lq.wait_all()
    a("s_barrier")
    mark(a, 4)
    for i in range(8):
        a(f"s_cmp_lg_u32 s18, {i}")
        a(f"s_cbranch_scc1 K1_XS{i}")
        a(f"buffer_store_dwordx4 v[{X+4*i}:{X+4*i+3}], v11, s[{SWS}:{SWS+3}], s31 offen")
        a.label(f"K1_XS{i}")
    vq.issue("xs")
    wdma(1)
    ACC = 128; RING = 160; NR = 12
    a("s_cmp_ge_u32 s16, 4")
    a("s_cbranch_scc1 K1_VROLE")
    def gemm(nmt, vrole):
        lq2 = Q(a, "lgkmcnt", 15)
        PD = 4 if nmt == 2 else 6
        ringn = [0]
        slot = {}
        def xload(s):
            for mt in range(nmt):
                r = RING + 4*(ringn[0] % NR); ringn[0] += 1
                slot[(s, mt)] = r
                a(f"ds_read_b128 v[{r}:{r+3}], v{12 + s%4} offset:{mt*32768 + s*1024}")
                lq2.issue(("x", s))
        def wload(s):
            r = WF + (s % 16)*4; o = (s % 16)*1024
            a(f"ds_read_b64_tr_b16 v[{r}:{r+1}], v7 offset:{o}"); lq2.issue(("w", s))
            a(f"ds_read_b64_tr_b16 v[{r+2}:{r+3}], v7 offset:{o+256}"); lq2.issue(("w", s))
        for s_ in range(PD): xload(s_)
        for s_ in range(32):
            if s_ == 16:
                mark(a, 5)
                a("s_waitcnt vmcnt(0)")
                a("s_barrier")
                mark(a, 6)
                for u in range(16, 16+4): wload(u)
            if s_ >= 16 and s_ + 4 < 32: wload(s_ + 4)
            lq2.wait(("x", s_))
            if s_ >= 16: lq2.wait(("w", s_))
            wr = WF + (s_ % 16)*4
            for mt in range(nmt):
                xr = slot[(s_, mt)]
                acc = ACC + 16*mt
                c = "0" if s_ == 0 else acc
                if not vrole: a(mfma(acc, wr, xr, c))
                else: a(mfma(acc, xr, wr, c))
            if s_ + PD < 32: xload(s_ + PD)
    gemm(2, False)
    mark(a, 7)
    a("s_and_b32 s40, s34, 1")
    a("s_lshl_b32 s40, s40, 1")
    a("s_lshl_b32 s41, s18, 2")
    a("s_add_u32 s40, s40, s41")
    a("s_lshl_b32 s40, s40, 16")
    a("s_lshl_b32 s41, s17, 11")
    a("s_add_u32 s40, s40, s41")
    a("s_lshr_b32 s41, s34, 1")
    a("s_lshl_b32 s41, s41, 21")
    a("s_add_u32 s40, s40, s41")
    a(f"s_add_u32 s40, s40, {QF_OFF}")
    assert KF_OFF - QF_OFF == 1 << 21
    a("s_cmp_lt_u32 s34, 2")
    a("s_cselect_b32 s42, 0x3eb8aa3b, 1.0")
    a("v_mov_b32 v9, s42")
    a("v_lshlrev_b32 v10, 4, v1")
    a("s_add_u32 s43, s40, 65536")
    for mt in range(2):
        acc = ACC + 16*mt
        for r in range(16):
            a(f"v_mul_f32 v{acc+r}, v9, v{acc+r}")
        for hd in range(2):
            for d in range(4):
                a(f"v_cvt_pk_bf16_f32 v{RING+4*(mt*2+hd)+d}, v{acc+8*hd+2*d}, v{acc+8*hd+2*d+1}")
            r = RING + 4*(mt*2+hd)
            a(f"buffer_store_dwordx4 v[{r}:{r+3}], v10, s[{SWS}:{SWS+3}], s{40 if hd==0 else 43} offen offset:{mt*1024}")
    a("s_branch K1_END")
    a.label("K1_VROLE")
    gemm(1, True)
    mark(a, 7)
    a("s_sub_u32 s40, s34, 4")
    a("s_lshl_b32 s40, s40, 1")
    a("s_lshl_b32 s41, s18, 2")
    a("s_add_u32 s40, s40, s41")
    a("s_lshl_b32 s40, s40, 16")
    a("s_lshl_b32 s41, s17, 1")
    a("s_add_u32 s41, s41, s36")
    a("s_lshl_b32 s41, s41, 10")
    a("s_add_u32 s40, s40, s41")
    a(f"s_add_u32 s40, s40, {VF_OFF}")
    a("v_bfe_u32 v9, v1, 4, 1")
    a("v_lshlrev_b32 v10, 16, v9")
    a("v_lshrrev_b32 v9, 5, v1")
    a("v_lshl_add_u32 v10, v9, 8, v10")
    a("v_and_b32 v9, 15, v1")
    a("v_lshl_add_u32 v10, v9, 4, v10")
    for g in range(2):
        for d in range(4):
            a(f"v_cvt_pk_bf16_f32 v{RING+4*g+d}, v{ACC+8*g+2*d}, v{ACC+8*g+2*d+1}")
        r = RING + 4*g
        a(f"buffer_store_dwordx4 v[{r}:{r+3}], v10, s[{SWS}:{SWS+3}], s40 offen offset:{g*512}")
    a.label("K1_END")
    return k
```

```python
import sys
from common import *
from k1 import gen_k1
from att import gen_att
from gk import gen_g
from dk import gen_splitk
def main(out, which):
    if 'ts' in which: TS_ENABLE[0] = True
    ks = []
    ks.append(gen_k1(NAME + "_kernel"))
    ks.append(gen_att("att_kernel"))
    ks.append(gen_g("gate_kernel"))
    ks.append(gen_splitk("down_kernel", "D"))
    ks.append(gen_splitk("oproj_kernel", "O"))
    open(out, "w").write(build_file(ks))
if __name__ == "__main__":
    main(sys.argv[1], sys.argv[2:] )
```

```python
from common import *

PF_OFF = 0x1400000

def emit_ffn(a, pfx="F", idreg="s2", prio=0, D=5):
    SWS, SG, SU, SD = 12, 4, 8, 20
    srd(a, SWS, KA_WS, WS_BYTES); srd(a, SG, KA_WG, 512*1792*2); srd(a, SU, KA_WU, 512*1792*2); srd(a, SD, KA_WD, 1792*512*2)
    if prio: a(f"s_setprio {prio}")
    a("v_and_b32 v1, 63, v0")
    a("v_lshrrev_b32 v2, 6, v0")
    a("v_readfirstlane_b32 s16, v2")
    a(f"s_and_b32 s17, {idreg}, 7")
    a(f"s_lshr_b32 s18, {idreg}, 3")
    vL16, vW, vT, vSt = 2, 3, 4, 5
    RING, XB, ACC = 8, 8 + 8*D, 64
    assert XB + 16 <= ACC
    a(f"v_lshlrev_b32 v{vL16}, 4, v1")
    a("v_lshrrev_b32 v6, 2, v1")
    a("v_and_b32 v7, 3, v1")
    a(f"v_mul_u32_u24 v{vW}, 3584, v6")
    a(f"v_lshl_add_u32 v{vW}, v7, 4, v{vW}")
    a("s_lshl_b32 s24, s16, 11")
    a("s_add_u32 s24, s24, 65536")
    a(f"v_add_u32 v{vSt}, s24, v{vL16}")
    def traddr(mult):
        a("v_lshrrev_b32 v6, 5, v1")
        a(f"v_lshlrev_b32 v{vT}, {6 + (3 if mult == 8 else 2)}, v6")
        a("v_bfe_u32 v6, v1, 2, 2")
        a(f"v_lshl_add_u32 v{vT}, v6, 6, v{vT}")
        a("v_bfe_u32 v6, v1, 4, 1")
        a(f"v_lshl_add_u32 v{vT}, v6, 5, v{vT}")
        a("v_and_b32 v6, 3, v1")
        a(f"v_lshl_add_u32 v{vT}, v6, 3, v{vT}")
        a(f"v_add_u32 v{vT}, s24, v{vT}")
    traddr(8)
    a("s_lshl_b32 s25, s18, 16")
    a("s_lshl_b32 s26, s16, 13")
    a("s_add_u32 s25, s25, s26")
    if XN_OFF: a(f"s_add_u32 s25, s25, {XN_OFF}")
    a("s_mul_i32 s27, s17, 448")
    a("s_lshl_b32 s28, s16, 6")
    a("s_add_u32 s27, s27, s28")
    a("s_mul_i32 s28, s17, 229376")
    a("s_lshl_b32 s29, s16, 7")
    a("s_add_u32 s28, s28, s29")
    a("s_waitcnt lgkmcnt(0)")
    vq = Q(a, "vmcnt", 63); lq = Q(a, "lgkmcnt", 15)
    for half in range(2):
        a(f"s_add_u32 m0, s26, {half*4096}")
        a(f"s_add_u32 s29, s25, {half*4096}")
        for i in range(4):
            a(f"buffer_load_dwordx4 v{vL16}, s[{SWS}:{SWS+3}], s29 offen offset:{i*1024} lds")
    NG, ND = 32, 14
    a("s_cmp_eq_u32 s16, 7")
    a(f"s_cbranch_scc1 {pfx}_W7")
    vq.order = ["x"]*8
    def gload(s):
        r = RING + 8*(s % D)
        if s < NG:
            a(f"buffer_load_dwordx4 v[{r}:{r+3}], v{vW}, s[{SG}:{SG+3}], s27 offen"); vq.issue(s)
            a(f"buffer_load_dwordx4 v[{r+4}:{r+7}], v{vW}, s[{SU}:{SU+3}], s27 offen"); vq.issue(s)
            a("s_add_u32 s27, s27, 57344")
        else:
            a(f"buffer_load_dwordx4 v[{r}:{r+3}], v{vWd}, s[{SD}:{SD+3}], s28 offen"); vq.issue(s)
            a(f"buffer_load_dwordx4 v[{r+4}:{r+7}], v{vWd}, s[{SD}:{SD+3}], s28 offen offset:64"); vq.issue(s)
            a("s_add_u32 s28, s28, 16384")
    vWd, vTd = 6, 7
    def dsetup():
        a(f"v_lshrrev_b32 v{vWd}, 2, v1")
        a(f"v_lshlrev_b32 v{vWd}, 10, v{vWd}")
        a(f"v_and_b32 v{vTd}, 3, v1")
        a(f"v_lshl_add_u32 v{vWd}, v{vTd}, 4, v{vWd}")
        a(f"v_lshrrev_b32 v{vTd}, 5, v1")
        a(f"v_lshlrev_b32 v{vTd}, 8, v{vTd}")
        a(f"v_sub_u32 v{vTd}, v{vT}, v{vTd}")
    dsetup()
    def stage(s):
        r = RING + 8*(s % D); xb = XB + 8*(s % 2)
        vq.wait(s)
        a(f"ds_write_b128 v{vSt}, v[{r}:{r+3}]"); lq.issue(("w", s))
        a(f"ds_write_b128 v{vSt}, v[{r+4}:{r+7}] offset:1024"); lq.issue(("w", s))
        t, o2 = (vT, 256) if s < NG else (vTd, 512)
        for nt in range(2):
            a(f"ds_read_b64_tr_b16 v[{r+4*nt}:{r+4*nt+1}], v{t} offset:{nt*1024}"); lq.issue(("t", s))
            a(f"ds_read_b64_tr_b16 v[{r+4*nt+2}:{r+4*nt+3}], v{t} offset:{nt*1024+o2}"); lq.issue(("t", s))
    def xread(s):
        xb = XB + 8*(s % 2)
        for mt in range(2):
            o = mt*32768 + s*1024 if s < NG else mt*14336 + (s-NG)*1024
            a(f"ds_read_b128 v[{xb+4*mt}:{xb+4*mt+3}], v{vL16} offset:{o}"); lq.issue(("t", s))
    def mm(s):
        r = RING + 8*(s % D); xb = XB + 8*(s % 2)
        lq.wait(("t", s))
        first = s == 0 or s == NG
        for mt in range(2):
            for nt in range(2):
                acc = ACC + 16*(2*mt+nt)
                a(mfma(acc, r+4*nt, xb+4*mt, "0" if first else acc))
    for s in range(D-1): gload(s)
    stage(0)
    vq.wait("x") if False else None
    a("s_barrier")
    mark(a, 0)
    xread(0)
    for s in range(NG):
        gload(s + D - 1)
        if s + 1 < NG:
            stage(s + 1); xread(s + 1)
        else:
            stage(s + 1)
        mm(s)
    mark(a, 1)
    NL = hexf(-1.4426950408889634)
    a(f"s_mov_b32 s30, {NL}")
    for mt in range(2):
        g = ACC + 32*mt; u = g + 16
        for i in range(16): a(f"v_mul_f32 v{g+i}, s30, v{g+i}")
        for i in range(16): a(f"v_exp_f32 v{g+i}, v{g+i}")
        for i in range(16): a(f"v_add_f32 v{g+i}, 1.0, v{g+i}")
        for i in range(16): a(f"v_rcp_f32 v{g+i}, v{g+i}")
        for i in range(16): a(f"v_mul_f32 v{g+i}, v{g+i}, v{u+i}")
        for d in range(8): a(f"v_cvt_pk_bf16_f32 v{XB+8*mt+d}, v{g+2*d}, v{g+2*d+1}")
    a("s_lshl_b32 s31, s16, 11")
    a(f"v_add_u32 v{ACC}, s31, v{vL16}")
    lq.wait_all()
    a("s_barrier")
    for mt in range(2):
        for q in range(2):
            a(f"ds_write_b128 v{ACC}, v[{XB+8*mt+4*q}:{XB+8*mt+4*q+3}] offset:{mt*14336 + q*1024}")
    a("s_waitcnt lgkmcnt(0)"); lq.known_all()
    a("s_barrier")
    mark(a, 2)
    a(f"{pfx}_DPH:")
    state = (list(vq.order), vq.done)
    xread(NG)
    for s in range(NG, NG + ND):
        if s + D - 1 < NG + ND: gload(s + D - 1)
        if s + 1 < NG + ND:
            stage(s + 1); xread(s + 1)
        mm(s)
    mark(a, 3)
    a("s_lshl_b32 s30, s17, 6")
    a("s_lshl_b32 s31, s18, 1")
    a("s_add_u32 s30, s30, s31")
    a("s_lshl_b32 s30, s30, 4")
    a("s_lshl_b32 s31, s16, 1")
    a("s_add_u32 s30, s30, s31")
    a("s_lshl_b32 s30, s30, 11")
    a(f"s_add_u32 s30, s30, {PF_OFF}")
    a("s_add_u32 s31, s30, 32768")
    for mt in range(2):
        for nt in range(2):
            acc = ACC + 16*(2*mt+nt)
            o = RING + 8*(2*mt+nt)
            for d in range(8): a(f"v_cvt_pk_bf16_f32 v{o+d}, v{acc+2*d}, v{acc+2*d+1}")
            for q in range(2):
                a(f"buffer_store_dwordx4 v[{o+4*q}:{o+4*q+3}], v{vL16}, s[{SWS}:{SWS+3}], s{30+mt} offen offset:{nt*2048 + q*1024} sc1")
    a(f"s_branch {pfx}_END")
    a(f"{pfx}_W7:")
    dsetup()
    T0 = ACC
    a(f"v_lshrrev_b32 v{T0}, 2, v1")
    a(f"v_mul_u32_u24 v{T0}, 3584, v{T0}")
    a(f"v_and_b32 v{T0+1}, 3, v1")
    a(f"v_lshl_add_u32 v{T0}, v{T0+1}, 6, v{T0}")
    a("s_mul_i32 s30, s18, 57344")
    a("s_mul_i32 s31, s17, 448")
    a("s_add_u32 s30, s30, s31")
    for srdn in (SG, SU):
        a(f"buffer_load_dword v{T0+2}, v{T0}, s[{srdn}:{srdn+3}], s30 offen")
        a(f"buffer_load_dword v{T0+2}, v{T0}, s[{srdn}:{srdn+3}], s30 offen offset:256")
    a(f"v_lshlrev_b32 v{T0+1}, 6, v1")
    a("s_mul_i32 s30, s17, 229376")
    a("s_mul_i32 s31, s18, 7168")
    a("s_add_u32 s30, s30, s31")
    a(f"buffer_load_dword v{T0+2}, v{T0+1}, s[{SD}:{SD+3}], s30 offen")
    a("s_add_u32 s30, s30, 4096")
    a(f"buffer_load_dword v{T0+2}, v{T0+1}, s[{SD}:{SD+3}], s30 offen")
    a("s_waitcnt vmcnt(6)")
    a("s_barrier")
    vq2 = Q(a, "vmcnt", 63)
    save = (vq.order, vq.done, lq.order, lq.done)
    vq.order = []; vq.done = 0; lq.order = []; lq.done = 0
    for s in range(NG, NG + D - 1): gload(s)
    stage(NG)
    lq.wait_all()
    a("s_barrier")
    a("s_barrier")
    a(f"s_branch {pfx}_DPH")
    vq.order, vq.done, lq.order, lq.done = save
```

```python
from common import *
from ffn import PF_OFF

def emit_fin(a, pfx="O"):
    SWS, SW, SX, SO = 12, 4, 8, 20
    nks = 8
    srd(a, SWS, KA_WS, WS_BYTES)
    srd(a, SW, KA_WO, 512*512*2)
    srd(a, SX, KA_X, 2097152); srd(a, SO, KA_OUT, 2097152)
    a("v_and_b32 v1, 63, v0")
    a("v_lshrrev_b32 v2, 6, v0")
    a("v_readfirstlane_b32 s16, v2")
    a("s_and_b32 s19, s2, 7")
    a("s_lshr_b32 s24, s2, 3")
    a("s_lshl_b32 s19, s19, 2")
    a("s_and_b32 s25, s24, 3")
    a("s_add_u32 s17, s19, s25")
    a("s_lshr_b32 s18, s24, 2")
    a("s_and_b32 s26, s16, 1")
    a("s_lshr_b32 s27, s16, 1")
    vL16, vWo, vT = 2, 3, 4
    a(f"v_lshlrev_b32 v{vL16}, 4, v1")
    a("v_lshrrev_b32 v5, 2, v1")
    a(f"v_lshlrev_b32 v{vWo}, 10, v5")
    a("v_and_b32 v5, 3, v1")
    a(f"v_lshl_add_u32 v{vWo}, v5, 4, v{vWo}")
    a(f"s_mul_i32 s28, s27, {nks}")
    a("s_add_u32 s29, s28, s26")
    a("s_lshl_b32 s29, s29, 14")
    a("s_lshl_b32 s30, s18, 7")
    a("s_add_u32 s29, s29, s30")
    a("s_lshl_b32 s30, s27, 12")
    a("s_lshl_b32 s31, s26, 11")
    a("s_add_u32 s30, s30, s31")
    a("s_lshl_b32 s33, s17, 1")
    a("s_add_u32 s33, s33, s26")
    a("s_lshl_b32 s31, s33, 15")
    a("s_lshl_b32 s32, s28, 10")
    a("s_add_u32 s31, s31, s32")
    a(f"s_add_u32 s31, s31, {OF_OFF}")
    a("s_lshl_b32 s39, s27, 7")
    a("s_add_u32 s39, s39, s33")
    a("s_lshl_b32 s39, s39, 4")
    a("s_lshl_b32 s40, s18, 1")
    a("s_add_u32 s39, s39, s40")
    a("s_lshl_b32 s39, s39, 11")
    a(f"s_add_u32 s39, s39, {PF_OFF}")
    a(f"s_add_u32 s40, s39, {64*16*2048}")
    a("v_lshrrev_b32 v5, 5, v1")
    a("v_bfe_u32 v6, v1, 2, 2")
    a("v_lshl_add_u32 v5, v5, 2, v6")
    a(f"v_lshlrev_b32 v{vT}, 6, v5")
    a("v_bfe_u32 v6, v1, 4, 1")
    a(f"v_lshl_add_u32 v{vT}, v6, 5, v{vT}")
    a("v_and_b32 v6, 3, v1")
    a(f"v_lshl_add_u32 v{vT}, v6, 3, v{vT}")
    a("s_lshl_b32 s33, s27, 12")
    a(f"v_add_u32 v{vT}, s33, v{vT}")
    vF = 5
    a("v_lshrrev_b32 v6, 3, v1")
    a(f"v_lshlrev_b32 v{vF}, 10, v6")
    a("v_and_b32 v7, 7, v1")
    a(f"v_lshl_add_u32 v{vF}, v7, 4, v{vF}")
    a("s_lshl_b32 s34, s17, 16")
    a("s_lshl_b32 s35, s16, 13")
    a("s_add_u32 s34, s34, s35")
    a("s_lshl_b32 s35, s18, 7")
    a("s_add_u32 s34, s34, s35")
    a("s_waitcnt lgkmcnt(0)")
    NST = 4
    vq = Q(a, "vmcnt", 63); lq = Q(a, "lgkmcnt", 15)
    ACC = 16; HB = 48; PR = 80; FR = 112; XR = 12
    for f in range(2):
        for i in range(4):
            r = PR + 16*f + 4*i
            a(f"buffer_load_dwordx4 v[{r}:{r+3}], v{vL16}, s[{SWS}:{SWS+3}], s{39+f} offen offset:{i*1024}"); vq.issue(("p", f))
    def dma(st):
        for nt in range(2):
            a(f"s_add_u32 m0, s30, {st*16384 + nt*1024}")
            a(f"s_add_u32 s37, s29, {st*32768 + nt*64}")
            a(f"buffer_load_dwordx4 v{vWo}, s[{SW}:{SW+3}], s37 offen lds"); vq.issue(st)
        for kk in range(2):
            r = HB + 8*st + 4*kk
            o = (2*st+kk)*1024
            if o < 4096:
                a(f"buffer_load_dwordx4 v[{r}:{r+3}], v{vL16}, s[{SWS}:{SWS+3}], s31 offen offset:{o}"); vq.issue(st)
            else:
                a(f"buffer_load_dwordx4 v[{r}:{r+3}], v{vL16}, s[{SWS}:{SWS+3}], s38 offen offset:{o-4096}"); vq.issue(st)
    a("s_add_u32 s38, s31, 4096")
    for st in range(NST): dma(st)
    a(f"buffer_load_dwordx4 v[{XR}:{XR+3}], v{vF}, s[{SX}:{SX+3}], s34 offen"); vq.issue("x")
    vR = 8
    a("v_lshrrev_b32 v9, 2, v7")
    a(f"v_lshlrev_b32 v{vR}, 12, v9")
    a("v_and_b32 v9, 3, v7")
    a(f"v_lshl_add_u32 v{vR}, v9, 10, v{vR}")
    a(f"v_lshl_add_u32 v{vR}, v6, 4, v{vR}")
    a("s_lshr_b32 s35, s16, 2")
    a("s_lshl_b32 s35, s35, 13")
    a("s_and_b32 s36, s16, 3")
    a("s_lshl_b32 s36, s36, 7")
    a("s_add_u32 s35, s35, s36")
    a(f"v_add_u32 v{vR}, s35, v{vR}")
    vWr = 9
    a("s_lshl_b32 s35, s27, 14")
    a("s_lshl_b32 s36, s26, 13")
    a("s_add_u32 s35, s35, s36")
    a(f"v_add_u32 v{vWr}, s35, v{vL16}")
    mark(a, 0)
    BS = ACC
    vq.wait(("p", 0))
    for i in range(4):
        for d in range(4):
            r = PR + 4*i + d
            a(f"v_lshlrev_b32 v{BS+8*i+2*d}, 16, v{r}")
            a(f"v_and_b32 v{BS+8*i+2*d+1}, 0xffff0000, v{r}")
    vq.wait(("p", 1))
    for i in range(4):
        for d in range(4):
            r = PR + 16 + 4*i + d
            a(f"v_lshlrev_b32 v6, 16, v{r}")
            a(f"v_and_b32 v7, 0xffff0000, v{r}")
            a(f"v_add_f32 v{BS+8*i+2*d}, v{BS+8*i+2*d}, v6")
            a(f"v_add_f32 v{BS+8*i+2*d+1}, v{BS+8*i+2*d+1}, v7")
    mark(a, 1)
    def reads(st, kk):
        f = FR + 8*((2*st+kk) % 2)
        for nt in range(2):
            o = st*16384 + kk*2048 + nt*1024
            a(f"ds_read_b64_tr_b16 v[{f+4*nt}:{f+4*nt+1}], v{vT} offset:{o}"); lq.issue((st, kk))
            a(f"ds_read_b64_tr_b16 v[{f+4*nt+2}:{f+4*nt+3}], v{vT} offset:{o+512}"); lq.issue((st, kk))
    def mm(st, kk):
        f = FR + 8*((2*st+kk) % 2)
        hb = HB + 8*st + 4*kk
        lq.wait((st, kk))
        for nt in range(2):
            acc = ACC + 16*nt
            a(mfma(acc, f+4*nt, hb, acc))
    for st in range(NST):
        vq.wait(st)
        a("s_barrier")
        reads(st, 0)
        if st > 0: mm(st-1, 1)
        reads(st, 1)
        mm(st, 0)
    mm(NST-1, 1)
    mark(a, 2)
    a("s_barrier")
    for nt in range(2):
        for q in range(4):
            r = ACC + 16*nt + 4*q
            a(f"ds_write_b128 v{vWr}, v[{r}:{r+3}] offset:{nt*4096 + q*1024}")
    a("s_waitcnt lgkmcnt(0)")
    a("s_barrier")
    RS = 48
    for ks in range(4):
        for h in range(2):
            r = RS + 8*ks + 4*h
            a(f"ds_read_b128 v[{r}:{r+3}], v{vR} offset:{ks*16384 + h*512}")
    a("s_waitcnt lgkmcnt(4)")
    for i in range(8): a(f"v_add_f32 v{RS+i}, v{RS+i}, v{RS+8+i}")
    a("s_waitcnt lgkmcnt(0)")
    for i in range(8): a(f"v_add_f32 v{RS+16+i}, v{RS+16+i}, v{RS+24+i}")
    for i in range(8): a(f"v_add_f32 v{RS+i}, v{RS+i}, v{RS+16+i}")
    a("s_waitcnt vmcnt(0)")
    U = RS + 16
    for d in range(4):
        a(f"v_lshlrev_b32 v{U+2*d}, 16, v{XR+d}")
        a(f"v_and_b32 v{U+2*d+1}, 0xffff0000, v{XR+d}")
    for i in range(8): a(f"v_add_f32 v{U+i}, v{U+i}, v{RS+i}")
    for d in range(4): a(f"v_cvt_pk_bf16_f32 v{RS+8+d}, v{U+2*d}, v{U+2*d+1}")
    a(f"buffer_store_dwordx4 v[{RS+8}:{RS+11}], v{vF}, s[{SO}:{SO+3}], s34 offen")

def gen_fin(label):
    k = Kernel(label, 256, 512, 65536, 128)
    a = k.a
    a("s_cmp_ge_u32 s2, 256")
    a("s_cbranch_scc1 O_END")
    emit_fin(a)
    a.label("O_END")
    return k
```

```python
import sys
from common import *
from k1 import gen_k1
from att import emit_att
from ffn import emit_ffn
from fin import gen_fin
def gen_k2(label, attprio=2, ffnprio=0):
    k = Kernel(label, 512, 512, 81920, 128)
    a = k.a
    a("s_cmp_ge_u32 s2, 512")
    a("s_cbranch_scc1 K2_END")
    a("s_cmp_ge_u32 s2, 256")
    a("s_cbranch_scc1 K2_FFN")
    if attprio: a(f"s_setprio {attprio}")
    emit_att(a, pfx="AT")
    a.label("AT_END")
    a("s_branch K2_END")
    a.label("K2_FFN")
    a("s_sub_u32 s2, s2, 256")
    emit_ffn(a, pfx="F", prio=ffnprio)
    a.label("F_END")
    a.label("K2_END")
    return k
def main(out, opts):
    if 'ts' in opts: TS_ENABLE[0] = True
    ap = 2; fp = 0
    for o in opts:
        if o.startswith("ap="): ap = int(o[3:])
        if o.startswith("fp="): fp = int(o[3:])
    ks = [gen_k1(NAME + "_kernel"), gen_k2("mid_kernel", ap, fp), gen_fin("fin_kernel")]
    open(out, "w").write(build_file(ks))
if __name__ == "__main__":
    main(sys.argv[1], sys.argv[2:])
```

```python
from common import *
PF_OFF = 0x1400000
ATT_OFFSET = 96.0

L_X, L_AREA, L_QO, L_MG, L_FL, LDS_TOTAL = 0, 65536, 131072, 139264, 159744, 163840
SQ, SG, SU, SX, SD, SO, SWS, SDBG = 4, 8, 12, 24, 32, 36, 40, 44
sAREA = 28
vLn, vW8, vWm, vT0, vTm, vX0, vL16, vVo, vTx = 1, 10, 11, 12, 14, 16, 20, 21, 22
LNX, LNT = 64, 96
ACC, FR, XB = 128, 192, 208
UNIT_WAVE = [3, 4, 5, 6, 7, 0, 1]

def ids(a):
    a("v_and_b32 v1, 63, v0")
    a("v_lshrrev_b32 v2, 6, v0")
    a("v_readfirstlane_b32 s16, v2")
    a("s_and_b32 s20, s2, 7")
    a("s_lshr_b32 s21, s2, 3")
    a("s_and_b32 s19, s21, 7")
    a("s_lshr_b32 s17, s20, 1")
    a("s_lshl_b32 s17, s17, 3")
    a("s_add_u32 s17, s17, s19")
    a("s_and_b32 s18, s20, 1")
    a("s_lshl_b32 s18, s18, 2")
    a("s_lshr_b32 s21, s21, 3")
    a("s_add_u32 s18, s18, s21")

def lane_off8(a, dst, rs):
    a(f"v_lshrrev_b32 v2, 3, v{vLn}")
    a(f"v_mul_u32_u24 v{dst}, {rs}, v2")
    a(f"v_bfe_u32 v2, v{vLn}, 4, 1")
    a(f"v_lshlrev_b32 v2, 2, v2")
    a(f"v_and_b32 v3, 7, v{vLn}")
    a(f"v_xor_b32 v2, v2, v3")
    a(f"v_lshl_add_u32 v{dst}, v2, 4, v{dst}")

def tr_addr8(a, dst, hshift, sbase):
    a(f"v_lshrrev_b32 v2, 5, v{vLn}")
    a(f"v_lshlrev_b32 v{dst}, {hshift}, v2")
    a(f"v_bfe_u32 v2, v{vLn}, 2, 2")
    a(f"v_lshl_add_u32 v{dst}, v2, 7, v{dst}")
    a(f"v_bfe_u32 v2, v{vLn}, 3, 1")
    a(f"v_lshl_add_u32 v{dst}, v2, 6, v{dst}")
    a(f"v_bfe_u32 v2, v{vLn}, 4, 1")
    a(f"v_lshl_add_u32 v{dst}, v2, 5, v{dst}")
    a(f"v_and_b32 v2, 3, v{vLn}")
    a(f"v_lshl_add_u32 v{dst}, v2, 3, v{dst}")
    a(f"v_add_u32 v{dst}, {sbase}, v{dst}")
    a(f"v_xor_b32 v{dst+1}, 64, v{dst}")

def ln_setup(a):
    r, c = LNT+2, LNT+3
    a(f"v_lshrrev_b32 v{r}, 3, v{vLn}")
    a(f"v_and_b32 v{c}, 7, v{vLn}")
    a(f"v_lshlrev_b32 v{LNT}, 10, v{r}")
    a(f"v_lshl_add_u32 v{LNT}, v{c}, 4, v{LNT}")
    a("s_lshl_b32 s23, s17, 16")
    a("s_lshl_b32 s22, s16, 13")
    a("s_add_u32 s23, s23, s22")
    t = LNT+4
    a(f"v_lshrrev_b32 v{t}, 1, v{c}")
    a(f"v_lshlrev_b32 v{t}, 10, v{t}")
    a(f"v_and_b32 v{t+1}, 1, v{c}")
    a(f"v_lshl_add_u32 v{t}, v{t+1}, 9, v{t}")
    a("s_and_b32 s21, s16, 3")
    a("s_lshl_b32 s21, s21, 7")
    a("s_lshr_b32 s22, s16, 2")
    a("s_lshl_b32 s22, s22, 15")
    a("s_add_u32 s22, s22, s21")
    a(f"v_xor_b32 v{t+1}, v{r}, v{c}")
    a(f"v_lshl_add_u32 v{LNT+1}, v{t+1}, 4, v{t}")
    a(f"v_add_u32 v{LNT+1}, s22, v{LNT+1}")
    a(f"v_lshrrev_b32 v{t}, 5, v{vLn}")
    for q in range(4):
        a(f"v_add_u32 v{t+1}, {2*q}, v{t}")
        a(f"v_xor_b32 v{t+1}, v{t+1}, v{vLn}")
        a(f"v_lshlrev_b32 v{vX0+q}, 4, v{t+1}")

def ln_loads(a, vq):
    for i in range(8):
        a(f"buffer_load_dwordx4 v[{LNX+4*i}:{LNX+4*i+3}], v{LNT}, s[{SX}:{SX+3}], s23 offen offset:{128*i}")
        vq.issue(("x", i))

LNM = [False]
def ln_compute(a, vq, lq):
    X = LNX
    if LNM[0]: mark(a, 8)
    ONES, A1, B1, A2, B2 = LNT+8, LNT+9, LNT+10, LNT+11, LNT+12
    a(f"v_mov_b32 v{ONES}, 0x3f803f80")
    for r in (A1, B1, A2, B2): a(f"v_mov_b32 v{r}, 0")
    for i in range(8):
        vq.wait(("x", i))
        if LNM[0] and i == 0: mark(a, 9)
        for d in range(4):
            r = X + 4*i + d
            a(f"v_dot2c_f32_bf16 v{A1 if d%2==0 else B1}, v{r}, v{ONES}")
            a(f"v_dot2c_f32_bf16 v{A2 if d%2==0 else B2}, v{r}, v{r}")
    a(f"v_add_f32 v{A1}, v{A1}, v{B1}")
    a(f"v_add_f32 v{A2}, v{A2}, v{B2}")
    for mod in ("quad_perm:[1,0,3,2]", "quad_perm:[2,3,0,1]", "row_half_mirror"):
        a(f"v_add_f32_dpp v{A1}, v{A1}, v{A1} {mod} row_mask:0xf bank_mask:0xf")
        a(f"v_add_f32_dpp v{A2}, v{A2}, v{A2} {mod} row_mask:0xf bank_mask:0xf")
    a(f"v_mul_f32 v{A1}, 0x3b000000, v{A1}")
    a(f"v_mul_f32 v{A2}, 0x3b000000, v{A2}")
    a(f"v_fma_f32 v{A2}, -v{A1}, v{A1}, v{A2}")
    a(f"v_max_f32 v{A2}, 0, v{A2}")
    a(f"v_add_f32 v{A2}, 0x3727c5ac, v{A2}")
    if LNM[0]: mark(a, 10)
    SC, BI = LNT+14, LNT+13
    a(f"v_rsq_f32 v{SC}, v{A2}")
    a(f"v_mul_f32 v{BI}, v{A1}, v{SC}")
    a(f"v_sub_f32 v{BI}, 0, v{BI}")
    T = LNT+16
    for kx in range(32):
        r = X + kx; t = T + 2*(kx % 4)
        a(f"v_lshlrev_b32 v{t}, 16, v{r}")
        a(f"v_and_b32 v{t+1}, 0xffff0000, v{r}")
        a(f"v_fma_f32 v{t}, v{t}, v{SC}, v{BI}")
        a(f"v_fma_f32 v{t+1}, v{t+1}, v{SC}, v{BI}")
        a(f"v_cvt_pk_bf16_f32 v{r}, v{t}, v{t+1}")
        if kx % 4 == 3:
            i = kx // 4
            a(f"ds_write_b128 v{LNT+1}, v[{X+4*i}:{X+4*i+3}] offset:{i*4096}")
            lq.issue(("xw", i))

RING = 4
PD = RING - 1
def dma_step(a, vq, kind, slot, tag):
    sl = slot * 2048
    if kind in "WV":
        for i in range(2):
            a(f"s_add_u32 m0, s{sAREA}, {sl + 1024*i}")
            a(f"buffer_load_dwordx4 v{vW8}, s[{SQ}:{SQ+3}], s29 offen lds"); vq.issue(tag)
            a(f"s_add_u32 s29, s29, {8*3072}")
    else:
        a(f"s_add_u32 m0, s{sAREA}, {sl}")
        a(f"buffer_load_dwordx4 v{vWm}, s[{SG}:{SG+3}], s30 offen lds"); vq.issue(tag)
        a(f"s_add_u32 m0, s{sAREA}, {sl + 1024}")
        a(f"buffer_load_dwordx4 v{vWm}, s[{SU}:{SU+3}], s30 offen lds"); vq.issue(tag)
        a(f"s_add_u32 s30, s30, {16*3584}")

def gemm_stream(a, vq, lq, kinds, hook_end=None, hook_step=None):
    N = 32 * len(kinds)
    kind = lambda g: kinds[g // 32]
    def trr(g):
        sl = (g % RING) * 2048
        f = FR + 8*(g % 2)
        for nt in range(2):
            if kind(g) in "WV":
                a(f"ds_read_b64_tr_b16 v[{f+4*nt}:{f+4*nt+1}], v{vT0+nt} offset:{sl}"); lq.issue(("f", g))
                a(f"ds_read_b64_tr_b16 v[{f+4*nt+2}:{f+4*nt+3}], v{vT0+nt} offset:{sl+512}"); lq.issue(("f", g))
            else:
                a(f"ds_read_b64_tr_b16 v[{f+4*nt}:{f+4*nt+1}], v{vTm} offset:{sl+nt*1024}"); lq.issue(("f", g))
                a(f"ds_read_b64_tr_b16 v[{f+4*nt+2}:{f+4*nt+3}], v{vTm} offset:{sl+nt*1024+256}"); lq.issue(("f", g))
    def xread(g):
        s = g % 32
        for mt in range(2):
            xb = XB + 8*(g % 2) + 4*mt
            a(f"ds_read_b128 v[{xb}:{xb+3}], v{vX0 + s%4} offset:{mt*32768 + s*1024}"); lq.issue(("f", g))
    def mm(g, nt, mt):
        f = FR + 8*(g % 2) + 4*nt; xb = XB + 8*(g % 2) + 4*mt
        acc = ACC + 16*(2*mt+nt)
        c = "0" if g % 32 == 0 else acc
        a(mfma(acc, xb, f, c) if kind(g) == "V" else mfma(acc, f, xb, c))
    vq.wait(("w", 0))
    trr(0); xread(0)
    for g in range(N):
        nx = g + 1 < N
        lq.wait(("f", g))
        mm(g, 0, 0)
        if nx:
            vq.wait(("w", g+1)); trr(g+1)
        mm(g, 1, 0)
        if nx: xread(g+1)
        mm(g, 0, 1)
        if g + PD < N: dma_step(a, vq, kind(g+PD), (g+PD) % RING, ("w", g+PD))
        mm(g, 1, 1)
        if hook_step: hook_step(g)
        if g % 32 == 31 and hook_end: hook_end(g // 32)

def glu_epilogue(a, lq):
    a(f"s_mov_b32 s31, {hexf(-1.4426950408889634)}")
    H = XB
    for mt in range(2):
        g = ACC + 32*mt; u = g + 16
        for i in range(16): a(f"v_mul_f32 v{g+i}, s31, v{g+i}")
        for i in range(16): a(f"v_exp_f32 v{g+i}, v{g+i}")
        for i in range(16): a(f"v_add_f32 v{g+i}, 1.0, v{g+i}")
        for i in range(16): a(f"v_rcp_f32 v{g+i}, v{g+i}")
        for i in range(16): a(f"v_mul_f32 v{g+i}, v{g+i}, v{u+i}")
        for d in range(8): a(f"v_cvt_pk_bf16_f32 v{H+8*mt+d}, v{g+2*d}, v{g+2*d+1}")
    a(f"v_add_u32 v2, s{sAREA}, v{vL16}")
    for mt in range(2):
        for q in range(2):
            a(f"ds_write_b128 v2, v[{H+8*mt+4*q}:{H+8*mt+4*q+3}] offset:{mt*2048 + q*1024}"); lq.issue("hw")

def publish(a, lq, pfx):
    a("s_waitcnt vmcnt(0)")
    a("s_mov_b64 exec, 1")
    a(f"v_mov_b32 v2, {L_FL}")
    a("v_mov_b32 v3, 1")
    a("ds_add_rtn_u32 v4, v2, v3")
    a("s_waitcnt lgkmcnt(0)"); lq.known_all()
    a("v_readfirstlane_b32 s46, v4")
    a("s_cmp_eq_u32 s46, 1")
    a(f"s_cbranch_scc0 {pfx}_NOPUB")
    a("s_lshl_b32 s46, s18, 5")
    a("v_mov_b32 v2, s46")
    a(f"global_atomic_add v2, v3, s[{SDBG}:{SDBG+1}]")
    a.label(f"{pfx}_NOPUB")
    a("s_mov_b64 exec, -1")

def emit_z(a, dbg=False, stagger=True):
    sc1 = " sc1"
    srd(a, SX, KA_X, 2097152); srd(a, SQ, KA_WQKV, 512*1536*2)
    srd(a, SG, KA_WG, 512*1792*2); srd(a, SU, KA_WU, 512*1792*2)
    srd(a, SD, KA_WD, 1792*512*2); srd(a, SO, KA_WO, 512*512*2); srd(a, SWS, KA_WS, WS_BYTES)
    a(f"s_load_dwordx2 s[{SDBG}:{SDBG+1}], s[0:1], {KA_DBG}")
    ids(a)
    ln_setup(a)
    a(f"v_lshlrev_b32 v{vL16}, 4, v{vLn}")
    a("s_lshl_b32 s28, s16, 13")
    a(f"s_add_u32 s{sAREA}, s28, {L_AREA}")
    lane_off8(a, vW8, 3072)
    a(f"v_lshrrev_b32 v2, 2, v{vLn}")
    a(f"v_mul_u32_u24 v{vWm}, 3584, v2")
    a(f"v_and_b32 v2, 3, v{vLn}")
    a(f"v_lshl_add_u32 v{vWm}, v2, 4, v{vWm}")
    tr_addr8(a, vT0, 10, f"s{sAREA}")
    a(f"v_lshrrev_b32 v2, 5, v{vLn}")
    a(f"v_lshlrev_b32 v{vTm}, 9, v2")
    a(f"v_bfe_u32 v2, v{vLn}, 2, 2")
    a(f"v_lshl_add_u32 v{vTm}, v2, 6, v{vTm}")
    a(f"v_bfe_u32 v2, v{vLn}, 4, 1")
    a(f"v_lshl_add_u32 v{vTm}, v2, 5, v{vTm}")
    a(f"v_and_b32 v2, 3, v{vLn}")
    a(f"v_lshl_add_u32 v{vTm}, v2, 3, v{vTm}")
    a(f"v_add_u32 v{vTm}, s{sAREA}, v{vTm}")
    a("s_add_u32 s21, s16, 1")
    a("s_cmp_eq_u32 s21, 3")
    a("s_cselect_b32 s21, 0, s21")
    a("s_lshl_b32 s29, s21, 10")
    a("s_lshl_b32 s21, s18, 7")
    a("s_add_u32 s29, s29, s21")
    a("s_add_u32 s21, s16, 5")
    a("s_sub_u32 s22, s16, 3")
    a("s_cmp_lt_u32 s16, 3")
    a("s_cselect_b32 s21, s21, s22")
    a("s_lshl_b32 s21, s21, 6")
    a("s_mul_i32 s30, s18, 448")
    a("s_add_u32 s30, s30, s21")
    T0 = LNT + 24
    a(f"v_lshrrev_b32 v2, 2, v{vLn}")
    a(f"v_and_b32 v3, 3, v{vLn}")
    a(f"v_mul_u32_u24 v{T0}, 3584, v2")
    a(f"v_lshl_add_u32 v{T0}, v3, 7, v{T0}")
    a(f"v_mul_u32_u24 v{T0+1}, 3072, v2")
    a(f"v_lshl_add_u32 v{T0+1}, v3, 10, v{T0+1}")
    a("s_lshl_b32 s21, s19, 6")
    a("s_lshl_b32 s22, s16, 3")
    a("s_add_u32 s21, s21, s22")
    a("s_mul_i32 s47, s21, 3584")
    a("s_mul_i32 s22, s18, 448")
    a("s_add_u32 s47, s47, s22")
    a("s_mul_i32 s48, s21, 3072")
    a("s_lshl_b32 s22, s18, 7")
    a("s_add_u32 s48, s48, s22")
    a("v_mov_b32 v2, 0")
    a(f"v_lshlrev_b32 v3, 2, v{vLn}")
    a(f"v_add_u32 v3, {L_FL}, v3")
    a("ds_write_b32 v3, v2")
    a("s_waitcnt lgkmcnt(0)")
    mark(a, 0)
    vq = Q(a, "vmcnt", 63); lq = Q(a, "lgkmcnt", 15)
    ln_loads(a, vq)
    a("s_cmp_lt_u32 s16, 3")
    a("s_cbranch_scc0 Z_PRIMEM")
    vq2 = Q(Asm(), "vmcnt", 63)
    for g in range(PD): dma_step(a, vq2, "W", g, ("w", g))
    a("s_branch Z_PRIMED")
    a.label("Z_PRIMEM")
    for g in range(PD): dma_step(a, vq, "M", g, ("w", g))
    a.label("Z_PRIMED")
    a("s_mov_b64 exec, 0xffffffff")
    a(f"buffer_load_dword v{T0+2}, v{T0}, s[{SG}:{SG+3}], s47 offen"); vq.issue("t")
    a(f"buffer_load_dword v{T0+3}, v{T0}, s[{SU}:{SU+3}], s47 offen"); vq.issue("t")
    a("s_mov_b64 exec, 0x77777777")
    a(f"buffer_load_dword v{T0+4}, v{T0+1}, s[{SQ}:{SQ+3}], s48 offen"); vq.issue("t")
    a("s_mov_b64 exec, -1")
    ln_compute(a, vq, lq)
    lq.wait_all()
    if LNM[0]: mark(a, 11)
    a("s_barrier")
    mark(a, 1)
    base = (list(vq.order), vq.done)
    def reset():
        vq.order, vq.done = list(base[0]), base[1]
        lq.order, lq.done = [], 0
    a("s_cmp_ge_u32 s16, 3")
    a("s_cbranch_scc1 Z_M")
    a("s_cmp_eq_u32 s16, 1")
    a("s_cbranch_scc1 Z_V")
    a("s_cmp_eq_u32 s16, 2")
    a("s_cbranch_scc1 Z_Q")
    TMP = 224
    def k_epilogue():
        a("s_lshl_b32 s46, s18, 18")
        a("s_lshl_b32 s47, s17, 11")
        a("s_add_u32 s46, s46, s47")
        a(f"s_add_u32 s46, s46, {KF_OFF}")
        for nt in range(2):
            for hh in range(2):
                for mt in range(2):
                    acc = ACC + 16*(2*mt+nt) + 8*hh
                    rr = TMP + 4*((2*hh+mt) % 4) + 16*nt
                    for d in range(4): a(f"v_cvt_pk_bf16_f32 v{rr+d}, v{acc+2*d}, v{acc+2*d+1}")
                    a(f"buffer_store_dwordx4 v[{rr}:{rr+3}], v{vL16}, s[{SWS}:{SWS+3}], s46 offen offset:{mt*1024}{sc1}"); vq.issue("st")
                a("s_add_u32 s46, s46, 65536")
    def v_epilogue():
        a("s_lshl_b32 s46, s18, 18")
        a("s_lshl_b32 s47, s17, 11")
        a("s_add_u32 s46, s46, s47")
        a(f"s_add_u32 s46, s46, {VF_OFF}")
        a(f"v_bfe_u32 v2, v{vLn}, 4, 1")
        a(f"v_lshlrev_b32 v3, 16, v2")
        a(f"v_lshrrev_b32 v2, 5, v{vLn}")
        a(f"v_lshl_add_u32 v3, v2, 8, v3")
        a(f"v_and_b32 v2, 15, v{vLn}")
        a(f"v_lshl_add_u32 v5, v2, 4, v3")
        for nt in range(2):
            for mt in range(2):
                for g in range(2):
                    acc = ACC + 16*(2*mt+nt) + 8*g
                    rr = TMP + 4*((2*mt+g) % 4) + 16*nt
                    for d in range(4): a(f"v_cvt_pk_bf16_f32 v{rr+d}, v{acc+2*d}, v{acc+2*d+1}")
                    a(f"buffer_store_dwordx4 v[{rr}:{rr+3}], v5, s[{SWS}:{SWS+3}], s46 offen offset:{mt*1024+g*512}{sc1}"); vq.issue("st")
            a("s_add_u32 s46, s46, 131072")
    for kindc, lab, epi in (("W", "Z_K", k_epilogue), ("V", "Z_V", v_epilogue)):
        a.label(lab)
        reset()
        a("s_setprio 3")
        def hook_end(ui, epi=epi, lab=lab):
            if ui == 0:
                if not LNM[0]: mark(a, 8)
                epi()
                if not LNM[0]: mark(a, 9)
                a("s_setprio 0")
            else:
                glu_epilogue(a, lq)
        def hook_step(g, lab=lab):
            if g == 33:
                if not LNM[0]: mark(a, 10)
                publish(a, lq, lab); vq.known_all()
                if not LNM[0]: mark(a, 11)
        gemm_stream(a, vq, lq, [kindc, "M"], hook_end, hook_step)
        a("s_branch Z_P1DONE")
    a.label("Z_Q")
    reset()
    a("s_setprio 2")
    def q_end(ui):
        a("s_mov_b32 s31, 0x3eb8aa3b")
        a(f"v_add_u32 v2, {L_QO}, v{vL16}")
        for nt in range(2):
            for hh in range(2):
                for mt in range(2):
                    acc = ACC + 16*(2*mt+nt) + 8*hh
                    rr = TMP + 4*((2*hh+mt) % 4) + 16*nt
                    for d in range(8): a(f"v_mul_f32 v{acc+d}, s31, v{acc+d}")
                    for d in range(4): a(f"v_cvt_pk_bf16_f32 v{rr+d}, v{acc+2*d}, v{acc+2*d+1}")
                    a(f"ds_write_b128 v2, v[{rr}:{rr+3}] offset:{((2*nt+hh)*2+mt)*1024}"); lq.issue("qw")
    gemm_stream(a, vq, lq, ["W"], q_end)
    a("s_setprio 0")
    mark(a, 2)
    a("s_lshl_b32 s46, s18, 5")
    a("v_mov_b32 v2, s46")
    a("s_mov_b32 s47, 0")
    a.label("Z_POLL")
    a(f"global_load_dword v3, v2, s[{SDBG}:{SDBG+1}] sc1")
    a("s_waitcnt vmcnt(0)")
    a("v_readfirstlane_b32 s46, v3")
    a("s_cmp_ge_u32 s46, 32")
    a("s_cbranch_scc1 Z_POLLED")
    a("s_sleep 4")
    a("s_add_u32 s47, s47, 1")
    a("s_cmp_lt_u32 s47, 0x40000")
    a("s_cbranch_scc1 Z_POLL")
    a.label("Z_POLLED")
    a("s_waitcnt lgkmcnt(0)")
    a(f"v_mov_b32 v2, {L_FL + 4}")
    a("v_mov_b32 v3, 1")
    a("ds_write_b32 v2, v3")
    a("s_branch Z_ATT")
    a.label("Z_M")
    reset()
    gemm_stream(a, vq, lq, ["M"], lambda ui: glu_epilogue(a, lq))
    a.label("Z_P1DONE")
    mark(a, 2)
    a.label("Z_ATT")
    vq.order, vq.done, lq.order, lq.done = [], 0, [], 0
    lane_off8(a, vW8, 1024)
    tr_addr8(a, vT0, 9, f"s{sAREA}")
    a(f"v_subrev_u32 v{vTx}, {L_AREA}, v{vT0}")
    a(f"v_subrev_u32 v{vTx+1}, {L_AREA}, v{vT0+1}")
    a("s_mul_i32 s29, s18, 229376")
    a("s_lshl_b32 s30, s16, 7")
    a("s_add_u32 s29, s29, s30")
    a("s_lshl_b32 s31, s18, 16")
    a("s_add_u32 s30, s31, s30")
    a(f"s_sub_u32 s49, s{sAREA}, {L_AREA}")
    NK = 18
    DSLOT = [("o", 4096), ("o", 6144), ("x", 0), ("x", 2048), ("x", 4096), ("x", 6144)]
    NS = len(DSLOT)
    def ddma(t):
        reg, off = DSLOT[t % NS]
        b = sAREA if reg == "o" else 49
        for i in range(2):
            a(f"s_add_u32 m0, s{b}, {off + 1024*i}")
            if t < 14:
                a(f"buffer_load_dwordx4 v{vW8}, s[{SD}:{SD+3}], s29 offen lds"); vq.issue(("d", t))
                a(f"s_add_u32 s29, s29, 8192")
            else:
                a(f"buffer_load_dwordx4 v{vW8}, s[{SO}:{SO+3}], s30 offen lds"); vq.issue(("d", t))
                a(f"s_add_u32 s30, s30, 8192")
    a("s_waitcnt lgkmcnt(0)")
    ddma(0); ddma(1)
    a(f"v_mov_b32 v2, {L_FL + 4}")
    a.label("Z_SPIN")
    a("ds_read_b32 v3, v2")
    a("s_waitcnt lgkmcnt(0)")
    a("v_readfirstlane_b32 s46, v3")
    a("s_cmp_eq_u32 s46, 1")
    a("s_cbranch_scc1 Z_GO")
    a("s_sleep 1")
    a("s_branch Z_SPIN")
    a.label("Z_GO")
    mark(a, 3)
    emit_att(a, vq, lq, dbg)
    mark(a, 6)
    vq.order, vq.done, lq.order, lq.done = [("d", 0), ("d", 0), ("d", 1), ("d", 1)], 4, [], 0
    for t in range(2, NS - 1): ddma(t)
    def dtr(t):
        reg, off = DSLOT[t % NS]
        v = vT0 if reg == "o" else vTx
        f = FR + 8*(t % 2)
        for nt in range(2):
            a(f"ds_read_b64_tr_b16 v[{f+4*nt}:{f+4*nt+1}], v{v+nt} offset:{off}"); lq.issue(("f", t))
            a(f"ds_read_b64_tr_b16 v[{f+4*nt+2}:{f+4*nt+3}], v{v+nt} offset:{off+1024}"); lq.issue(("f", t))
    vH = 2
    def hread(t):
        for mt in range(2):
            xb = XB + 8*(t % 2) + 4*mt
            if t < 14:
                u, q = t // 2, t % 2
                addr = L_AREA + UNIT_WAVE[u]*8192 + mt*2048 + q*1024
                a(f"ds_read_b128 v[{xb}:{xb+3}], v{vH} offset:{addr - L_AREA}")
            else:
                addr = L_QO + (mt*4 + t - 14)*1024
                a(f"ds_read_b128 v[{xb}:{xb+3}], v{vH+1} offset:{addr - L_QO}")
            lq.issue(("f", t))
    a(f"v_add_u32 v{vH}, {L_AREA}, v{vL16}")
    a(f"v_add_u32 v{vH+1}, {L_QO}, v{vL16}")
    def dmm(t, nt, mt):
        f = FR + 8*(t % 2) + 4*nt; xb = XB + 8*(t % 2) + 4*mt
        acc = ACC + 16*(2*mt+nt)
        a(mfma(acc, f, xb, "0" if t == 0 else acc))
    dtr(0); hread(0)
    for t in range(NK):
        nx = t + 1 < NK
        lq.wait(("f", t))
        dmm(t, 0, 0)
        if nx:
            vq.wait(("d", t+1)); dtr(t+1)
        dmm(t, 1, 0)
        if nx:
            if t + 1 == 14: a("s_barrier")
            hread(t+1)
        dmm(t, 0, 1)
        if t + NS - 1 < NK: ddma(t + NS - 1)
        dmm(t, 1, 1)
    mark(a, 7)
    a("s_lshl_b32 s46, s18, 6")
    a("s_lshl_b32 s47, s17, 1")
    a("s_add_u32 s46, s46, s47")
    a("s_lshl_b32 s46, s46, 4")
    a("s_lshl_b32 s47, s16, 1")
    a("s_add_u32 s46, s46, s47")
    a("s_lshl_b32 s46, s46, 11")
    a(f"s_add_u32 s46, s46, {PF_OFF}")
    a("s_add_u32 s47, s46, 32768")
    for mt in range(2):
        for nt in range(2):
            acc = ACC + 16*(2*mt+nt)
            o = 64 + 8*(2*mt+nt)
            for d in range(8): a(f"v_cvt_pk_bf16_f32 v{o+d}, v{acc+2*d}, v{acc+2*d+1}")
            for q in range(2):
                a(f"buffer_store_dwordx4 v[{o+4*q}:{o+4*q+3}], v{vL16}, s[{SWS}:{SWS+3}], s{46+mt} offen offset:{nt*2048 + q*1024} sc1")

def emit_att(a, vq, lq, dbg):
    pfx = "AT"
    Qf = [24, 28]; NEG = [32, 48]; S = [64, 80]; O = [96, 112]; P = 128; KR = 136; VR = 152; T = 184
    a("s_and_b32 s19, s16, 3")
    a("s_lshr_b32 s20, s16, 2")
    a("s_lshl_b32 s21, s18, 2")
    a("s_add_u32 s21, s21, s19")
    a("s_lshl_b32 s21, s21, 16")
    a(f"s_add_u32 s21, s21, {KF_OFF}")
    a("s_lshl_b32 s22, s20, 15")
    a("s_add_u32 s22, s22, s21")
    a("s_and_b32 s23, s17, 7")
    a("s_lshl_b32 s23, s23, 12")
    a(f"v_lshrrev_b32 v2, 5, v{vLn}")
    a(f"v_lshlrev_b32 v{vVo}, 8, v2")
    a(f"v_and_b32 v2, 15, v{vLn}")
    a(f"v_lshl_add_u32 v{vVo}, v2, 4, v{vVo}")
    a("s_mov_b32 s76, 0x0000ffff")
    a("s_mov_b32 s77, 0x0000ffff")
    a("s_lshl_b32 s46, s19, 11")
    a(f"s_add_u32 s46, s46, {L_QO}")
    a(f"v_add_u32 v2, s46, v{vL16}")
    a(f"ds_read_b128 v[{Qf[0]}:{Qf[0]+3}], v2")
    a(f"ds_read_b128 v[{Qf[1]}:{Qf[1]+3}], v2 offset:1024")
    a(f"v_mov_b32 v{VR}, 0x3f803f80")
    for r in range(1, 32): a(f"v_mov_b32 v{VR+r}, v{VR}")
    a(f"buffer_load_dwordx4 v[{P}:{P+3}], v{vL16}, s[{SWS}:{SWS+3}], s21 offen sc1"); vq.issue("ks")
    a(f"buffer_load_dwordx4 v[{P+4}:{P+7}], v{vL16}, s[{SWS}:{SWS+3}], s21 offen offset:1024 sc1"); vq.issue("ks")
    def kvload(t):
        a("s_add_u32 s46, s22, s23")
        a(f"buffer_load_dwordx4 v[{KR+4*(t%4)}:{KR+4*(t%4)+3}], v{vL16}, s[{SWS}:{SWS+3}], s46 offen sc1"); vq.issue(("K", t))
        a(f"s_add_u32 s47, s46, {VF_OFF-KF_OFF}")
        a("s_mov_b64 exec, s[76:77]")
        r = VR + 8*(t % 4)
        a(f"buffer_load_dwordx4 v[{r}:{r+3}], v{vVo}, s[{SWS}:{SWS+3}], s47 offen sc1"); vq.issue(("V", t))
        a(f"buffer_load_dwordx4 v[{r+4}:{r+7}], v{vVo}, s[{SWS}:{SWS+3}], s47 offen offset:512 sc1"); vq.issue(("V", t))
        a("s_mov_b64 exec, -1")
        a("s_add_u32 s23, s23, 1024")
        a("s_and_b32 s23, s23, 0x7fff")
    for t in range(3): kvload(t)
    for q in range(2):
        for r in range(16): a(f"v_mov_b32 v{O[q]+r}, 0")
    a("s_waitcnt lgkmcnt(0)")
    vq.wait("ks")
    m = T
    for q in range(2):
        a(mfma(S[0], P, Qf[q], "0"))
        a(mfma(S[1], P+4, Qf[q], "0"))
        a(f"v_max3_f32 v{m}, v{S[0]}, v{S[0]+1}, v{S[0]+2}")
        for r in range(3, 15, 2):
            a(f"v_max3_f32 v{m}, v{m}, v{S[0]+r}, v{S[0]+r+1}")
        a(f"v_max3_f32 v{m}, v{m}, v{S[0]+15}, v{S[1]}")
        for r in range(1, 15, 2):
            a(f"v_max3_f32 v{m}, v{m}, v{S[1]+r}, v{S[1]+r+1}")
        a(f"v_max_f32 v{m}, v{m}, v{S[1]+15}")
        a(f"v_mov_b32 v{m+1}, v{m}")
        a(f"v_permlane32_swap_b32 v{m}, v{m+1}")
        a(f"v_max_f32 v{m}, v{m}, v{m+1}")
        a(f"v_add_f32 v{m}, {hexf(ATT_OFFSET)}, v{m}")
        a(f"v_sub_f32 v{NEG[q]}, 0, v{m}")
        for r in range(1, 16): a(f"v_mov_b32 v{NEG[q]+r}, v{NEG[q]}")
    for r in range(4, 8): a(f"v_mov_b32 v{P+r}, 0")
    vq.wait(("K", 0))
    a(mfma(S[0], KR, Qf[0], NEG[0]))
    a("s_mov_b32 s26, 0")
    a("s_nop 7")
    mark(a, 4)
    a.label(f"{pfx}_LOOP")
    E = lambda r: a(f"v_exp_f32 v{r}, v{r}")
    C = lambda d, r: a(f"v_cvt_pk_bf16_f32 v{d}, v{r}, v{r+1}")
    entry = [("V", 0), ("V", 0), ("K", 1), ("V", 1), ("V", 1), ("K", 2), ("V", 2), ("V", 2)]
    vq.order = list(entry); vq.done = 0
    for t in range(4):
        for q in range(2):
            Sa = S[q]; Sb = S[1-q]
            if q == 0:
                a(mfma(Sb, KR + 4*(t % 4), Qf[1], NEG[1]))
            else:
                vq.wait(("K", t+1))
                a(mfma(Sb, KR + 4*((t+1) % 4), Qf[0], NEG[0]))
            E(Sa+0); E(Sa+1); E(Sa+2); E(Sa+3)
            C(P+0, Sa+0); E(Sa+4); C(P+1, Sa+2); E(Sa+5); E(Sa+6); E(Sa+7)
            tp = t if q == 1 else t - 1
            a(mfma(O[1-q], VR + 8*(tp % 4) + 4, P+4, O[1-q]))
            if q == 0: kvload(t + 3)
            E(Sa+8); C(P+2, Sa+4); E(Sa+9); C(P+3, Sa+6); E(Sa+10); E(Sa+11)
            E(Sa+12); C(P+4, Sa+8)
            if q == 0: vq.wait(("V", t))
            a(mfma(O[q], VR + 8*(t % 4), P, O[q]))
            E(Sa+13); C(P+5, Sa+10); E(Sa+14); E(Sa+15)
            C(P+6, Sa+12); C(P+7, Sa+14)
    rem = vq.order[vq.done:]
    shift = lambda tg: (tg[0], tg[1] - 4)
    known_k = ("K", 4)
    tail = [shift(x) for x in vq.order[[i for i, x in enumerate(vq.order) if x == known_k][-1]+1:]]
    assert tail == entry, (tail, entry)
    a("s_add_u32 s26, s26, 1")
    a("s_cmp_lt_u32 s26, 8")
    a(f"s_cbranch_scc1 {pfx}_LOOP")
    mark(a, 5)
    a(mfma(O[1], VR + 8*3 + 4, P+4, O[1]))
    OWN, SND, QOWN = 184, 200, 216
    a("s_nop 15")
    a("s_cmp_eq_u32 s20, 0")
    a(f"s_cbranch_scc0 {pfx}_SW1")
    for r in range(9): a(f"v_mov_b32 v{OWN+r}, v{O[0]+r}")
    for r in range(9): a(f"v_mov_b32 v{SND+r}, v{O[1]+r}")
    for r in range(4): a(f"v_mov_b32 v{QOWN+r}, v{Qf[0]+r}")
    a(f"s_branch {pfx}_SW2")
    a.label(f"{pfx}_SW1")
    for r in range(9): a(f"v_mov_b32 v{OWN+r}, v{O[1]+r}")
    for r in range(9): a(f"v_mov_b32 v{SND+r}, v{O[0]+r}")
    for r in range(4): a(f"v_mov_b32 v{QOWN+r}, v{Qf[1]+r}")
    a.label(f"{pfx}_SW2")
    a("s_mul_i32 s46, s16, 2560")
    a(f"s_add_u32 s46, s46, {L_MG}")
    a(f"v_add_u32 v2, s46, v{vL16}")
    a(f"ds_write_b128 v2, v[{SND}:{SND+3}]")
    a(f"ds_write_b128 v2, v[{SND+4}:{SND+7}] offset:1024")
    a(f"v_lshlrev_b32 v3, 2, v{vLn}")
    a(f"v_add_u32 v3, s46, v3")
    a(f"ds_write_b32 v3, v{SND+8} offset:2048")
    a("s_waitcnt vmcnt(0) lgkmcnt(0)")
    a("s_barrier")
    a("s_xor_b32 s46, s16, 4")
    a("s_mul_i32 s46, s46, 2560")
    a(f"s_add_u32 s46, s46, {L_MG}")
    a(f"v_add_u32 v2, s46, v{vL16}")
    a(f"ds_read_b128 v[{SND}:{SND+3}], v2")
    a(f"ds_read_b128 v[{SND+4}:{SND+7}], v2 offset:1024")
    a(f"v_lshlrev_b32 v3, 2, v{vLn}")
    a(f"v_add_u32 v3, s46, v3")
    a(f"ds_read_b32 v{SND+8}, v3 offset:2048")
    a("s_waitcnt lgkmcnt(0)")
    for r in range(9): a(f"v_add_f32 v{OWN+r}, v{OWN+r}, v{SND+r}")
    a("s_mov_b32 s30, 0x207") if False else None
    a("s_mov_b32 s46, 0x207")
    a("s_mov_b32 s47, 0x2ff")
    a(f"v_cmp_class_f32 s[78:79], v{OWN+8}, s47")
    for r in range(8):
        a(f"v_cmp_class_f32 vcc, v{OWN+r}, s46")
        a("s_or_b64 s[78:79], s[78:79], vcc")
    a("s_cmp_lg_u64 s[78:79], 0")
    a(f"s_cbranch_scc1 {pfx}_SLOW")
    a.label(f"{pfx}_OUT")
    TT = SND
    a(f"v_rcp_f32 v{TT}, v{OWN+8}")
    for r in range(8): a(f"v_mul_f32 v{OWN+r}, v{OWN+r}, v{TT}")
    for d in range(4): a(f"v_cvt_pk_bf16_f32 v{TT+4+d}, v{OWN+2*d}, v{OWN+2*d+1}")
    a("s_lshl_b32 s46, s20, 2")
    a("s_add_u32 s46, s46, s19")
    a("s_lshl_b32 s46, s46, 10")
    a(f"s_add_u32 s46, s46, {L_QO}")
    a(f"v_add_u32 v2, s46, v{vL16}")
    a(f"ds_write_b128 v2, v[{TT+4}:{TT+7}]")
    if dbg:
        a("s_lshl_b32 s46, s17, 1"); a("s_add_u32 s46, s46, s20"); a("s_lshl_b32 s46, s46, 15")
        a("s_lshl_b32 s47, s18, 2"); a("s_add_u32 s47, s47, s19"); a("s_lshl_b32 s47, s47, 10")
        a("s_add_u32 s46, s46, s47"); a(f"s_add_u32 s46, s46, {OF_OFF}")
        a(f"buffer_store_dwordx4 v[{TT+4}:{TT+7}], v{vL16}, s[{SWS}:{SWS+3}], s46 offen")
    a("s_waitcnt vmcnt(0) lgkmcnt(0)")
    a(f"s_branch {pfx}_END")
    a.label(f"{pfx}_SLOW")
    KS, VS, SS, NS_, PS = KR, VR, S[0], NEG[0], P
    a("s_mov_b32 s46, s21")
    a(f"v_mov_b32 v{TT}, 0xff800000")
    a("s_mov_b32 s26, 0")
    a.label(f"{pfx}_SL1")
    a(f"buffer_load_dwordx4 v[{KS}:{KS+3}], v{vL16}, s[{SWS}:{SWS+3}], s46 offen sc1")
    a("s_waitcnt vmcnt(0)")
    a(mfma(SS, KS, QOWN, "0"))
    for r in range(0, 16, 2):
        a(f"v_max3_f32 v{TT}, v{TT}, v{SS+r}, v{SS+r+1}")
    a("s_add_u32 s46, s46, 1024")
    a("s_add_u32 s26, s26, 1")
    a("s_cmp_lt_u32 s26, 64")
    a(f"s_cbranch_scc1 {pfx}_SL1")
    a(f"v_mov_b32 v{TT+1}, v{TT}")
    a(f"v_permlane32_swap_b32 v{TT}, v{TT+1}")
    a(f"v_max_f32 v{TT}, v{TT}, v{TT+1}")
    a(f"v_sub_f32 v{NS_}, 0, v{TT}")
    for r in range(1, 16): a(f"v_mov_b32 v{NS_+r}, v{NS_}")
    for r in range(16): a(f"v_mov_b32 v{OWN+r}, 0")
    a("s_mov_b32 s46, s21")
    a("s_mov_b32 s26, 0")
    a.label(f"{pfx}_SL2")
    a(f"buffer_load_dwordx4 v[{KS}:{KS+3}], v{vL16}, s[{SWS}:{SWS+3}], s46 offen sc1")
    a(f"s_add_u32 s47, s46, {VF_OFF-KF_OFF}")
    a("s_mov_b64 exec, s[76:77]")
    a(f"buffer_load_dwordx4 v[{VS}:{VS+3}], v{vVo}, s[{SWS}:{SWS+3}], s47 offen sc1")
    a(f"buffer_load_dwordx4 v[{VS+4}:{VS+7}], v{vVo}, s[{SWS}:{SWS+3}], s47 offen offset:512 sc1")
    a("s_mov_b64 exec, -1")
    a("s_waitcnt vmcnt(0)")
    a(mfma(SS, KS, QOWN, NS_))
    for r in range(16): E(SS+r)
    for d in range(8): C(PS+d, SS+2*d)
    a(mfma(OWN, VS, PS, OWN))
    a(mfma(OWN, VS+4, PS+4, OWN))
    a("s_add_u32 s46, s46, 1024")
    a("s_add_u32 s26, s26, 1")
    a("s_cmp_lt_u32 s26, 64")
    a(f"s_cbranch_scc1 {pfx}_SL2")
    a("s_nop 15")
    a(f"s_branch {pfx}_OUT")
    a.label(f"{pfx}_END")

def gen_z(label, dbg=False):
    k = Kernel(label, 256, 512, LDS_TOTAL, 256)
    a = k.a
    a("s_cmp_ge_u32 s2, 256")
    a("s_cbranch_scc1 Z_END")
    emit_z(a, dbg)
    a.label("Z_END")
    return k

def gen_fin2(label):
    k = Kernel(label, 256, 512, 0, 64)
    a = k.a
    a("s_cmp_ge_u32 s2, 256")
    a("s_cbranch_scc1 F_END")
    SWS, SX_, SO_ = 4, 8, 12
    srd(a, SWS, KA_WS, WS_BYTES); srd(a, SX_, KA_X, 2097152); srd(a, SO_, KA_OUT, 2097152)
    a("v_and_b32 v1, 63, v0")
    a("v_lshrrev_b32 v2, 6, v0")
    a("v_readfirstlane_b32 s16, v2")
    a("s_lshr_b32 s17, s2, 2")
    a("s_and_b32 s18, s2, 3")
    a("s_lshl_b32 s18, s18, 2")
    a("s_lshr_b32 s19, s16, 1")
    a("s_add_u32 s18, s18, s19")
    a("s_and_b32 s19, s16, 1")
    a("s_lshl_b32 s20, s17, 4")
    a("s_add_u32 s20, s20, s18")
    a("s_lshl_b32 s20, s20, 1")
    a("s_add_u32 s20, s20, s19")
    a("s_lshl_b32 s20, s20, 10")
    a(f"s_add_u32 s20, s20, {PF_OFF}")
    a("v_lshlrev_b32 v2, 4, v1")
    a("v_and_b32 v3, 31, v1")
    a("v_lshlrev_b32 v3, 10, v3")
    a("v_lshrrev_b32 v4, 5, v1")
    a("v_lshl_add_u32 v3, v4, 4, v3")
    a("s_lshl_b32 s21, s17, 15")
    a("s_lshl_b32 s22, s18, 6")
    a("s_add_u32 s21, s21, s22")
    a("s_lshl_b32 s22, s19, 5")
    a("s_add_u32 s21, s21, s22")
    a("s_waitcnt lgkmcnt(0)")
    for c in range(8):
        a(f"buffer_load_dwordx4 v[{8+4*c}:{11+4*c}], v2, s[{SWS}:{SWS+3}], s20 offen")
        if c < 7: a(f"s_add_u32 s20, s20, {64*16*2048}")
    a(f"buffer_load_dwordx4 v[40:43], v3, s[{SX_}:{SX_+3}], s21 offen")
    for c in range(8):
        a(f"s_waitcnt vmcnt({8-c})")
        for d in range(4):
            r = 8 + 4*c + d
            if c == 0:
                a(f"v_lshlrev_b32 v{48+2*d}, 16, v{r}")
                a(f"v_and_b32 v{49+2*d}, 0xffff0000, v{r}")
            else:
                a(f"v_lshlrev_b32 v4, 16, v{r}")
                a(f"v_and_b32 v5, 0xffff0000, v{r}")
                a(f"v_add_f32 v{48+2*d}, v{48+2*d}, v4")
                a(f"v_add_f32 v{49+2*d}, v{49+2*d}, v5")
    for d in range(4):
        a(f"v_permlane32_swap_b32 v{48+d}, v{52+d}")
    a("s_waitcnt vmcnt(0)")
    for d in range(4):
        a(f"v_lshlrev_b32 v4, 16, v{40+d}")
        a(f"v_and_b32 v5, 0xffff0000, v{40+d}")
        a(f"v_add_f32 v{48+2*d}, v{48+2*d}, v4")
        a(f"v_add_f32 v{49+2*d}, v{49+2*d}, v5")
    for d in range(4): a(f"v_cvt_pk_bf16_f32 v{8+d}, v{48+2*d}, v{49+2*d}")
    a(f"buffer_store_dwordx4 v[8:11], v3, s[{SO_}:{SO_+3}], s21 offen")
    a.label("F_END")
    return k

if __name__ == "__main__":
    import sys
    out = sys.argv[1]; opts = sys.argv[2:]
    if "ts" in opts: TS_ENABLE[0] = True
    if "lnm" in opts: LNM[0] = True
    ks = [gen_z(NAME + "_kernel", dbg="dbg" in opts), gen_fin2("fin_kernel")]
    open(out, "w").write(build_file(ks))
```

```python
from common import *
import z
from z import lane_off8, tr_addr8, ln_loads, gen_fin2, PF_OFF, ATT_OFFSET
P = dict(gstart=20, prio_kv=3, prio_att=0, prio_g=0, gwait=1, zrow=1, psleep=8, rsleep=4)

L_X, L_AR, L_GR, L_H, L_QO, L_FL, LDS_TOTAL = 0, 65536, 90112, 122880, 151552, 159744, 163840
F_PUB, F_GO, F_QD, F_GS, F_P1, F_MASK = L_FL, L_FL+4, L_FL+8, L_FL+12, L_FL+16, L_FL+20
SQ, SG, SU, SX, SD, SO, SWS, SDBG = 4, 8, 12, 24, 32, 36, 40, 44
sAREA = 28
vLn, vW8, vWm, vT0, vTm, vX0, vL16, vVo, vTx = 1, 10, 11, 12, 14, 16, 20, 21, 22
LNX, LNT = 64, 96
ACC, FR, XB = 128, 192, 208
RING = 4
PD = RING - 1
LNM = [False]
FL_OFF = 0x3000000
vFO, vSN = 8, 9

def ids(a):
    a("v_and_b32 v1, 63, v0")
    a("v_lshrrev_b32 v2, 6, v0")
    a("v_readfirstlane_b32 s16, v2")
    a("s_and_b32 s20, s2, 7")
    a("s_lshr_b32 s21, s2, 3")
    a("s_lshr_b32 s19, s21, 1")
    a("s_lshr_b32 s17, s20, 2")
    a("s_lshl_b32 s17, s17, 4")
    a("s_add_u32 s17, s17, s19")
    a("s_and_b32 s18, s20, 3")
    a("s_lshl_b32 s18, s18, 1")
    a("s_and_b32 s21, s21, 1")
    a("s_add_u32 s18, s18, s21")

def ln_addr_x(a):
    r, c = LNT+2, LNT+3
    a(f"v_lshrrev_b32 v{r}, 3, v{vLn}")
    a(f"v_and_b32 v{c}, 7, v{vLn}")
    a(f"v_lshlrev_b32 v{LNT}, 10, v{r}")
    a(f"v_lshl_add_u32 v{LNT}, v{c}, 4, v{LNT}")
    a("s_lshl_b32 s23, s17, 16")
    a("s_lshl_b32 s22, s16, 13")
    a("s_add_u32 s23, s23, s22")

def ln_addr_rest(a):
    r, c = LNT+2, LNT+3
    t = LNT+4
    a(f"v_lshrrev_b32 v{t}, 1, v{c}")
    a(f"v_lshlrev_b32 v{t}, 10, v{t}")
    a(f"v_and_b32 v{t+1}, 1, v{c}")
    a(f"v_lshl_add_u32 v{t}, v{t+1}, 9, v{t}")
    a("s_and_b32 s21, s16, 3")
    a("s_lshl_b32 s21, s21, 7")
    a("s_lshr_b32 s22, s16, 2")
    a("s_lshl_b32 s22, s22, 15")
    a("s_add_u32 s22, s22, s21")
    a(f"v_xor_b32 v{t+1}, v{r}, v{c}")
    a(f"v_lshl_add_u32 v{LNT+1}, v{t+1}, 4, v{t}")
    a(f"v_add_u32 v{LNT+1}, s22, v{LNT+1}")
    a(f"v_lshrrev_b32 v{t}, 5, v{vLn}")
    for q in range(4):
        a(f"v_add_u32 v{t+1}, {2*q}, v{t}")
        a(f"v_xor_b32 v{t+1}, v{t+1}, v{vLn}")
        a(f"v_lshlrev_b32 v{vX0+q}, 4, v{t+1}")

def ln_stats(a, vq):
    X = LNX
    ONES, A1, B1, A2, B2 = LNT+8, LNT+9, LNT+10, LNT+11, LNT+12
    a(f"v_mov_b32 v{ONES}, 0x3f803f80")
    for r in (A1, B1, A2, B2): a(f"v_mov_b32 v{r}, 0")
    if LNM[0]: mark(a, 8)
    for i in range(8):
        vq.wait(("x", i))
        if LNM[0] and i == 0: mark(a, 9)
        for d in range(4):
            r = X + 4*i + d
            a(f"v_dot2c_f32_bf16 v{A1 if d%2==0 else B1}, v{r}, v{ONES}")
            a(f"v_dot2c_f32_bf16 v{A2 if d%2==0 else B2}, v{r}, v{r}")
    a("s_nop 2")
    if LNM[0]: mark(a, 10)

def ln_norm(a, lq):
    X = LNX
    ONES, A1, B1, A2, B2 = LNT+8, LNT+9, LNT+10, LNT+11, LNT+12
    a(f"v_add_f32 v{A1}, v{A1}, v{B1}")
    a(f"v_add_f32 v{A2}, v{A2}, v{B2}")
    for mod in ("quad_perm:[1,0,3,2]", "quad_perm:[2,3,0,1]", "row_half_mirror"):
        a(f"v_add_f32_dpp v{A1}, v{A1}, v{A1} {mod} row_mask:0xf bank_mask:0xf")
        a(f"v_add_f32_dpp v{A2}, v{A2}, v{A2} {mod} row_mask:0xf bank_mask:0xf")
    a(f"v_mul_f32 v{A1}, 0x3b000000, v{A1}")
    a(f"v_mul_f32 v{A2}, 0x3b000000, v{A2}")
    a(f"v_fma_f32 v{A2}, -v{A1}, v{A1}, v{A2}")
    a(f"v_max_f32 v{A2}, 0, v{A2}")
    a(f"v_add_f32 v{A2}, 0x3727c5ac, v{A2}")
    SC, BI = LNT+14, LNT+13
    a(f"v_rsq_f32 v{SC}, v{A2}")
    a(f"v_mul_f32 v{BI}, v{A1}, v{SC}")
    a(f"v_sub_f32 v{BI}, 0, v{BI}")
    T = LNT+16
    for kx in range(32):
        r = X + kx; t = T + 2*(kx % 4)
        a(f"v_lshlrev_b32 v{t}, 16, v{r}")
        a(f"v_and_b32 v{t+1}, 0xffff0000, v{r}")
        a(f"v_fma_f32 v{t}, v{t}, v{SC}, v{BI}")
        a(f"v_fma_f32 v{t+1}, v{t+1}, v{SC}, v{BI}")
        a(f"v_cvt_pk_bf16_f32 v{r}, v{t}, v{t+1}")
        if kx % 4 == 3:
            i = kx // 4
            a(f"ds_write_b128 v{LNT+1}, v[{X+4*i}:{X+4*i+3}] offset:{i*4096}")
            lq.issue(("xw", i))

def dma_step(a, vq, kind, slot, tag):
    sl = slot * 2048
    if kind in "WV":
        for i in range(2):
            a(f"s_add_u32 m0, s{sAREA}, {sl + 1024*i}")
            a(f"buffer_load_dwordx4 v{vW8}, s[{SQ}:{SQ+3}], s29 offen lds"); vq.issue(tag)
            a(f"s_add_u32 s29, s29, {8*3072}")
    else:
        a(f"s_add_u32 m0, s{sAREA}, {sl}")
        a(f"buffer_load_dwordx4 v{vWm}, s[{SG}:{SG+3}], s30 offen lds"); vq.issue(tag)
        a(f"s_add_u32 m0, s{sAREA}, {sl + 1024}")
        a(f"buffer_load_dwordx4 v{vWm}, s[{SU}:{SU+3}], s30 offen lds"); vq.issue(tag)
        a(f"s_add_u32 s30, s30, {16*3584}")

def unit_body(a, vq, lq, kind, wrap, hook_step=None, dma_pre=None):
    def trr(g):
        sl = (g % RING) * 2048
        f = FR + 8*(g % 2)
        for nt in range(2):
            if kind in "WV":
                a(f"ds_read_b64_tr_b16 v[{f+4*nt}:{f+4*nt+1}], v{vT0+nt} offset:{sl}"); lq.issue(("f", g))
                a(f"ds_read_b64_tr_b16 v[{f+4*nt+2}:{f+4*nt+3}], v{vT0+nt} offset:{sl+512}"); lq.issue(("f", g))
            else:
                a(f"ds_read_b64_tr_b16 v[{f+4*nt}:{f+4*nt+1}], v{vTm} offset:{sl+nt*1024}"); lq.issue(("f", g))
                a(f"ds_read_b64_tr_b16 v[{f+4*nt+2}:{f+4*nt+3}], v{vTm} offset:{sl+nt*1024+256}"); lq.issue(("f", g))
    def xread(g):
        for mt in range(2):
            xb = XB + 8*(g % 2) + 4*mt
            a(f"ds_read_b128 v[{xb}:{xb+3}], v{vX0 + g%4} offset:{mt*32768 + g*1024}"); lq.issue(("f", g))
    def mm(g, nt, mt):
        f = FR + 8*(g % 2) + 4*nt; xb = XB + 8*(g % 2) + 4*mt
        acc = ACC + 16*(2*mt+nt)
        c = "0" if g == 0 else acc
        a(mfma(acc, xb, f, c) if kind == "V" else mfma(acc, f, xb, c))
    vq.wait(("w", 0))
    trr(0); xread(0)
    for g in range(32):
        nx = g + 1 < 32
        lq.wait(("f", g))
        mm(g, 0, 0)
        if nx:
            vq.wait(("w", g+1)); trr(g+1)
        mm(g, 1, 0)
        if nx: xread(g+1)
        mm(g, 0, 1)
        if g + PD < 32 or wrap:
            if dma_pre: dma_pre(g + PD)
            dma_step(a, vq, kind, (g+PD) % RING, ("w", g+PD))
        mm(g, 1, 1)
        if hook_step: hook_step(g)

def glu_epilogue(a, lq, sdst):
    a(f"s_mov_b32 s31, {hexf(-1.4426950408889634)}")
    H = XB
    for mt in range(2):
        g = ACC + 32*mt; u = g + 16
        for i in range(16): a(f"v_mul_f32 v{g+i}, s31, v{g+i}")
        for i in range(16): a(f"v_exp_f32 v{g+i}, v{g+i}")
        for i in range(16): a(f"v_add_f32 v{g+i}, 1.0, v{g+i}")
        for i in range(16): a(f"v_rcp_f32 v{g+i}, v{g+i}")
        for i in range(16): a(f"v_mul_f32 v{g+i}, v{g+i}, v{u+i}")
        for d in range(8): a(f"v_cvt_pk_bf16_f32 v{H+8*mt+d}, v{g+2*d}, v{g+2*d+1}")
    a(f"v_add_u32 v2, s{sdst}, v{vL16}")
    for mt in range(2):
        for q in range(2):
            a(f"ds_write_b128 v2, v[{H+8*mt+4*q}:{H+8*mt+4*q+3}] offset:{mt*2048 + q*1024}"); lq.issue("hw")

def lds_add1(a, addr, ret=None):
    a("s_mov_b64 exec, 1")
    a(f"v_mov_b32 v2, {addr}")
    a("v_mov_b32 v3, 1")
    if ret is None: a("ds_add_u32 v2, v3")
    else: a(f"ds_add_rtn_u32 v{ret}, v2, v3")
    a("s_mov_b64 exec, -1")

def lds_spin(a, lab, addr, val, sleep=1, cmp="ge"):
    a(f"v_mov_b32 v2, {addr}")
    a.label(lab)
    a("ds_read_b32 v3, v2")
    a("s_waitcnt lgkmcnt(0)")
    a("v_readfirstlane_b32 s46, v3")
    a(f"s_cmp_{cmp}_u32 s46, {val}")
    a(f"s_cbranch_scc1 {lab}_OK")
    a(f"s_sleep {sleep}")
    a(f"s_branch {lab}")
    a.label(f"{lab}_OK")

def dbg_word(a, sdst):
    a(f"s_lshr_b32 s{sdst}, s18, 2")
    a(f"s_lshl_b32 s{sdst}, s{sdst}, 7")
    a("s_and_b32 s47, s18, 3")
    a("s_lshl_b32 s47, s47, 2")
    a(f"s_add_u32 s{sdst}, s{sdst}, s47")

def snap_load(a, vq):
    a(f"buffer_load_dword v{vSN}, v{vFO}, s[{SWS}:{SWS+3}], s99 offen sc1"); vq.issue("snap")

def publish(a, pfx):
    a("s_waitcnt vmcnt(0)")
    if not LNM[0]: mark(a, 10)
    a("s_mov_b64 exec, 1")
    a(f"v_mov_b32 v2, {F_PUB}")
    a("v_mov_b32 v3, 1")
    a("ds_add_rtn_u32 v4, v2, v3")
    a(f"v_mov_b32 v5, {F_GO}")
    a("ds_add_u32 v5, v3")
    a("s_waitcnt lgkmcnt(0)")
    a("v_readfirstlane_b32 s46, v4")
    a("s_cmp_eq_u32 s46, 1")
    a(f"s_cbranch_scc0 {pfx}_NOPUB")
    a("s_lshl_b32 s47, 1, s17")
    a("s_mov_b32 exec_lo, s47")
    a(f"v_add_u32 v4, 1, v{vSN}")
    a(f"buffer_store_dword v4, v{vFO}, s[{SWS}:{SWS+3}], s99 offen sc1")
    a("s_mov_b32 exec_lo, 1")
    a("v_mov_b32 v3, s47")
    dbg_word(a, 46)
    a("v_mov_b32 v2, s46")
    a(f"global_atomic_or v2, v3, s[{SDBG}:{SDBG+1}]")
    a.label(f"{pfx}_NOPUB")
    a("s_mov_b64 exec, -1")
    if not LNM[0]: mark(a, 11)

def mirror(a):
    a("s_or_b32 s74, s74, s96")
    a("s_mov_b64 exec, 1")
    a(f"v_mov_b32 v2, {F_MASK}")
    a("v_mov_b32 v3, s96")
    a("ds_or_b32 v2, v3")
    a("s_mov_b64 exec, -1")

def poll_once(a):
    a(f"buffer_load_dword v3, v{vFO}, s[{SWS}:{SWS+3}], s99 offen sc1")
    a("s_waitcnt vmcnt(0)")
    a(f"v_cmp_ne_u32 vcc, v3, v{vSN}")
    a("s_lshr_b64 s[96:97], vcc, s17")
    mirror(a)

def poll_dbg(a):
    dbg_word(a, 46)
    a("v_mov_b32 v2, s46")
    a(f"global_load_dword v3, v2, s[{SDBG}:{SDBG+1}] sc1")
    a("s_waitcnt vmcnt(0)")
    a("v_readfirstlane_b32 s96, v3")
    a("s_mov_b32 s97, s96")
    a("s_lshr_b64 s[96:97], s[96:97], s17")
    mirror(a)

def emit_y(a, dbg=False):
    sc1 = " sc1"
    srd(a, SX, KA_X, 2097152); srd(a, SQ, KA_WQKV, 512*1536*2)
    srd(a, SG, KA_WG, 512*1792*2); srd(a, SU, KA_WU, 512*1792*2)
    srd(a, SD, KA_WD, 1792*512*2); srd(a, SO, KA_WO, 512*512*2); srd(a, SWS, KA_WS, WS_BYTES)
    a(f"s_load_dwordx2 s[{SDBG}:{SDBG+1}], s[0:1], {KA_DBG}")
    ids(a)
    ln_addr_x(a)
    a("s_waitcnt lgkmcnt(0)")
    mark(a, 0)
    vq = Q(a, "vmcnt", 63); lq = Q(a, "lgkmcnt", 15)
    ln_loads(a, vq)
    a("s_barrier")
    ln_addr_rest(a)
    a(f"v_lshlrev_b32 v{vL16}, 4, v{vLn}")
    a("s_lshl_b32 s28, s16, 13")
    a(f"s_add_u32 s21, s28, {L_AR}")
    a(f"s_add_u32 s22, s28, {L_GR - 4*8192}")
    a("s_cmp_lt_u32 s16, 4")
    a(f"s_cselect_b32 s{sAREA}, s21, s22")
    lane_off8(a, vW8, 3072)
    a(f"v_lshrrev_b32 v2, 2, v{vLn}")
    a(f"v_mul_u32_u24 v{vWm}, 3584, v2")
    a(f"v_and_b32 v2, 3, v{vLn}")
    a(f"v_lshl_add_u32 v{vWm}, v2, 4, v{vWm}")
    a("s_add_u32 s21, s16, 1")
    a("s_cmp_eq_u32 s21, 3")
    a("s_cselect_b32 s21, 0, s21")
    a("s_lshl_b32 s29, s21, 10")
    a("s_lshl_b32 s21, s18, 7")
    a("s_add_u32 s29, s29, s21")
    a("s_sub_u32 s21, s16, 4")
    a("s_lshl_b32 s21, s21, 6")
    a("s_mul_i32 s30, s18, 448")
    a("s_add_u32 s30, s30, s21")
    tr_addr8(a, vT0, 10, f"s{sAREA}")
    a(f"v_lshrrev_b32 v2, 5, v{vLn}")
    a(f"v_lshlrev_b32 v{vTm}, 9, v2")
    a(f"v_bfe_u32 v2, v{vLn}, 2, 2")
    a(f"v_lshl_add_u32 v{vTm}, v2, 6, v{vTm}")
    a(f"v_bfe_u32 v2, v{vLn}, 4, 1")
    a(f"v_lshl_add_u32 v{vTm}, v2, 5, v{vTm}")
    a(f"v_and_b32 v2, 3, v{vLn}")
    a(f"v_lshl_add_u32 v{vTm}, v2, 3, v{vTm}")
    a(f"v_add_u32 v{vTm}, s{sAREA}, v{vTm}")
    a(f"v_and_b32 v{vFO}, 31, v{vLn}")
    a(f"v_lshlrev_b32 v{vFO}, 7, v{vFO}")
    a("s_lshl_b32 s99, s18, 12")
    a(f"s_add_u32 s99, s99, {FL_OFF}")
    a("v_mov_b32 v2, 0")
    a(f"v_lshlrev_b32 v3, 2, v{vLn}")
    a(f"v_add_u32 v3, {L_FL}, v3")
    a("ds_write_b32 v3, v2")
    T0 = LNT + 24
    vqx = Q(Asm(), "vmcnt", 63)
    base = list(vq.order)
    a("s_cmp_ge_u32 s16, 4")
    a("s_cbranch_scc1 Y_EG")
    a("s_cmp_eq_u32 s16, 3")
    a("s_cbranch_scc1 Y_E3")
    for g in range(PD): dma_step(a, vq, "W", g, ("w", g))
    snap_load(a, vq)
    ln_stats(a, vq)
    a("s_branch Y_PRIMED")
    a.label("Y_E3")
    vq.order, vq.done = list(base), 0
    a(f"v_and_b32 v2, 31, v{vLn}")
    a(f"v_mul_u32_u24 v{T0}, 3072, v2")
    a(f"v_lshrrev_b32 v2, 5, v{vLn}")
    a(f"v_lshl_add_u32 v{T0+1}, v2, 10, v{T0}")
    a("s_lshl_b32 s21, s19, 5")
    a("s_mul_i32 s48, s21, 3072")
    a("s_lshl_b32 s22, s18, 7")
    a("s_add_u32 s48, s48, s22")
    a(f"buffer_load_dword v{T0+2}, v{T0+1}, s[{SQ}:{SQ+3}], s48 offen offset:1024"); vq.issue("t")
    a("s_mov_b32 exec_hi, 0")
    a(f"buffer_load_dword v{T0+3}, v{T0}, s[{SQ}:{SQ+3}], s48 offen"); vq.issue("t")
    a("s_mov_b32 exec_hi, -1")
    snap_load(a, vq)
    a(f"v_lshrrev_b32 v2, 2, v{vLn}")
    a(f"v_and_b32 v3, 3, v{vLn}")
    a(f"v_mul_u32_u24 v{T0}, 3584, v2")
    a(f"v_lshl_add_u32 v{T0}, v3, 7, v{T0}")
    a("s_mul_i32 s47, s21, 3584")
    a("s_mul_i32 s22, s18, 448")
    a("s_add_u32 s47, s47, s22")
    a(f"s_add_u32 s48, s47, {16*3584}")
    ln_stats(a, vq)
    a(f"buffer_load_dword v{T0+4}, v{T0}, s[{SG}:{SG+3}], s47 offen")
    a(f"buffer_load_dword v{T0+5}, v{T0}, s[{SU}:{SU+3}], s47 offen")
    a(f"buffer_load_dword v{T0+6}, v{T0}, s[{SG}:{SG+3}], s48 offen")
    a(f"buffer_load_dword v{T0+7}, v{T0}, s[{SU}:{SU+3}], s48 offen")
    a("s_branch Y_PRIMED")
    a.label("Y_EG")
    vq.order, vq.done = list(base), 0
    ln_stats(a, vq)
    a.label("Y_PRIMED")
    ln_norm(a, lq)
    a("s_waitcnt lgkmcnt(0)"); lq.known_all()
    if LNM[0]: mark(a, 11)
    a("s_barrier")
    mark(a, 1)
    def reset(nprimed):
        vq.order = [("w", g) for g in range(PD) for _ in range(2)] if nprimed else []
        vq.done = 0
        lq.order, lq.done = [], 0
    a("s_cmp_ge_u32 s16, 4")
    a("s_cbranch_scc1 Y_G")
    a("s_cmp_eq_u32 s16, 1")
    a("s_cbranch_scc1 Y_V")
    a("s_cmp_eq_u32 s16, 2")
    a("s_cbranch_scc1 Y_Q")
    a("s_cmp_eq_u32 s16, 3")
    a("s_cbranch_scc1 Y_POLLER")
    TMP = 224
    def k_epilogue():
        a("s_lshl_b32 s46, s18, 18")
        a("s_lshl_b32 s47, s17, 11")
        a("s_add_u32 s46, s46, s47")
        a(f"s_add_u32 s46, s46, {KF_OFF}")
        for nt in range(2):
            for hh in range(2):
                for mt in range(2):
                    acc = ACC + 16*(2*mt+nt) + 8*hh
                    rr = TMP + 4*((2*hh+mt) % 4) + 16*nt
                    for d in range(4): a(f"v_cvt_pk_bf16_f32 v{rr+d}, v{acc+2*d}, v{acc+2*d+1}")
                    a(f"buffer_store_dwordx4 v[{rr}:{rr+3}], v{vL16}, s[{SWS}:{SWS+3}], s46 offen offset:{mt*1024}{sc1}"); vq.issue("st")
                a("s_add_u32 s46, s46, 65536")
    def v_epilogue():
        a("s_lshl_b32 s46, s18, 18")
        a("s_lshl_b32 s47, s17, 11")
        a("s_add_u32 s46, s46, s47")
        a(f"s_add_u32 s46, s46, {VF_OFF}")
        a(f"v_bfe_u32 v2, v{vLn}, 4, 1")
        a(f"v_lshlrev_b32 v3, 16, v2")
        a(f"v_lshrrev_b32 v2, 5, v{vLn}")
        a(f"v_lshl_add_u32 v3, v2, 8, v3")
        a(f"v_and_b32 v2, 15, v{vLn}")
        a(f"v_lshl_add_u32 v5, v2, 4, v3")
        for nt in range(2):
            for mt in range(2):
                for g in range(2):
                    acc = ACC + 16*(2*mt+nt) + 8*g
                    rr = TMP + 4*((2*mt+g) % 4) + 16*nt
                    for d in range(4): a(f"v_cvt_pk_bf16_f32 v{rr+d}, v{acc+2*d}, v{acc+2*d+1}")
                    a(f"buffer_store_dwordx4 v[{rr}:{rr+3}], v5, s[{SWS}:{SWS+3}], s46 offen offset:{mt*1024+g*512}{sc1}"); vq.issue("st")
            a("s_add_u32 s46, s46, 131072")
    for kindc, lab, epi in (("W", "Y_K", k_epilogue), ("V", "Y_V", v_epilogue)):
        a.label(lab)
        reset(True)
        a(f"s_setprio {P['prio_kv']}")
        def hook_step(g, lab=lab):
            if lab == "Y_K" and g == P["gstart"]:
                a(f"v_mov_b32 v2, {F_GS}")
                a("v_mov_b32 v3, 1")
                a("ds_write_b32 v2, v3"); lq.issue("gs")
        unit_body(a, vq, lq, kindc, False, hook_step)
        if not LNM[0]: mark(a, 8)
        epi()
        if not LNM[0]: mark(a, 9)
        lds_add1(a, F_P1)
        publish(a, lab)
        mark(a, 2)
        a("s_branch Y_AWAIT")
    a.label("Y_Q")
    reset(True)
    a(f"s_setprio {P['prio_kv']}")
    unit_body(a, vq, lq, "W", False)
    a("s_mov_b32 s31, 0x3eb8aa3b")
    a(f"v_add_u32 v2, {L_QO}, v{vL16}")
    for nt in range(2):
        for hh in range(2):
            for mt in range(2):
                acc = ACC + 16*(2*mt+nt) + 8*hh
                rr = TMP + 4*((2*hh+mt) % 4) + 16*nt
                for d in range(8): a(f"v_mul_f32 v{acc+d}, s31, v{acc+d}")
                for d in range(4): a(f"v_cvt_pk_bf16_f32 v{rr+d}, v{acc+2*d}, v{acc+2*d+1}")
                a(f"ds_write_b128 v2, v[{rr}:{rr+3}] offset:{((2*nt+hh)*2+mt)*1024}"); lq.issue("qw")
    a("s_waitcnt lgkmcnt(0)")
    lds_add1(a, F_P1)
    lds_add1(a, F_GO)
    mark(a, 2)
    a("s_branch Y_AWAIT")
    a.label("Y_POLLER")
    if P["gwait"]: lds_spin(a, "Y_PW", F_GS, 1)
    a(f"v_lshrrev_b32 v2, 3, v{vLn}")
    a(f"v_lshlrev_b32 v4, 10, v2")
    a(f"v_and_b32 v2, 7, v{vLn}")
    a(f"v_lshl_add_u32 v4, v2, 7, v4")
    a("s_mul_i32 s21, s18, 224")
    a("s_mul_i32 s22, s19, 14")
    a("s_add_u32 s21, s21, s22")
    a("s_lshl_b32 s21, s21, 10")
    a(f"buffer_load_dword v5, v4, s[{SD}:{SD+3}], s21 offen")
    a("s_add_u32 s21, s21, 8192")
    a("s_mov_b32 exec_hi, 0x0000ffff")
    a(f"buffer_load_dword v6, v4, s[{SD}:{SD+3}], s21 offen")
    a("s_mov_b32 exec_hi, 0")
    a("s_lshl_b32 s21, s18, 6")
    a("s_lshl_b32 s22, s19, 2")
    a("s_add_u32 s21, s21, s22")
    a("s_lshl_b32 s21, s21, 10")
    a(f"buffer_load_dword v7, v4, s[{SO}:{SO+3}], s21 offen")
    a("s_mov_b64 exec, -1")
    a("s_waitcnt vmcnt(0)")
    mark(a, 2)
    a("s_mov_b32 s74, 0")
    a.label("Y_POLL")
    poll_once(a)
    a(f"v_mov_b32 v2, {F_GO}")
    a("ds_read_b32 v3, v2")
    a("s_waitcnt lgkmcnt(0)")
    a("v_readfirstlane_b32 s46, v3")
    a("s_cmp_ge_u32 s46, 3")
    a("s_cbranch_scc1 Y_AWAIT")
    a(f"s_sleep {P['psleep']}")
    a("s_branch Y_POLL")
    a.label("Y_AWAIT")
    a(f"s_setprio {P['prio_att']}")
    lds_spin(a, "Y_SPIN", F_GO, 3)
    mark(a, 3)
    emit_att(a, vq, lq, dbg)
    mark(a, 6)
    a("s_barrier")
    a("s_branch Y_END")
    a.label("Y_G")
    a(f"s_setprio {P['prio_g']}")
    vq.order, vq.done, lq.order, lq.done = [], 0, [], 0
    if P["gwait"]: lds_spin(a, "Y_GW", F_GS, 1)
    for g in range(PD): dma_step(a, vq, "M", g, ("w", g))
    mark(a, 8)
    a("s_sub_u32 s48, s16, 4")
    a("s_lshl_b32 s48, s48, 12")
    a(f"s_add_u32 s48, s48, {L_H}")
    a("s_mov_b32 s49, 0")
    a.label("Y_GLOOP")
    vq.order = [("w", g) for g in range(PD) for _ in range(2)]; vq.done = 0
    lq.order, lq.done = [], 0
    def dma_pre(gg):
        if gg == 32: a(f"s_sub_u32 s30, s30, {512*3584 - 256}")
    unit_body(a, vq, lq, "M", True, None, dma_pre)
    glu_epilogue(a, lq, 48)
    a("s_add_u32 s48, s48, 16384")
    a("s_add_u32 s49, s49, 1")
    a("s_cmp_eq_u32 s16, 7")
    a("s_cbranch_scc1 Y_GDONE")
    a("s_cmp_lt_u32 s49, 2")
    a("s_cbranch_scc1 Y_GLOOP")
    a.label("Y_GDONE")
    a("s_waitcnt vmcnt(0) lgkmcnt(0)")
    lds_add1(a, F_P1)
    mark(a, 2)
    vq.order, vq.done, lq.order, lq.done = [], 0, [], 0
    lane_off8(a, vW8, 1024)
    tr_addr8(a, vT0, 9, f"s{sAREA}")
    a("s_sub_u32 s21, s16, 4")
    a("s_lshl_b32 s27, s21, 14")
    a(f"s_sub_u32 s22, s27, s{sAREA}")
    a(f"v_add_u32 v{vTx}, s22, v{vT0}")
    a(f"v_add_u32 v{vTx+1}, s22, v{vT0+1}")
    a("s_mul_i32 s29, s18, 229376")
    a("s_lshl_b32 s30, s21, 8")
    a("s_add_u32 s29, s29, s30")
    a("s_lshl_b32 s31, s18, 16")
    a("s_add_u32 s30, s31, s30")
    NK = 18
    DSLOT = [("o", 0), ("o", 4096), ("x", 0), ("x", 4096), ("x", 8192), ("x", 12288)]
    NS = len(DSLOT)
    def ddma(t):
        reg, off = DSLOT[t % NS]
        b = sAREA if reg == "o" else 27
        srd_, so = (SD, 29) if t < 14 else (SO, 30)
        for i in range(2):
            a(f"s_add_u32 m0, s{b}, {off + 1024*i}")
            a(f"buffer_load_dwordx4 v{vW8}, s[{srd_}:{srd_+3}], s{so} offen lds"); vq.issue(("d", t))
            a(f"s_add_u32 s31, s{so}, 128")
            a(f"s_add_u32 m0, s{b}, {off + 2048 + 1024*i}")
            a(f"buffer_load_dwordx4 v{vW8}, s[{srd_}:{srd_+3}], s31 offen lds"); vq.issue(("d", t))
            a(f"s_add_u32 s{so}, s{so}, 8192")
    ddma(0); ddma(1)
    lds_spin(a, "Y_GS", F_P1, 7)
    mark(a, 3)
    for t in range(2, NS - 1): ddma(t)
    DACC, DFR, DXB = 64, 192, 224
    def dtr(t, b):
        reg, off = DSLOT[t % NS]
        v = vT0 if reg == "o" else vTx
        f = DFR + 16*(t % 2) + 8*b
        for nt in range(2):
            a(f"ds_read_b64_tr_b16 v[{f+4*nt}:{f+4*nt+1}], v{v+nt} offset:{off+2048*b}"); lq.issue(("f", t))
            a(f"ds_read_b64_tr_b16 v[{f+4*nt+2}:{f+4*nt+3}], v{v+nt} offset:{off+2048*b+1024}"); lq.issue(("f", t))
    vH = 2
    def hread(t):
        for mt in range(2):
            xb = DXB + 8*(t % 2) + 4*mt
            if t < 14:
                u, q = t // 2, t % 2
                a(f"ds_read_b128 v[{xb}:{xb+3}], v{vH} offset:{u*4096 + mt*2048 + q*1024}")
            else:
                a(f"ds_read_b128 v[{xb}:{xb+3}], v{vH+1} offset:{(mt*4 + t - 14)*1024}")
            lq.issue(("f", t))
    a(f"v_add_u32 v{vH}, {L_H}, v{vL16}")
    a(f"v_add_u32 v{vH+1}, {L_QO}, v{vL16}")
    def dmm(t, b, nt, mt):
        f = DFR + 16*(t % 2) + 8*b + 4*nt; xb = DXB + 8*(t % 2) + 4*mt
        acc = DACC + 16*(4*mt + 2*b + nt)
        a(mfma(acc, f, xb, "0" if t == 0 else acc))
    vq.wait(("d", 0))
    dtr(0, 0); dtr(0, 1); hread(0)
    for t in range(NK):
        nx = t + 1 < NK
        lq.wait(("f", t))
        dmm(t, 0, 0, 0)
        if nx:
            vq.wait(("d", t+1)); dtr(t+1, 0)
        dmm(t, 0, 1, 0)
        dmm(t, 0, 0, 1)
        if nx: dtr(t+1, 1)
        dmm(t, 0, 1, 1)
        dmm(t, 1, 0, 0)
        if nx and t + 1 != 14: hread(t+1)
        dmm(t, 1, 1, 0)
        if t + NS - 1 < NK: ddma(t + NS - 1)
        dmm(t, 1, 0, 1)
        dmm(t, 1, 1, 1)
        if t + 1 == 14:
            mark(a, 4)
            a("s_barrier")
            mark(a, 5)
            hread(t+1)
    mark(a, 6)
    a("s_lshl_b32 s46, s18, 6")
    a("s_lshl_b32 s47, s17, 1")
    a("s_add_u32 s46, s46, s47")
    a("s_lshl_b32 s46, s46, 4")
    a("s_sub_u32 s47, s16, 4")
    a("s_lshl_b32 s47, s47, 2")
    a("s_add_u32 s46, s46, s47")
    a("s_lshl_b32 s46, s46, 11")
    a(f"s_add_u32 s46, s46, {PF_OFF}")
    n = 0
    for mt in range(2):
        for b in range(2):
            a(f"s_add_u32 s47, s46, {mt*32768 + b*4096}")
            for nt in range(2):
                acc = DACC + 16*(4*mt + 2*b + nt)
                o = 192 + 8*(n % 4); n += 1
                for d in range(8): a(f"v_cvt_pk_bf16_f32 v{o+d}, v{acc+2*d}, v{acc+2*d+1}")
                for q in range(2):
                    a(f"buffer_store_dwordx4 v[{o+4*q}:{o+4*q+3}], v{vL16}, s[{SWS}:{SWS+3}], s47 offen offset:{nt*2048 + q*1024} sc1")
    mark(a, 7)

def emit_att(a, vq, lq, dbg):
    pfx = "AT"
    Qf = [24, 28]; NEG = [32, 48]; S = [64, 80]; O = [96, 112]; Pp = 128; KR = 136; VR = 152; T = 184
    NIT = 16
    a("s_mov_b32 s19, s16")
    a("s_lshl_b32 s21, s18, 2")
    a("s_add_u32 s21, s21, s19")
    a("s_lshl_b32 s21, s21, 16")
    a(f"s_add_u32 s21, s21, {KF_OFF}")
    a("s_lshl_b32 s22, s17, 11")
    a("s_mov_b32 s74, 1")
    a("s_mov_b32 s75, 0")
    a(f"v_lshrrev_b32 v2, 5, v{vLn}")
    a(f"v_lshlrev_b32 v{vVo}, 8, v2")
    a(f"v_and_b32 v2, 15, v{vLn}")
    a(f"v_lshl_add_u32 v{vVo}, v2, 4, v{vVo}")
    a("s_mov_b32 s76, 0x0000ffff")
    a("s_mov_b32 s77, 0x0000ffff")
    vq.order, vq.done, lq.order, lq.done = [], 0, [], 0
    a("s_add_u32 s46, s21, s22")
    a(f"buffer_load_dwordx4 v[{Pp}:{Pp+3}], v{vL16}, s[{SWS}:{SWS+3}], s46 offen sc1"); vq.issue("ks")
    a(f"buffer_load_dwordx4 v[{Pp+4}:{Pp+7}], v{vL16}, s[{SWS}:{SWS+3}], s46 offen offset:1024 sc1"); vq.issue("ks")
    a(f"v_and_b32 v2, 27, v{vLn}")
    a(f"v_mov_b32 v{VR}, 0x3f803f80")
    if P["zrow"]:
        a("v_cmp_eq_u32 vcc, 16, v2")
        a(f"v_cndmask_b32 v{VR}, 0, v{VR}, vcc")
    for r in range(1, 32): a(f"v_mov_b32 v{VR+r}, v{VR}")
    refresh = []
    def kvload(t, site):
        if t % 2 == 0:
            a("s_andn2_b32 s96, s74, s75")
            a(f"s_cbranch_scc0 {pfx}_RF{site}")
            a.label(f"{pfx}_BK{site}")
            a("s_ff1_i32_b32 s96, s96")
            a("s_bitset1_b32 s75, s96")
            a("s_lshl_b32 s96, s96, 11")
            a("s_add_u32 s23, s96, s22")
            a("s_and_b32 s23, s23, 0xffff")
            refresh.append(site)
        else:
            a("s_add_u32 s23, s23, 1024")
        a("s_add_u32 s46, s21, s23")
        a(f"buffer_load_dwordx4 v[{KR+4*(t%4)}:{KR+4*(t%4)+3}], v{vL16}, s[{SWS}:{SWS+3}], s46 offen sc1"); vq.issue(("K", t))
        a(f"s_add_u32 s47, s46, {VF_OFF-KF_OFF}")
        a("s_mov_b64 exec, s[76:77]")
        r = VR + 8*(t % 4)
        a(f"buffer_load_dwordx4 v[{r}:{r+3}], v{vVo}, s[{SWS}:{SWS+3}], s47 offen sc1"); vq.issue(("V", t))
        a(f"buffer_load_dwordx4 v[{r+4}:{r+7}], v{vVo}, s[{SWS}:{SWS+3}], s47 offen offset:512 sc1"); vq.issue(("V", t))
        a("s_mov_b64 exec, -1")
    def emit_refresh(site):
        a.label(f"{pfx}_RF{site}")
        a("s_mov_b32 s96, 1")
        a("s_cmp_eq_u32 s75, -1")
        a(f"s_cbranch_scc1 {pfx}_BK{site}")
        a("s_mov_b32 s98, 0")
        a.label(f"{pfx}_RL{site}")
        a(f"v_mov_b32 v2, {F_MASK}")
        a("ds_read_b32 v3, v2")
        a("s_waitcnt lgkmcnt(0)")
        a("v_readfirstlane_b32 s96, v3")
        a("s_or_b32 s74, s74, s96")
        a("s_andn2_b32 s96, s74, s75")
        a(f"s_cbranch_scc1 {pfx}_BK{site}")
        poll_once(a)
        if TS_ENABLE[0]: a("s_add_u32 s64, s64, 1")
        a("s_andn2_b32 s96, s74, s75")
        a(f"s_cbranch_scc1 {pfx}_BK{site}")
        a(f"s_sleep {P['rsleep']}")
        a("s_add_u32 s98, s98, 1")
        a("s_and_b32 s96, s98, 15")
        a(f"s_cbranch_scc1 {pfx}_RL{site}")
        poll_dbg(a)
        a("s_andn2_b32 s96, s74, s75")
        a(f"s_cbranch_scc1 {pfx}_BK{site}")
        a("s_cmp_lt_u32 s98, 0x40000")
        a(f"s_cbranch_scc1 {pfx}_RL{site}")
        a("s_not_b32 s96, s75")
        a(f"s_branch {pfx}_BK{site}")
    if TS_ENABLE[0]: a("s_mov_b32 s64, s82")
    for t in range(3): kvload(t, f'P{t}')
    a("s_lshl_b32 s46, s19, 11")
    a(f"s_add_u32 s46, s46, {L_QO}")
    a(f"v_add_u32 v2, s46, v{vL16}")
    a(f"ds_read_b128 v[{Qf[0]}:{Qf[0]+3}], v2")
    a(f"ds_read_b128 v[{Qf[1]}:{Qf[1]+3}], v2 offset:1024")
    for q in range(2):
        for r in range(16): a(f"v_mov_b32 v{O[q]+r}, 0")
    a("s_waitcnt lgkmcnt(0)")
    lds_add1(a, F_QD)
    vq.wait("ks")
    m = T
    for q in range(2):
        a(mfma(S[0], Pp, Qf[q], "0"))
        a(mfma(S[1], Pp+4, Qf[q], "0"))
        a(f"v_max3_f32 v{m}, v{S[0]}, v{S[0]+1}, v{S[0]+2}")
        for r in range(3, 15, 2):
            a(f"v_max3_f32 v{m}, v{m}, v{S[0]+r}, v{S[0]+r+1}")
        a(f"v_max3_f32 v{m}, v{m}, v{S[0]+15}, v{S[1]}")
        for r in range(1, 15, 2):
            a(f"v_max3_f32 v{m}, v{m}, v{S[1]+r}, v{S[1]+r+1}")
        a(f"v_max_f32 v{m}, v{m}, v{S[1]+15}")
        a(f"v_mov_b32 v{m+1}, v{m}")
        a(f"v_permlane32_swap_b32 v{m}, v{m+1}")
        a(f"v_max_f32 v{m}, v{m}, v{m+1}")
        a(f"v_add_f32 v{m}, {hexf(ATT_OFFSET)}, v{m}")
        a(f"v_sub_f32 v{NEG[q]}, 0, v{m}")
        for r in range(1, 16): a(f"v_mov_b32 v{NEG[q]+r}, v{NEG[q]}")
    for r in range(4, 8): a(f"v_mov_b32 v{Pp+r}, 0")
    vq.wait(("K", 0))
    a(mfma(S[0], KR, Qf[0], NEG[0]))
    a("s_mov_b32 s26, 0")
    a("s_nop 7")
    mark(a, 4)
    a.label(f"{pfx}_LOOP")
    E = lambda r: a(f"v_exp_f32 v{r}, v{r}")
    C = lambda d, r: a(f"v_cvt_pk_bf16_f32 v{d}, v{r}, v{r+1}")
    entry = [("V", 0), ("V", 0), ("K", 1), ("V", 1), ("V", 1), ("K", 2), ("V", 2), ("V", 2)]
    vq.order = list(entry); vq.done = 0
    for t in range(4):
        for q in range(2):
            Sa = S[q]; Sb = S[1-q]
            if q == 0:
                a(mfma(Sb, KR + 4*(t % 4), Qf[1], NEG[1]))
            else:
                vq.wait(("K", t+1))
                a(mfma(Sb, KR + 4*((t+1) % 4), Qf[0], NEG[0]))
            E(Sa+0); E(Sa+1); E(Sa+2); E(Sa+3)
            C(Pp+0, Sa+0); E(Sa+4); C(Pp+1, Sa+2); E(Sa+5); E(Sa+6); E(Sa+7)
            tp = t if q == 1 else t - 1
            a(mfma(O[1-q], VR + 8*(tp % 4) + 4, Pp+4, O[1-q]))
            if q == 0: kvload(t + 3, f'L{t}')
            E(Sa+8); C(Pp+2, Sa+4); E(Sa+9); C(Pp+3, Sa+6); E(Sa+10); E(Sa+11)
            E(Sa+12); C(Pp+4, Sa+8)
            if q == 0: vq.wait(("V", t))
            a(mfma(O[q], VR + 8*(t % 4), Pp, O[q]))
            E(Sa+13); C(Pp+5, Sa+10); E(Sa+14); E(Sa+15)
            C(Pp+6, Sa+12); C(Pp+7, Sa+14)
    rem = vq.order[vq.done:]
    shift = lambda tg: (tg[0], tg[1] - 4)
    known_k = ("K", 4)
    tail = [shift(x) for x in vq.order[[i for i, x in enumerate(vq.order) if x == known_k][-1]+1:]]
    assert tail == entry, (tail, entry)
    a("s_add_u32 s26, s26, 1")
    a(f"s_cmp_lt_u32 s26, {NIT}")
    a(f"s_cbranch_scc1 {pfx}_LOOP")
    mark(a, 5)
    a(mfma(O[1], VR + 8*3 + 4, Pp+4, O[1]))
    a("s_waitcnt vmcnt(0)")
    lds_spin(a, f"{pfx}_QD", F_QD, 4)
    OWN, TT, QOWN = 184, 200, 216
    a("s_nop 15")
    for q in range(2):
        for r in range(9): a(f"v_mov_b32 v{OWN+r}, v{O[q]+r}")
        a("s_mov_b32 s46, 0x207")
        a("s_mov_b32 s47, 0x2ff")
        a(f"v_cmp_class_f32 s[78:79], v{OWN+8}, s47")
        for r in range(8):
            a(f"v_cmp_class_f32 vcc, v{OWN+r}, s46")
            a("s_or_b64 s[78:79], s[78:79], vcc")
        a("s_cmp_lg_u64 s[78:79], 0")
        a(f"s_cbranch_scc1 {pfx}_SLOW{q}")
        a.label(f"{pfx}_OUT{q}")
        a(f"v_rcp_f32 v{TT}, v{OWN+8}")
        for r in range(8): a(f"v_mul_f32 v{OWN+r}, v{OWN+r}, v{TT}")
        for d in range(4): a(f"v_cvt_pk_bf16_f32 v{TT+4+4*q+d}, v{OWN+2*d}, v{OWN+2*d+1}")
        a("s_lshl_b32 s46, s19, 10")
        a(f"s_add_u32 s46, s46, {L_QO + q*4096}")
        a(f"v_add_u32 v2, s46, v{vL16}")
        a(f"ds_write_b128 v2, v[{TT+4+4*q}:{TT+7+4*q}]")
        if dbg:
            a("s_lshl_b32 s46, s17, 1"); a(f"s_add_u32 s46, s46, {q}"); a("s_lshl_b32 s46, s46, 15")
            a("s_lshl_b32 s47, s18, 2"); a("s_add_u32 s47, s47, s19"); a("s_lshl_b32 s47, s47, 10")
            a("s_add_u32 s46, s46, s47"); a(f"s_add_u32 s46, s46, {OF_OFF}")
            a(f"buffer_store_dwordx4 v[{TT+4+4*q}:{TT+7+4*q}], v{vL16}, s[{SWS}:{SWS+3}], s46 offen")
    a("s_waitcnt vmcnt(0) lgkmcnt(0)")
    a(f"s_branch {pfx}_END")
    for site in refresh: emit_refresh(site)
    KS, VS, SS, NS_, PS = KR, VR, S[0], NEG[0], Pp
    for q in range(2):
        a.label(f"{pfx}_SLOW{q}")
        for r in range(4): a(f"v_mov_b32 v{QOWN+r}, v{Qf[q]+r}")
        a("s_mov_b32 s46, s21")
        a(f"v_mov_b32 v{TT}, 0xff800000")
        a("s_mov_b32 s26, 0")
        a.label(f"{pfx}_SL1_{q}")
        a(f"buffer_load_dwordx4 v[{KS}:{KS+3}], v{vL16}, s[{SWS}:{SWS+3}], s46 offen sc1")
        a("s_waitcnt vmcnt(0)")
        a(mfma(SS, KS, QOWN, "0"))
        for r in range(0, 16, 2):
            a(f"v_max3_f32 v{TT}, v{TT}, v{SS+r}, v{SS+r+1}")
        a("s_add_u32 s46, s46, 1024")
        a("s_add_u32 s26, s26, 1")
        a("s_cmp_lt_u32 s26, 64")
        a(f"s_cbranch_scc1 {pfx}_SL1_{q}")
        a(f"v_mov_b32 v{TT+1}, v{TT}")
        a(f"v_permlane32_swap_b32 v{TT}, v{TT+1}")
        a(f"v_max_f32 v{TT}, v{TT}, v{TT+1}")
        a(f"v_sub_f32 v{NS_}, 0, v{TT}")
        for r in range(1, 16): a(f"v_mov_b32 v{NS_+r}, v{NS_}")
        for r in range(16): a(f"v_mov_b32 v{OWN+r}, 0")
        a("s_mov_b32 s46, s21")
        a("s_mov_b32 s26, 0")
        a.label(f"{pfx}_SL2_{q}")
        a(f"buffer_load_dwordx4 v[{KS}:{KS+3}], v{vL16}, s[{SWS}:{SWS+3}], s46 offen sc1")
        a(f"s_add_u32 s47, s46, {VF_OFF-KF_OFF}")
        a("s_mov_b64 exec, s[76:77]")
        a(f"buffer_load_dwordx4 v[{VS}:{VS+3}], v{vVo}, s[{SWS}:{SWS+3}], s47 offen sc1")
        a(f"buffer_load_dwordx4 v[{VS+4}:{VS+7}], v{vVo}, s[{SWS}:{SWS+3}], s47 offen offset:512 sc1")
        a("s_mov_b64 exec, -1")
        a("s_waitcnt vmcnt(0)")
        a(mfma(SS, KS, QOWN, NS_))
        for r in range(16): E(SS+r)
        for d in range(8): C(PS+d, SS+2*d)
        a(mfma(OWN, VS, PS, OWN))
        a(mfma(OWN, VS+4, PS+4, OWN))
        a("s_add_u32 s46, s46, 1024")
        a("s_add_u32 s26, s26, 1")
        a("s_cmp_lt_u32 s26, 64")
        a(f"s_cbranch_scc1 {pfx}_SL2_{q}")
        a("s_nop 15")
        a(f"s_branch {pfx}_OUT{q}")
    a.label(f"{pfx}_END")

def gen_y(label, dbg=False):
    k = Kernel(label, 256, 512, LDS_TOTAL, 256, 100)
    a = k.a
    a("s_cmp_ge_u32 s2, 256")
    a("s_cbranch_scc1 Y_END")
    emit_y(a, dbg)
    a.label("Y_END")
    return k

if __name__ == "__main__":
    import sys
    out = sys.argv[1]; opts = sys.argv[2:]
    if "ts" in opts: TS_ENABLE[0] = True
    if "lnm" in opts: LNM[0] = True
    for o in opts:
        if "=" in o:
            kk, vv = o.split("="); P[kk] = int(vv)
    ks = [gen_y(NAME + "_kernel", dbg="dbg" in opts), gen_fin2("fin_kernel")]
    open(out, "w").write(build_file(ks))
```

```python
from common import *
import z
from z import lane_off8, tr_addr8, ln_loads, gen_fin2, PF_OFF, ATT_OFFSET
P = dict(gstart=20, prio_kv=3, prio_att=0, prio_g=0, gwait=1, zrow=1, psleep=8, rsleep=4)

L_X, L_AR, L_GR, L_H, L_QO, L_FL, LDS_TOTAL = 0, 65536, 90112, 122880, 151552, 159744, 163840
F_PUB, F_GO, F_QD, F_GS, F_P1, F_MASK = L_FL, L_FL+4, L_FL+8, L_FL+12, L_FL+16, L_FL+20
SQ, SG, SU, SX, SD, SO, SWS, SDBG = 4, 8, 12, 24, 32, 36, 40, 44
sAREA = 28
vLn, vW8, vWm, vT0, vTm, vX0, vL16, vVo, vTx = 1, 10, 11, 12, 14, 16, 20, 21, 22
LNX, LNT = 64, 96
ACC, FR, XB = 128, 192, 208
RING = 4
PD = RING - 1
LNM = [False]
FL_OFF = 0x3000000
vFO, vSN = 8, 9

def ids(a):
    a("v_and_b32 v1, 63, v0")
    a("v_lshrrev_b32 v2, 6, v0")
    a("v_readfirstlane_b32 s16, v2")
    if P.get("badmap"):
        a("s_lshr_b32 s20, s2, 5"); a("s_and_b32 s21, s2, 31")
    else:
        a("s_and_b32 s20, s2, 7")
        a("s_lshr_b32 s21, s2, 3")
    a("s_lshr_b32 s19, s21, 1")
    a("s_lshr_b32 s17, s20, 2")
    a("s_lshl_b32 s17, s17, 4")
    a("s_add_u32 s17, s17, s19")
    a("s_and_b32 s18, s20, 3")
    a("s_lshl_b32 s18, s18, 1")
    a("s_and_b32 s21, s21, 1")
    a("s_add_u32 s18, s18, s21")

def ln_addr_x(a):
    r, c = LNT+2, LNT+3
    a(f"v_lshrrev_b32 v{r}, 3, v{vLn}")
    a(f"v_and_b32 v{c}, 7, v{vLn}")
    a(f"v_lshlrev_b32 v{LNT}, 10, v{r}")
    a(f"v_lshl_add_u32 v{LNT}, v{c}, 4, v{LNT}")
    a("s_lshl_b32 s23, s17, 16")
    a("s_lshl_b32 s22, s16, 13")
    a("s_add_u32 s23, s23, s22")

def ln_addr_rest(a):
    r, c = LNT+2, LNT+3
    t = LNT+4
    a(f"v_lshrrev_b32 v{t}, 1, v{c}")
    a(f"v_lshlrev_b32 v{t}, 10, v{t}")
    a(f"v_and_b32 v{t+1}, 1, v{c}")
    a(f"v_lshl_add_u32 v{t}, v{t+1}, 9, v{t}")
    a("s_and_b32 s21, s16, 3")
    a("s_lshl_b32 s21, s21, 7")
    a("s_lshr_b32 s22, s16, 2")
    a("s_lshl_b32 s22, s22, 15")
    a("s_add_u32 s22, s22, s21")
    a(f"v_xor_b32 v{t+1}, v{r}, v{c}")
    a(f"v_lshl_add_u32 v{LNT+1}, v{t+1}, 4, v{t}")
    a(f"v_add_u32 v{LNT+1}, s22, v{LNT+1}")
    a(f"v_lshrrev_b32 v{t}, 5, v{vLn}")
    for q in range(4):
        a(f"v_add_u32 v{t+1}, {2*q}, v{t}")
        a(f"v_xor_b32 v{t+1}, v{t+1}, v{vLn}")
        a(f"v_lshlrev_b32 v{vX0+q}, 4, v{t+1}")

def ln_stats(a, vq):
    X = LNX
    ONES, A1, B1, A2, B2 = LNT+8, LNT+9, LNT+10, LNT+11, LNT+12
    a(f"v_mov_b32 v{ONES}, 0x3f803f80")
    for r in (A1, B1, A2, B2): a(f"v_mov_b32 v{r}, 0")
    if LNM[0]: mark(a, 8)
    for i in range(8):
        vq.wait(("x", i))
        if LNM[0] and i == 0: mark(a, 9)
        for d in range(4):
            r = X + 4*i + d
            a(f"v_dot2c_f32_bf16 v{A1 if d%2==0 else B1}, v{r}, v{ONES}")
            a(f"v_dot2c_f32_bf16 v{A2 if d%2==0 else B2}, v{r}, v{r}")
    a("s_nop 2")
    if LNM[0]: mark(a, 10)

def ln_norm(a, lq):
    X = LNX
    ONES, A1, B1, A2, B2 = LNT+8, LNT+9, LNT+10, LNT+11, LNT+12
    a(f"v_add_f32 v{A1}, v{A1}, v{B1}")
    a(f"v_add_f32 v{A2}, v{A2}, v{B2}")
    for mod in ("quad_perm:[1,0,3,2]", "quad_perm:[2,3,0,1]", "row_half_mirror"):
        a(f"v_add_f32_dpp v{A1}, v{A1}, v{A1} {mod} row_mask:0xf bank_mask:0xf")
        a(f"v_add_f32_dpp v{A2}, v{A2}, v{A2} {mod} row_mask:0xf bank_mask:0xf")
    a(f"v_mul_f32 v{A1}, 0x3b000000, v{A1}")
    a(f"v_mul_f32 v{A2}, 0x3b000000, v{A2}")
    a(f"v_fma_f32 v{A2}, -v{A1}, v{A1}, v{A2}")
    a(f"v_max_f32 v{A2}, 0, v{A2}")
    a(f"v_add_f32 v{A2}, 0x3727c5ac, v{A2}")
    SC, BI = LNT+14, LNT+13
    a(f"v_rsq_f32 v{SC}, v{A2}")
    a(f"v_mul_f32 v{BI}, v{A1}, v{SC}")
    a(f"v_sub_f32 v{BI}, 0, v{BI}")
    T = LNT+16
    for kx in range(32):
        r = X + kx; t = T + 2*(kx % 4)
        a(f"v_lshlrev_b32 v{t}, 16, v{r}")
        a(f"v_and_b32 v{t+1}, 0xffff0000, v{r}")
        a(f"v_fma_f32 v{t}, v{t}, v{SC}, v{BI}")
        a(f"v_fma_f32 v{t+1}, v{t+1}, v{SC}, v{BI}")
        a(f"v_cvt_pk_bf16_f32 v{r}, v{t}, v{t+1}")
        if kx % 4 == 3:
            i = kx // 4
            a(f"ds_write_b128 v{LNT+1}, v[{X+4*i}:{X+4*i+3}] offset:{i*4096}")
            lq.issue(("xw", i))

def dma_step(a, vq, kind, slot, tag):
    sl = slot * 2048
    if kind in "WV":
        for i in range(2):
            a(f"s_add_u32 m0, s{sAREA}, {sl + 1024*i}")
            a(f"buffer_load_dwordx4 v{vW8}, s[{SQ}:{SQ+3}], s29 offen lds"); vq.issue(tag)
            a(f"s_add_u32 s29, s29, {8*3072}")
    else:
        a(f"s_add_u32 m0, s{sAREA}, {sl}")
        a(f"buffer_load_dwordx4 v{vWm}, s[{SG}:{SG+3}], s30 offen lds"); vq.issue(tag)
        a(f"s_add_u32 m0, s{sAREA}, {sl + 1024}")
        a(f"buffer_load_dwordx4 v{vWm}, s[{SU}:{SU+3}], s30 offen lds"); vq.issue(tag)
        a(f"s_add_u32 s30, s30, {16*3584}")

def unit_body(a, vq, lq, kind, wrap, hook_step=None, dma_pre=None):
    def trr(g):
        sl = (g % RING) * 2048
        f = FR + 8*(g % 2)
        for nt in range(2):
            if kind in "WV":
                a(f"ds_read_b64_tr_b16 v[{f+4*nt}:{f+4*nt+1}], v{vT0+nt} offset:{sl}"); lq.issue(("f", g))
                a(f"ds_read_b64_tr_b16 v[{f+4*nt+2}:{f+4*nt+3}], v{vT0+nt} offset:{sl+512}"); lq.issue(("f", g))
            else:
                a(f"ds_read_b64_tr_b16 v[{f+4*nt}:{f+4*nt+1}], v{vTm} offset:{sl+nt*1024}"); lq.issue(("f", g))
                a(f"ds_read_b64_tr_b16 v[{f+4*nt+2}:{f+4*nt+3}], v{vTm} offset:{sl+nt*1024+256}"); lq.issue(("f", g))
    def xread(g):
        for mt in range(2):
            xb = XB + 8*(g % 2) + 4*mt
            a(f"ds_read_b128 v[{xb}:{xb+3}], v{vX0 + g%4} offset:{mt*32768 + g*1024}"); lq.issue(("f", g))
    def mm(g, nt, mt):
        f = FR + 8*(g % 2) + 4*nt; xb = XB + 8*(g % 2) + 4*mt
        acc = ACC + 16*(2*mt+nt)
        c = "0" if g == 0 else acc
        a(mfma(acc, xb, f, c) if kind == "V" else mfma(acc, f, xb, c))
    vq.wait(("w", 0))
    trr(0); xread(0)
    for g in range(32):
        nx = g + 1 < 32
        lq.wait(("f", g))
        mm(g, 0, 0)
        if nx:
            vq.wait(("w", g+1)); trr(g+1)
        mm(g, 1, 0)
        if nx: xread(g+1)
        mm(g, 0, 1)
        if g + PD < 32 or wrap:
            if dma_pre: dma_pre(g + PD)
            dma_step(a, vq, kind, (g+PD) % RING, ("w", g+PD))
        mm(g, 1, 1)
        if hook_step: hook_step(g)

def glu_epilogue(a, lq, sdst):
    a(f"s_mov_b32 s31, {hexf(-1.4426950408889634)}")
    H = XB
    for mt in range(2):
        g = ACC + 32*mt; u = g + 16
        for i in range(16): a(f"v_mul_f32 v{g+i}, s31, v{g+i}")
        for i in range(16): a(f"v_exp_f32 v{g+i}, v{g+i}")
        for i in range(16): a(f"v_add_f32 v{g+i}, 1.0, v{g+i}")
        for i in range(16): a(f"v_rcp_f32 v{g+i}, v{g+i}")
        for i in range(16): a(f"v_mul_f32 v{g+i}, v{g+i}, v{u+i}")
        for d in range(8): a(f"v_cvt_pk_bf16_f32 v{H+8*mt+d}, v{g+2*d}, v{g+2*d+1}")
    a(f"v_add_u32 v2, s{sdst}, v{vL16}")
    for mt in range(2):
        for q in range(2):
            a(f"ds_write_b128 v2, v[{H+8*mt+4*q}:{H+8*mt+4*q+3}] offset:{mt*2048 + q*1024}"); lq.issue("hw")

def lds_add1(a, addr, ret=None):
    a("s_mov_b64 exec, 1")
    a(f"v_mov_b32 v2, {addr}")
    a("v_mov_b32 v3, 1")
    if ret is None: a("ds_add_u32 v2, v3")
    else: a(f"ds_add_rtn_u32 v{ret}, v2, v3")
    a("s_mov_b64 exec, -1")

def lds_spin(a, lab, addr, val, sleep=1, cmp="ge"):
    a(f"v_mov_b32 v2, {addr}")
    a.label(lab)
    a("ds_read_b32 v3, v2")
    a("s_waitcnt lgkmcnt(0)")
    a("v_readfirstlane_b32 s46, v3")
    a(f"s_cmp_{cmp}_u32 s46, {val}")
    a(f"s_cbranch_scc1 {lab}_OK")
    a(f"s_sleep {sleep}")
    a(f"s_branch {lab}")
    a.label(f"{lab}_OK")

def dbg_word(a, sdst):
    a(f"s_lshr_b32 s{sdst}, s18, 2")
    a(f"s_lshl_b32 s{sdst}, s{sdst}, 7")
    a("s_and_b32 s47, s18, 3")
    a("s_lshl_b32 s47, s47, 2")
    a(f"s_add_u32 s{sdst}, s{sdst}, s47")

def snap_load(a, vq):
    a(f"buffer_load_dword v{vSN}, v{vFO}, s[{SWS}:{SWS+3}], s99 offen sc1"); vq.issue("snap")

def publish(a, pfx):
    a("s_waitcnt vmcnt(0)")
    if not LNM[0]: mark(a, 10)
    a("s_mov_b64 exec, 1")
    a(f"v_mov_b32 v2, {F_PUB}")
    a("v_mov_b32 v3, 1")
    a("ds_add_rtn_u32 v4, v2, v3")
    a(f"v_mov_b32 v5, {F_GO}")
    a("ds_add_u32 v5, v3")
    a("s_waitcnt lgkmcnt(0)")
    a("v_readfirstlane_b32 s46, v4")
    a("s_cmp_eq_u32 s46, 1")
    a(f"s_cbranch_scc0 {pfx}_NOPUB")
    a("s_lshl_b32 s47, 1, s17")
    a("s_mov_b32 exec_lo, s47")
    a(f"v_add_u32 v4, 1, v{vSN}")
    a(f"buffer_store_dword v4, v{vFO}, s[{SWS}:{SWS+3}], s99 offen sc1")
    a("s_mov_b32 exec_lo, 1")
    a("v_mov_b32 v3, s47")
    dbg_word(a, 46)
    a("v_mov_b32 v2, s46")
    a(f"global_atomic_or v2, v3, s[{SDBG}:{SDBG+1}]")
    a.label(f"{pfx}_NOPUB")
    a("s_mov_b64 exec, -1")
    if not LNM[0]: mark(a, 11)

def mirror(a):
    a("s_or_b32 s74, s74, s96")
    a("s_mov_b64 exec, 1")
    a(f"v_mov_b32 v2, {F_MASK}")
    a("v_mov_b32 v3, s96")
    a("ds_or_b32 v2, v3")
    a("s_mov_b64 exec, -1")

def poll_once(a):
    a(f"buffer_load_dword v3, v{vFO}, s[{SWS}:{SWS+3}], s99 offen sc1")
    a("s_waitcnt vmcnt(0)")
    a(f"v_cmp_ne_u32 vcc, v3, v{vSN}")
    a("s_lshr_b64 s[96:97], vcc, s17")
    mirror(a)

def poll_dbg(a):
    dbg_word(a, 46)
    a("v_mov_b32 v2, s46")
    a(f"global_load_dword v3, v2, s[{SDBG}:{SDBG+1}] sc1")
    a("s_waitcnt vmcnt(0)")
    a("v_readfirstlane_b32 s96, v3")
    a("s_mov_b32 s97, s96")
    a("s_lshr_b64 s[96:97], s[96:97], s17")
    mirror(a)

def emit_y(a, dbg=False):
    sc1 = " sc1"
    srd(a, SX, KA_X, 2097152); srd(a, SQ, KA_WQKV, 512*1536*2)
    srd(a, SG, KA_WG, 512*1792*2); srd(a, SU, KA_WU, 512*1792*2)
    srd(a, SD, KA_WD, 1792*512*2); srd(a, SO, KA_WO, 512*512*2); srd(a, SWS, KA_WS, WS_BYTES)
    a(f"s_load_dwordx2 s[{SDBG}:{SDBG+1}], s[0:1], {KA_DBG}")
    ids(a)
    ln_addr_x(a)
    a("s_waitcnt lgkmcnt(0)")
    mark(a, 0)
    vq = Q(a, "vmcnt", 63); lq = Q(a, "lgkmcnt", 15)
    ln_loads(a, vq)
    a("s_barrier")
    ln_addr_rest(a)
    a(f"v_lshlrev_b32 v{vL16}, 4, v{vLn}")
    a("s_lshl_b32 s28, s16, 13")
    a(f"s_add_u32 s21, s28, {L_AR}")
    a(f"s_add_u32 s22, s28, {L_GR - 4*8192}")
    a("s_cmp_lt_u32 s16, 4")
    a(f"s_cselect_b32 s{sAREA}, s21, s22")
    lane_off8(a, vW8, 3072)
    a(f"v_lshrrev_b32 v2, 2, v{vLn}")
    a(f"v_mul_u32_u24 v{vWm}, 3584, v2")
    a(f"v_and_b32 v2, 3, v{vLn}")
    a(f"v_lshl_add_u32 v{vWm}, v2, 4, v{vWm}")
    a("s_add_u32 s21, s16, 1")
    a("s_cmp_eq_u32 s21, 3")
    a("s_cselect_b32 s21, 0, s21")
    a("s_lshl_b32 s29, s21, 10")
    a("s_lshl_b32 s21, s18, 7")
    a("s_add_u32 s29, s29, s21")
    a("s_sub_u32 s21, s16, 4")
    a("s_lshl_b32 s21, s21, 6")
    a("s_mul_i32 s30, s18, 448")
    a("s_add_u32 s30, s30, s21")
    tr_addr8(a, vT0, 10, f"s{sAREA}")
    a(f"v_lshrrev_b32 v2, 5, v{vLn}")
    a(f"v_lshlrev_b32 v{vTm}, 9, v2")
    a(f"v_bfe_u32 v2, v{vLn}, 2, 2")
    a(f"v_lshl_add_u32 v{vTm}, v2, 6, v{vTm}")
    a(f"v_bfe_u32 v2, v{vLn}, 4, 1")
    a(f"v_lshl_add_u32 v{vTm}, v2, 5, v{vTm}")
    a(f"v_and_b32 v2, 3, v{vLn}")
    a(f"v_lshl_add_u32 v{vTm}, v2, 3, v{vTm}")
    a(f"v_add_u32 v{vTm}, s{sAREA}, v{vTm}")
    a(f"v_and_b32 v{vFO}, 31, v{vLn}")
    a(f"v_lshlrev_b32 v{vFO}, 7, v{vFO}")
    a("s_lshl_b32 s99, s18, 12")
    a(f"s_add_u32 s99, s99, {FL_OFF}")
    a("v_mov_b32 v2, 0")
    a(f"v_lshlrev_b32 v3, 2, v{vLn}")
    a(f"v_add_u32 v3, {L_FL}, v3")
    a("ds_write_b32 v3, v2")
    T0 = LNT + 24
    vqx = Q(Asm(), "vmcnt", 63)
    base = list(vq.order)
    a("s_cmp_ge_u32 s16, 4")
    a("s_cbranch_scc1 Y_EG")
    a("s_cmp_eq_u32 s16, 3")
    a("s_cbranch_scc1 Y_E3")
    for g in range(PD): dma_step(a, vq, "W", g, ("w", g))
    snap_load(a, vq)
    ln_stats(a, vq)
    a("s_branch Y_PRIMED")
    a.label("Y_E3")
    vq.order, vq.done = list(base), 0
    a(f"v_and_b32 v2, 31, v{vLn}")
    a(f"v_mul_u32_u24 v{T0}, 3072, v2")
    a(f"v_lshrrev_b32 v2, 5, v{vLn}")
    a(f"v_lshl_add_u32 v{T0+1}, v2, 10, v{T0}")
    a("s_lshl_b32 s21, s19, 5")
    a("s_mul_i32 s48, s21, 3072")
    a("s_lshl_b32 s22, s18, 7")
    a("s_add_u32 s48, s48, s22")
    a(f"buffer_load_dword v{T0+2}, v{T0+1}, s[{SQ}:{SQ+3}], s48 offen offset:1024"); vq.issue("t")
    a("s_mov_b32 exec_hi, 0")
    a(f"buffer_load_dword v{T0+3}, v{T0}, s[{SQ}:{SQ+3}], s48 offen"); vq.issue("t")
    a("s_mov_b32 exec_hi, -1")
    snap_load(a, vq)
    a(f"v_lshrrev_b32 v2, 2, v{vLn}")
    a(f"v_and_b32 v3, 3, v{vLn}")
    a(f"v_mul_u32_u24 v{T0}, 3584, v2")
    a(f"v_lshl_add_u32 v{T0}, v3, 7, v{T0}")
    a("s_mul_i32 s47, s21, 3584")
    a("s_mul_i32 s22, s18, 448")
    a("s_add_u32 s47, s47, s22")
    a(f"s_add_u32 s48, s47, {16*3584}")
    ln_stats(a, vq)
    a(f"buffer_load_dword v{T0+4}, v{T0}, s[{SG}:{SG+3}], s47 offen")
    a(f"buffer_load_dword v{T0+5}, v{T0}, s[{SU}:{SU+3}], s47 offen")
    a(f"buffer_load_dword v{T0+6}, v{T0}, s[{SG}:{SG+3}], s48 offen")
    a(f"buffer_load_dword v{T0+7}, v{T0}, s[{SU}:{SU+3}], s48 offen")
    a("s_branch Y_PRIMED")
    a.label("Y_EG")
    vq.order, vq.done = list(base), 0
    ln_stats(a, vq)
    a.label("Y_PRIMED")
    ln_norm(a, lq)
    a("s_waitcnt lgkmcnt(0)"); lq.known_all()
    if LNM[0]: mark(a, 11)
    a("s_barrier")
    mark(a, 1)
    def reset(nprimed):
        vq.order = [("w", g) for g in range(PD) for _ in range(2)] if nprimed else []
        vq.done = 0
        lq.order, lq.done = [], 0
    a("s_cmp_ge_u32 s16, 4")
    a("s_cbranch_scc1 Y_G")
    a("s_cmp_eq_u32 s16, 1")
    a("s_cbranch_scc1 Y_V")
    a("s_cmp_eq_u32 s16, 2")
    a("s_cbranch_scc1 Y_Q")
    a("s_cmp_eq_u32 s16, 3")
    a("s_cbranch_scc1 Y_POLLER")
    TMP = 224
    def k_epilogue():
        a("s_lshl_b32 s46, s18, 18")
        a("s_lshl_b32 s47, s17, 11")
        a("s_add_u32 s46, s46, s47")
        a(f"s_add_u32 s46, s46, {KF_OFF}")
        for nt in range(2):
            for hh in range(2):
                for mt in range(2):
                    acc = ACC + 16*(2*mt+nt) + 8*hh
                    rr = TMP + 4*((2*hh+mt) % 4) + 16*nt
                    for d in range(4): a(f"v_cvt_pk_bf16_f32 v{rr+d}, v{acc+2*d}, v{acc+2*d+1}")
                    a(f"buffer_store_dwordx4 v[{rr}:{rr+3}], v{vL16}, s[{SWS}:{SWS+3}], s46 offen offset:{mt*1024}{sc1}"); vq.issue("st")
                a("s_add_u32 s46, s46, 65536")
    def v_epilogue():
        a("s_lshl_b32 s46, s18, 18")
        a("s_lshl_b32 s47, s17, 11")
        a("s_add_u32 s46, s46, s47")
        a(f"s_add_u32 s46, s46, {VF_OFF}")
        a(f"v_bfe_u32 v2, v{vLn}, 4, 1")
        a(f"v_lshlrev_b32 v3, 16, v2")
        a(f"v_lshrrev_b32 v2, 5, v{vLn}")
        a(f"v_lshl_add_u32 v3, v2, 8, v3")
        a(f"v_and_b32 v2, 15, v{vLn}")
        a(f"v_lshl_add_u32 v5, v2, 4, v3")
        for nt in range(2):
            for mt in range(2):
                for g in range(2):
                    acc = ACC + 16*(2*mt+nt) + 8*g
                    rr = TMP + 4*((2*mt+g) % 4) + 16*nt
                    for d in range(4): a(f"v_cvt_pk_bf16_f32 v{rr+d}, v{acc+2*d}, v{acc+2*d+1}")
                    a(f"buffer_store_dwordx4 v[{rr}:{rr+3}], v5, s[{SWS}:{SWS+3}], s46 offen offset:{mt*1024+g*512}{sc1}"); vq.issue("st")
            a("s_add_u32 s46, s46, 131072")
    for kindc, lab, epi in (("W", "Y_K", k_epilogue), ("V", "Y_V", v_epilogue)):
        a.label(lab)
        reset(True)
        a(f"s_setprio {P['prio_kv']}")
        def hook_step(g, lab=lab):
            if lab == "Y_K" and g == P["gstart"]:
                a(f"v_mov_b32 v2, {F_GS}")
                a("v_mov_b32 v3, 1")
                a("ds_write_b32 v2, v3"); lq.issue("gs")
        unit_body(a, vq, lq, kindc, False, hook_step)
        if not LNM[0]: mark(a, 8)
        epi()
        if not LNM[0]: mark(a, 9)
        lds_add1(a, F_P1)
        publish(a, lab)
        mark(a, 2)
        a("s_branch Y_AWAIT")
    a.label("Y_Q")
    reset(True)
    a(f"s_setprio {P['prio_kv']}")
    unit_body(a, vq, lq, "W", False)
    a("s_mov_b32 s31, 0x3eb8aa3b")
    a(f"v_add_u32 v2, {L_QO}, v{vL16}")
    for nt in range(2):
        for hh in range(2):
            for mt in range(2):
                acc = ACC + 16*(2*mt+nt) + 8*hh
                rr = TMP + 4*((2*hh+mt) % 4) + 16*nt
                for d in range(8): a(f"v_mul_f32 v{acc+d}, s31, v{acc+d}")
                for d in range(4): a(f"v_cvt_pk_bf16_f32 v{rr+d}, v{acc+2*d}, v{acc+2*d+1}")
                a(f"ds_write_b128 v2, v[{rr}:{rr+3}] offset:{((2*nt+hh)*2+mt)*1024}"); lq.issue("qw")
    a("s_waitcnt lgkmcnt(0)")
    lds_add1(a, F_P1)
    lds_add1(a, F_GO)
    mark(a, 2)
    a("s_branch Y_AWAIT")
    a.label("Y_POLLER")
    if P["gwait"]: lds_spin(a, "Y_PW", F_GS, 1)
    a(f"v_lshrrev_b32 v2, 3, v{vLn}")
    a(f"v_lshlrev_b32 v4, 10, v2")
    a(f"v_and_b32 v2, 7, v{vLn}")
    a(f"v_lshl_add_u32 v4, v2, 7, v4")
    a("s_mul_i32 s21, s18, 224")
    a("s_mul_i32 s22, s19, 14")
    a("s_add_u32 s21, s21, s22")
    a("s_lshl_b32 s21, s21, 10")
    a(f"buffer_load_dword v5, v4, s[{SD}:{SD+3}], s21 offen")
    a("s_add_u32 s21, s21, 8192")
    a("s_mov_b32 exec_hi, 0x0000ffff")
    a(f"buffer_load_dword v6, v4, s[{SD}:{SD+3}], s21 offen")
    a("s_mov_b32 exec_hi, 0")
    a("s_lshl_b32 s21, s18, 6")
    a("s_lshl_b32 s22, s19, 2")
    a("s_add_u32 s21, s21, s22")
    a("s_lshl_b32 s21, s21, 10")
    a(f"buffer_load_dword v7, v4, s[{SO}:{SO+3}], s21 offen")
    a("s_mov_b64 exec, -1")
    a("s_waitcnt vmcnt(0)")
    mark(a, 2)
    a("s_mov_b32 s74, 0")
    a.label("Y_POLL")
    poll_once(a)
    a(f"v_mov_b32 v2, {F_GO}")
    a("ds_read_b32 v3, v2")
    a("s_waitcnt lgkmcnt(0)")
    a("v_readfirstlane_b32 s46, v3")
    a("s_cmp_ge_u32 s46, 3")
    a("s_cbranch_scc1 Y_AWAIT")
    a(f"s_sleep {P['psleep']}")
    a("s_branch Y_POLL")
    a.label("Y_AWAIT")
    a(f"s_setprio {P['prio_att']}")
    lds_spin(a, "Y_SPIN", F_GO, 3)
    mark(a, 3)
    emit_att(a, vq, lq, dbg)
    mark(a, 6)
    a("s_barrier")
    a("s_branch Y_END")
    a.label("Y_G")
    a(f"s_setprio {P['prio_g']}")
    vq.order, vq.done, lq.order, lq.done = [], 0, [], 0
    if P["gwait"]: lds_spin(a, "Y_GW", F_GS, 1)
    for g in range(PD): dma_step(a, vq, "M", g, ("w", g))
    mark(a, 8)
    a("s_sub_u32 s48, s16, 4")
    a("s_lshl_b32 s48, s48, 12")
    a(f"s_add_u32 s48, s48, {L_H}")
    a("s_mov_b32 s49, 0")
    a.label("Y_GLOOP")
    vq.order = [("w", g) for g in range(PD) for _ in range(2)]; vq.done = 0
    lq.order, lq.done = [], 0
    def dma_pre(gg):
        if gg == 32: a(f"s_sub_u32 s30, s30, {512*3584 - 256}")
    unit_body(a, vq, lq, "M", True, None, dma_pre)
    glu_epilogue(a, lq, 48)
    a("s_add_u32 s48, s48, 16384")
    a("s_add_u32 s49, s49, 1")
    a("s_cmp_eq_u32 s16, 7")
    a("s_cbranch_scc1 Y_GDONE")
    a("s_cmp_lt_u32 s49, 2")
    a("s_cbranch_scc1 Y_GLOOP")
    a.label("Y_GDONE")
    a("s_waitcnt vmcnt(0) lgkmcnt(0)")
    lds_add1(a, F_P1)
    mark(a, 2)
    vq.order, vq.done, lq.order, lq.done = [], 0, [], 0
    lane_off8(a, vW8, 1024)
    tr_addr8(a, vT0, 9, f"s{sAREA}")
    a("s_sub_u32 s21, s16, 4")
    a("s_lshl_b32 s27, s21, 14")
    a(f"s_sub_u32 s22, s27, s{sAREA}")
    a(f"v_add_u32 v{vTx}, s22, v{vT0}")
    a(f"v_add_u32 v{vTx+1}, s22, v{vT0+1}")
    a("s_mul_i32 s29, s18, 229376")
    a("s_lshl_b32 s30, s21, 8")
    a("s_add_u32 s29, s29, s30")
    a("s_lshl_b32 s31, s18, 16")
    a("s_add_u32 s30, s31, s30")
    NK = 18
    DSLOT = [("o", 0), ("o", 4096), ("x", 0), ("x", 4096), ("x", 8192), ("x", 12288)]
    NS = len(DSLOT)
    def ddma(t):
        reg, off = DSLOT[t % NS]
        b = sAREA if reg == "o" else 27
        srd_, so = (SD, 29) if t < 14 else (SO, 30)
        for i in range(2):
            a(f"s_add_u32 m0, s{b}, {off + 1024*i}")
            a(f"buffer_load_dwordx4 v{vW8}, s[{srd_}:{srd_+3}], s{so} offen lds"); vq.issue(("d", t))
            a(f"s_add_u32 s31, s{so}, 128")
            a(f"s_add_u32 m0, s{b}, {off + 2048 + 1024*i}")
            a(f"buffer_load_dwordx4 v{vW8}, s[{srd_}:{srd_+3}], s31 offen lds"); vq.issue(("d", t))
            a(f"s_add_u32 s{so}, s{so}, 8192")
    ddma(0); ddma(1)
    lds_spin(a, "Y_GS", F_P1, 7)
    mark(a, 3)
    for t in range(2, NS - 1): ddma(t)
    DACC, DFR, DXB = 64, 192, 224
    def dtr(t, b):
        reg, off = DSLOT[t % NS]
        v = vT0 if reg == "o" else vTx
        f = DFR + 16*(t % 2) + 8*b
        for nt in range(2):
            a(f"ds_read_b64_tr_b16 v[{f+4*nt}:{f+4*nt+1}], v{v+nt} offset:{off+2048*b}"); lq.issue(("f", t))
            a(f"ds_read_b64_tr_b16 v[{f+4*nt+2}:{f+4*nt+3}], v{v+nt} offset:{off+2048*b+1024}"); lq.issue(("f", t))
    vH = 2
    def hread(t):
        for mt in range(2):
            xb = DXB + 8*(t % 2) + 4*mt
            if t < 14:
                u, q = t // 2, t % 2
                a(f"ds_read_b128 v[{xb}:{xb+3}], v{vH} offset:{u*4096 + mt*2048 + q*1024}")
            else:
                a(f"ds_read_b128 v[{xb}:{xb+3}], v{vH+1} offset:{(mt*4 + t - 14)*1024}")
            lq.issue(("f", t))
    a(f"v_add_u32 v{vH}, {L_H}, v{vL16}")
    a(f"v_add_u32 v{vH+1}, {L_QO}, v{vL16}")
    def dmm(t, b, nt, mt):
        f = DFR + 16*(t % 2) + 8*b + 4*nt; xb = DXB + 8*(t % 2) + 4*mt
        acc = DACC + 16*(4*mt + 2*b + nt)
        a(mfma(acc, f, xb, "0" if t == 0 else acc))
    vq.wait(("d", 0))
    dtr(0, 0); dtr(0, 1); hread(0)
    for t in range(NK):
        nx = t + 1 < NK
        lq.wait(("f", t))
        dmm(t, 0, 0, 0)
        if nx:
            vq.wait(("d", t+1)); dtr(t+1, 0)
        dmm(t, 0, 1, 0)
        dmm(t, 0, 0, 1)
        if nx: dtr(t+1, 1)
        dmm(t, 0, 1, 1)
        dmm(t, 1, 0, 0)
        if nx and t + 1 != 14: hread(t+1)
        dmm(t, 1, 1, 0)
        if t + NS - 1 < NK: ddma(t + NS - 1)
        dmm(t, 1, 0, 1)
        dmm(t, 1, 1, 1)
        if t + 1 == 14:
            mark(a, 4)
            a("s_barrier")
            mark(a, 5)
            hread(t+1)
    mark(a, 6)
    a("s_lshl_b32 s46, s18, 6")
    a("s_lshl_b32 s47, s17, 1")
    a("s_add_u32 s46, s46, s47")
    a("s_lshl_b32 s46, s46, 4")
    a("s_sub_u32 s47, s16, 4")
    a("s_lshl_b32 s47, s47, 2")
    a("s_add_u32 s46, s46, s47")
    a("s_lshl_b32 s46, s46, 11")
    a(f"s_add_u32 s46, s46, {PF_OFF}")
    n = 0
    for mt in range(2):
        for b in range(2):
            a(f"s_add_u32 s47, s46, {mt*32768 + b*4096}")
            for nt in range(2):
                acc = DACC + 16*(4*mt + 2*b + nt)
                o = 192 + 8*(n % 4); n += 1
                for d in range(8): a(f"v_cvt_pk_bf16_f32 v{o+d}, v{acc+2*d}, v{acc+2*d+1}")
                for q in range(2):
                    a(f"buffer_store_dwordx4 v[{o+4*q}:{o+4*q+3}], v{vL16}, s[{SWS}:{SWS+3}], s47 offen offset:{nt*2048 + q*1024} sc1")
    mark(a, 7)

def emit_att(a, vq, lq, dbg):
    pfx = "AT"
    Qf = [24, 28]; NEG = [32, 48]; S = [64, 80]; O = [96, 112]; Pp = 128; KR = 136; VR = 152; T = 184
    NIT = 16
    a("s_mov_b32 s19, s16")
    a("s_lshl_b32 s21, s18, 2")
    a("s_add_u32 s21, s21, s19")
    a("s_lshl_b32 s21, s21, 16")
    a(f"s_add_u32 s21, s21, {KF_OFF}")
    a("s_lshl_b32 s22, s17, 11")
    a("s_mov_b32 s74, 1")
    a("s_mov_b32 s75, 0")
    a(f"v_lshrrev_b32 v2, 5, v{vLn}")
    a(f"v_lshlrev_b32 v{vVo}, 8, v2")
    a(f"v_and_b32 v2, 15, v{vLn}")
    a(f"v_lshl_add_u32 v{vVo}, v2, 4, v{vVo}")
    a("s_mov_b32 s76, 0x0000ffff")
    a("s_mov_b32 s77, 0x0000ffff")
    vq.order, vq.done, lq.order, lq.done = [], 0, [], 0
    a("s_add_u32 s46, s21, s22")
    a(f"buffer_load_dwordx4 v[{Pp}:{Pp+3}], v{vL16}, s[{SWS}:{SWS+3}], s46 offen sc1"); vq.issue("ks")
    a(f"buffer_load_dwordx4 v[{Pp+4}:{Pp+7}], v{vL16}, s[{SWS}:{SWS+3}], s46 offen offset:1024 sc1"); vq.issue("ks")
    a(f"v_and_b32 v2, 27, v{vLn}")
    a(f"v_mov_b32 v{VR}, 0x3f803f80")
    if P["zrow"]:
        a("v_cmp_eq_u32 vcc, 16, v2")
        a(f"v_cndmask_b32 v{VR}, 0, v{VR}, vcc")
    for r in range(1, 32): a(f"v_mov_b32 v{VR+r}, v{VR}")
    refresh = []
    def kvload(t, site):
        if t % 2 == 0:
            a("s_andn2_b32 s96, s74, s75")
            a(f"s_cbranch_scc0 {pfx}_RF{site}")
            a.label(f"{pfx}_BK{site}")
            a("s_ff1_i32_b32 s96, s96")
            a("s_bitset1_b32 s75, s96")
            a("s_lshl_b32 s96, s96, 11")
            a("s_add_u32 s23, s96, s22")
            a("s_and_b32 s23, s23, 0xffff")
            refresh.append(site)
        else:
            a("s_add_u32 s23, s23, 1024")
        a("s_add_u32 s46, s21, s23")
        a(f"buffer_load_dwordx4 v[{KR+4*(t%4)}:{KR+4*(t%4)+3}], v{vL16}, s[{SWS}:{SWS+3}], s46 offen sc1"); vq.issue(("K", t))
        a(f"s_add_u32 s47, s46, {VF_OFF-KF_OFF}")
        a("s_mov_b64 exec, s[76:77]")
        r = VR + 8*(t % 4)
        a(f"buffer_load_dwordx4 v[{r}:{r+3}], v{vVo}, s[{SWS}:{SWS+3}], s47 offen sc1"); vq.issue(("V", t))
        a(f"buffer_load_dwordx4 v[{r+4}:{r+7}], v{vVo}, s[{SWS}:{SWS+3}], s47 offen offset:512 sc1"); vq.issue(("V", t))
        a("s_mov_b64 exec, -1")
    def emit_refresh(site):
        a.label(f"{pfx}_RF{site}")
        a("s_mov_b32 s96, 1")
        a("s_cmp_eq_u32 s75, -1")
        a(f"s_cbranch_scc1 {pfx}_BK{site}")
        a("s_mov_b32 s98, 0")
        a.label(f"{pfx}_RL{site}")
        a(f"v_mov_b32 v2, {F_MASK}")
        a("ds_read_b32 v3, v2")
        a("s_waitcnt lgkmcnt(0)")
        a("v_readfirstlane_b32 s96, v3")
        a("s_or_b32 s74, s74, s96")
        a("s_andn2_b32 s96, s74, s75")
        a(f"s_cbranch_scc1 {pfx}_BK{site}")
        poll_once(a)
        if TS_ENABLE[0]: a("s_add_u32 s64, s64, 1")
        a("s_andn2_b32 s96, s74, s75")
        a(f"s_cbranch_scc1 {pfx}_BK{site}")
        a(f"s_sleep {P['rsleep']}")
        a("s_add_u32 s98, s98, 1")
        a("s_and_b32 s96, s98, 15")
        a(f"s_cbranch_scc1 {pfx}_RL{site}")
        poll_dbg(a)
        a("s_andn2_b32 s96, s74, s75")
        a(f"s_cbranch_scc1 {pfx}_BK{site}")
        a("s_cmp_lt_u32 s98, 0x40000")
        a(f"s_cbranch_scc1 {pfx}_RL{site}")
        a("s_not_b32 s96, s75")
        a(f"s_branch {pfx}_BK{site}")
    if TS_ENABLE[0]: a("s_mov_b32 s64, s82")
    for t in range(3): kvload(t, f'P{t}')
    a("s_lshl_b32 s46, s19, 11")
    a(f"s_add_u32 s46, s46, {L_QO}")
    a(f"v_add_u32 v2, s46, v{vL16}")
    a(f"ds_read_b128 v[{Qf[0]}:{Qf[0]+3}], v2")
    a(f"ds_read_b128 v[{Qf[1]}:{Qf[1]+3}], v2 offset:1024")
    for q in range(2):
        for r in range(16): a(f"v_mov_b32 v{O[q]+r}, 0")
    a("s_waitcnt lgkmcnt(0)")
    lds_add1(a, F_QD)
    vq.wait("ks")
    m = T
    for q in range(2):
        a(mfma(S[0], Pp, Qf[q], "0"))
        a(mfma(S[1], Pp+4, Qf[q], "0"))
        a(f"v_max3_f32 v{m}, v{S[0]}, v{S[0]+1}, v{S[0]+2}")
        for r in range(3, 15, 2):
            a(f"v_max3_f32 v{m}, v{m}, v{S[0]+r}, v{S[0]+r+1}")
        a(f"v_max3_f32 v{m}, v{m}, v{S[0]+15}, v{S[1]}")
        for r in range(1, 15, 2):
            a(f"v_max3_f32 v{m}, v{m}, v{S[1]+r}, v{S[1]+r+1}")
        a(f"v_max_f32 v{m}, v{m}, v{S[1]+15}")
        a(f"v_mov_b32 v{m+1}, v{m}")
        a(f"v_permlane32_swap_b32 v{m}, v{m+1}")
        a(f"v_max_f32 v{m}, v{m}, v{m+1}")
        a(f"v_add_f32 v{m}, {hexf(ATT_OFFSET)}, v{m}")
        a(f"v_sub_f32 v{NEG[q]}, 0, v{m}")
        for r in range(1, 16): a(f"v_mov_b32 v{NEG[q]+r}, v{NEG[q]}")
    for r in range(4, 8): a(f"v_mov_b32 v{Pp+r}, 0")
    vq.wait(("K", 0))
    a(mfma(S[0], KR, Qf[0], NEG[0]))
    a("s_mov_b32 s26, 0")
    a("s_nop 7")
    mark(a, 4)
    a.label(f"{pfx}_LOOP")
    E = lambda r: a(f"v_exp_f32 v{r}, v{r}")
    C = lambda d, r: a(f"v_cvt_pk_bf16_f32 v{d}, v{r}, v{r+1}")
    entry = [("V", 0), ("V", 0), ("K", 1), ("V", 1), ("V", 1), ("K", 2), ("V", 2), ("V", 2)]
    vq.order = list(entry); vq.done = 0
    for t in range(4):
        for q in range(2):
            Sa = S[q]; Sb = S[1-q]
            if q == 0:
                a(mfma(Sb, KR + 4*(t % 4), Qf[1], NEG[1]))
            else:
                vq.wait(("K", t+1))
                a(mfma(Sb, KR + 4*((t+1) % 4), Qf[0], NEG[0]))
            E(Sa+0); E(Sa+1); E(Sa+2); E(Sa+3)
            C(Pp+0, Sa+0); E(Sa+4); C(Pp+1, Sa+2); E(Sa+5); E(Sa+6); E(Sa+7)
            tp = t if q == 1 else t - 1
            a(mfma(O[1-q], VR + 8*(tp % 4) + 4, Pp+4, O[1-q]))
            if q == 0: kvload(t + 3, f'L{t}')
            E(Sa+8); C(Pp+2, Sa+4); E(Sa+9); C(Pp+3, Sa+6); E(Sa+10); E(Sa+11)
            E(Sa+12); C(Pp+4, Sa+8)
            if q == 0: vq.wait(("V", t))
            a(mfma(O[q], VR + 8*(t % 4), Pp, O[q]))
            E(Sa+13); C(Pp+5, Sa+10); E(Sa+14); E(Sa+15)
            C(Pp+6, Sa+12); C(Pp+7, Sa+14)
    rem = vq.order[vq.done:]
    shift = lambda tg: (tg[0], tg[1] - 4)
    known_k = ("K", 4)
    tail = [shift(x) for x in vq.order[[i for i, x in enumerate(vq.order) if x == known_k][-1]+1:]]
    assert tail == entry, (tail, entry)
    a("s_add_u32 s26, s26, 1")
    a(f"s_cmp_lt_u32 s26, {NIT}")
    a(f"s_cbranch_scc1 {pfx}_LOOP")
    mark(a, 5)
    a(mfma(O[1], VR + 8*3 + 4, Pp+4, O[1]))
    a("s_waitcnt vmcnt(0)")
    lds_spin(a, f"{pfx}_QD", F_QD, 4)
    OWN, TT, QOWN = 184, 200, 216
    a("s_nop 15")
    for q in range(2):
        for r in range(9): a(f"v_mov_b32 v{OWN+r}, v{O[q]+r}")
        a("s_mov_b32 s46, 0x207")
        a("s_mov_b32 s47, 0x2ff")
        a(f"v_cmp_class_f32 s[78:79], v{OWN+8}, s47")
        for r in range(8):
            a(f"v_cmp_class_f32 vcc, v{OWN+r}, s46")
            a("s_or_b64 s[78:79], s[78:79], vcc")
        a("s_cmp_lg_u64 s[78:79], 0")
        a(f"s_cbranch_scc1 {pfx}_SLOW{q}")
        a.label(f"{pfx}_OUT{q}")
        a(f"v_rcp_f32 v{TT}, v{OWN+8}")
        for r in range(8): a(f"v_mul_f32 v{OWN+r}, v{OWN+r}, v{TT}")
        for d in range(4): a(f"v_cvt_pk_bf16_f32 v{TT+4+4*q+d}, v{OWN+2*d}, v{OWN+2*d+1}")
        a("s_lshl_b32 s46, s19, 10")
        a(f"s_add_u32 s46, s46, {L_QO + q*4096}")
        a(f"v_add_u32 v2, s46, v{vL16}")
        a(f"ds_write_b128 v2, v[{TT+4+4*q}:{TT+7+4*q}]")
        if dbg:
            a("s_lshl_b32 s46, s17, 1"); a(f"s_add_u32 s46, s46, {q}"); a("s_lshl_b32 s46, s46, 15")
            a("s_lshl_b32 s47, s18, 2"); a("s_add_u32 s47, s47, s19"); a("s_lshl_b32 s47, s47, 10")
            a("s_add_u32 s46, s46, s47"); a(f"s_add_u32 s46, s46, {OF_OFF}")
            a(f"buffer_store_dwordx4 v[{TT+4+4*q}:{TT+7+4*q}], v{vL16}, s[{SWS}:{SWS+3}], s46 offen")
    a("s_waitcnt vmcnt(0) lgkmcnt(0)")
    a(f"s_branch {pfx}_END")
    for site in refresh: emit_refresh(site)
    KS, VS, SS, NS_, PS = KR, VR, S[0], NEG[0], Pp
    for q in range(2):
        a.label(f"{pfx}_SLOW{q}")
        for r in range(4): a(f"v_mov_b32 v{QOWN+r}, v{Qf[q]+r}")
        a("s_mov_b32 s46, s21")
        a(f"v_mov_b32 v{TT}, 0xff800000")
        a("s_mov_b32 s26, 0")
        a.label(f"{pfx}_SL1_{q}")
        a(f"buffer_load_dwordx4 v[{KS}:{KS+3}], v{vL16}, s[{SWS}:{SWS+3}], s46 offen sc1")
        a("s_waitcnt vmcnt(0)")
        a(mfma(SS, KS, QOWN, "0"))
        for r in range(0, 16, 2):
            a(f"v_max3_f32 v{TT}, v{TT}, v{SS+r}, v{SS+r+1}")
        a("s_add_u32 s46, s46, 1024")
        a("s_add_u32 s26, s26, 1")
        a("s_cmp_lt_u32 s26, 64")
        a(f"s_cbranch_scc1 {pfx}_SL1_{q}")
        a(f"v_mov_b32 v{TT+1}, v{TT}")
        a(f"v_permlane32_swap_b32 v{TT}, v{TT+1}")
        a(f"v_max_f32 v{TT}, v{TT}, v{TT+1}")
        a(f"v_sub_f32 v{NS_}, 0, v{TT}")
        for r in range(1, 16): a(f"v_mov_b32 v{NS_+r}, v{NS_}")
        for r in range(16): a(f"v_mov_b32 v{OWN+r}, 0")
        a("s_mov_b32 s46, s21")
        a("s_mov_b32 s26, 0")
        a.label(f"{pfx}_SL2_{q}")
        a(f"buffer_load_dwordx4 v[{KS}:{KS+3}], v{vL16}, s[{SWS}:{SWS+3}], s46 offen sc1")
        a(f"s_add_u32 s47, s46, {VF_OFF-KF_OFF}")
        a("s_mov_b64 exec, s[76:77]")
        a(f"buffer_load_dwordx4 v[{VS}:{VS+3}], v{vVo}, s[{SWS}:{SWS+3}], s47 offen sc1")
        a(f"buffer_load_dwordx4 v[{VS+4}:{VS+7}], v{vVo}, s[{SWS}:{SWS+3}], s47 offen offset:512 sc1")
        a("s_mov_b64 exec, -1")
        a("s_waitcnt vmcnt(0)")
        a(mfma(SS, KS, QOWN, NS_))
        for r in range(16): E(SS+r)
        for d in range(8): C(PS+d, SS+2*d)
        a(mfma(OWN, VS, PS, OWN))
        a(mfma(OWN, VS+4, PS+4, OWN))
        a("s_add_u32 s46, s46, 1024")
        a("s_add_u32 s26, s26, 1")
        a("s_cmp_lt_u32 s26, 64")
        a(f"s_cbranch_scc1 {pfx}_SL2_{q}")
        a("s_nop 15")
        a(f"s_branch {pfx}_OUT{q}")
    a.label(f"{pfx}_END")

def gen_y(label, dbg=False):
    k = Kernel(label, 256, 512, LDS_TOTAL, 256, 100)
    a = k.a
    a("s_cmp_ge_u32 s2, 256")
    a("s_cbranch_scc1 Y_END")
    emit_y(a, dbg)
    a.label("Y_END")
    return k

if __name__ == "__main__":
    import sys
    out = sys.argv[1]; opts = sys.argv[2:]
    if "ts" in opts: TS_ENABLE[0] = True
    if "lnm" in opts: LNM[0] = True
    for o in opts:
        if "=" in o:
            kk, vv = o.split("="); P[kk] = int(vv)
    ks = [gen_y(NAME + "_kernel", dbg="dbg" in opts), gen_fin2("fin_kernel")]
    open(out, "w").write(build_file(ks))
```

```python
from common import *
import z
from z import lane_off8, tr_addr8, ln_loads, gen_fin2, PF_OFF, ATT_OFFSET
P = dict(gstart=28, prio_kv=3, prio_att=0, prio_g=0, gwait=1, zrow=1, psleep=8, rsleep=4, ringa=4, ringg=8, gprime=0, pdx=1, prio_e=2, prio_d=0, lw=9, lh=7, hsleep=8, fsleep=16, osleep=2, dual=1, kvr=8, stouch=1, pwait=1, ncv=1)
import sys
for o in sys.argv[2:]:
    if "=" in o:
        kk, vv = o.split("="); P[kk] = int(vv)

L_X, L_AR, LDS_TOTAL = 0, 65536, 163840
SA, SGR = P["ringa"]*2048, P["ringg"]*2048
L_GR = L_AR + 3*SA
L_QO = L_AR + 2*SA
L_FL = 159744
assert L_GR + 4*SGR <= L_FL and SA >= 8192 and SGR >= 8192 + 2*2048
F_PUB, F_GO, F_QD, F_GS, F_P1, F_MASK = L_FL, L_FL+4, L_FL+8, L_FL+12, L_FL+16, L_FL+20
SQ, SG, SU, SX, SD, SO, SWS, SDBG = 4, 8, 12, 24, 32, 36, 40, 44
sAREA = 28
vLn, vW8, vWm, vT0, vTm, vX0, vL16, vVo, vTx = 1, 10, 11, 12, 14, 16, 20, 21, 22
LNX, LNT = 64, 96
ACC, FR, XB = 128, 192, 208
RINGG = P["ringg"]
def ring_of(kind): return P["ringa"] if kind in "WV" else RINGG
LNM = [False]
FL_OFF = 0x3000000
FL2_OFF = FL_OFF + 0x10000
F_PP, F_FM, F_OC, F_X0, F_NC = L_FL+24, L_FL+28, L_FL+32, L_FL+48, L_FL+56
sNC = 2
vFO, vSN = 8, 9

def ids(a):
    a("v_and_b32 v1, 63, v0")
    a("v_lshrrev_b32 v2, 6, v0")
    a("v_readfirstlane_b32 s16, v2")
    if P.get("badmap"):
        a("s_lshr_b32 s20, s2, 5"); a("s_and_b32 s21, s2, 31")
    else:
        a("s_and_b32 s20, s2, 7")
        a("s_lshr_b32 s21, s2, 3")
    a("s_lshr_b32 s19, s21, 1")
    a("s_lshr_b32 s17, s20, 2")
    a("s_lshl_b32 s17, s17, 4")
    a("s_add_u32 s17, s17, s19")
    a("s_and_b32 s18, s20, 3")
    a("s_lshl_b32 s18, s18, 1")
    a("s_and_b32 s21, s21, 1")
    a("s_add_u32 s18, s18, s21")

def ln_addr_x(a):
    r, c = LNT+2, LNT+3
    a(f"v_lshrrev_b32 v{r}, 3, v{vLn}")
    a(f"v_and_b32 v{c}, 7, v{vLn}")
    a(f"v_lshlrev_b32 v{LNT}, 10, v{r}")
    a(f"v_lshl_add_u32 v{LNT}, v{c}, 4, v{LNT}")
    a("s_lshl_b32 s23, s17, 16")
    a("s_lshl_b32 s22, s16, 13")
    a("s_add_u32 s23, s23, s22")

def ln_addr_rest(a):
    r, c = LNT+2, LNT+3
    t = LNT+4
    a(f"v_lshrrev_b32 v{t}, 1, v{c}")
    a(f"v_lshlrev_b32 v{t}, 10, v{t}")
    a(f"v_and_b32 v{t+1}, 1, v{c}")
    a(f"v_lshl_add_u32 v{t}, v{t+1}, 9, v{t}")
    a("s_and_b32 s21, s16, 3")
    a("s_lshl_b32 s21, s21, 7")
    a("s_lshr_b32 s22, s16, 2")
    a("s_lshl_b32 s22, s22, 15")
    a("s_add_u32 s22, s22, s21")
    a(f"v_xor_b32 v{t+1}, v{r}, v{c}")
    a(f"v_lshl_add_u32 v{LNT+1}, v{t+1}, 4, v{t}")
    a(f"v_add_u32 v{LNT+1}, s22, v{LNT+1}")
    a(f"v_lshrrev_b32 v{t}, 5, v{vLn}")
    for q in range(4):
        a(f"v_add_u32 v{t+1}, {2*q}, v{t}")
        a(f"v_xor_b32 v{t+1}, v{t+1}, v{vLn}")
        a(f"v_lshlrev_b32 v{vX0+q}, 4, v{t+1}")

def ln_stats(a, vq):
    X = LNX
    ONES, A1, B1, A2, B2 = LNT+8, LNT+9, LNT+10, LNT+11, LNT+12
    a(f"v_mov_b32 v{ONES}, 0x3f803f80")
    for r in (A1, B1, A2, B2): a(f"v_mov_b32 v{r}, 0")
    if LNM[0]: mark(a, 8)
    for i in range(8):
        vq.wait(("x", i))
        if LNM[0] and i == 0: mark(a, 9)
        for d in range(4):
            r = X + 4*i + d
            a(f"v_dot2c_f32_bf16 v{A1 if d%2==0 else B1}, v{r}, v{ONES}")
            a(f"v_dot2c_f32_bf16 v{A2 if d%2==0 else B2}, v{r}, v{r}")
    a("s_nop 2")
    if LNM[0]: mark(a, 10)

def ln_norm(a, lq):
    X = LNX
    ONES, A1, B1, A2, B2 = LNT+8, LNT+9, LNT+10, LNT+11, LNT+12
    a(f"v_add_f32 v{A1}, v{A1}, v{B1}")
    a(f"v_add_f32 v{A2}, v{A2}, v{B2}")
    for mod in ("quad_perm:[1,0,3,2]", "quad_perm:[2,3,0,1]", "row_half_mirror"):
        a(f"v_add_f32_dpp v{A1}, v{A1}, v{A1} {mod} row_mask:0xf bank_mask:0xf")
        a(f"v_add_f32_dpp v{A2}, v{A2}, v{A2} {mod} row_mask:0xf bank_mask:0xf")
    a(f"v_mul_f32 v{A1}, 0x3b000000, v{A1}")
    a(f"v_mul_f32 v{A2}, 0x3b000000, v{A2}")
    a(f"v_fma_f32 v{A2}, -v{A1}, v{A1}, v{A2}")
    a(f"v_max_f32 v{A2}, 0, v{A2}")
    a(f"v_add_f32 v{A2}, 0x3727c5ac, v{A2}")
    SC, BI = LNT+14, LNT+13
    a(f"v_rsq_f32 v{SC}, v{A2}")
    a(f"v_mul_f32 v{BI}, v{A1}, v{SC}")
    a(f"v_sub_f32 v{BI}, 0, v{BI}")
    T = LNT+16
    for kx in range(32):
        r = X + kx; t = T + 2*(kx % 4)
        a(f"v_lshlrev_b32 v{t}, 16, v{r}")
        a(f"v_and_b32 v{t+1}, 0xffff0000, v{r}")
        a(f"v_fma_f32 v{t}, v{t}, v{SC}, v{BI}")
        a(f"v_fma_f32 v{t+1}, v{t+1}, v{SC}, v{BI}")
        a(f"v_cvt_pk_bf16_f32 v{r}, v{t}, v{t+1}")
        if kx % 4 == 3:
            i = kx // 4
            a(f"ds_write_b128 v{LNT+1}, v[{X+4*i}:{X+4*i+3}] offset:{i*4096}")
            lq.issue(("xw", i))

def dma_step(a, vq, kind, slot, tag):
    sl = slot * 2048
    if kind in "WV":
        for i in range(2):
            a(f"s_add_u32 m0, s{sAREA}, {sl + 1024*i}")
            a(f"buffer_load_dwordx4 v{vW8}, s[{SQ}:{SQ+3}], s29 offen lds"); vq.issue(tag)
            a(f"s_add_u32 s29, s29, {8*3072}")
    else:
        a(f"s_add_u32 m0, s{sAREA}, {sl}")
        a(f"buffer_load_dwordx4 v{vWm}, s[{SG}:{SG+3}], s30 offen lds"); vq.issue(tag)
        a(f"s_add_u32 m0, s{sAREA}, {sl + 1024}")
        a(f"buffer_load_dwordx4 v{vWm}, s[{SU}:{SU+3}], s30 offen lds"); vq.issue(tag)
        a(f"s_add_u32 s30, s30, {16*3584}")

def unit_body(a, vq, lq, kind, wrap, hook_step=None, dma_pre=None, phase=0, dma_post=None):
    RING = ring_of(kind); PD = RING - 1 + P["pdx"]
    def trr(g):
        sl = ((g + phase) % RING) * 2048
        f = FR + 8*(g % 2)
        for nt in range(2):
            if kind in "WV":
                a(f"ds_read_b64_tr_b16 v[{f+4*nt}:{f+4*nt+1}], v{vT0+nt} offset:{sl}"); lq.issue(("f", g))
                a(f"ds_read_b64_tr_b16 v[{f+4*nt+2}:{f+4*nt+3}], v{vT0+nt} offset:{sl+512}"); lq.issue(("f", g))
            else:
                a(f"ds_read_b64_tr_b16 v[{f+4*nt}:{f+4*nt+1}], v{vTm} offset:{sl+nt*1024}"); lq.issue(("f", g))
                a(f"ds_read_b64_tr_b16 v[{f+4*nt+2}:{f+4*nt+3}], v{vTm} offset:{sl+nt*1024+256}"); lq.issue(("f", g))
    def xread(g):
        for mt in range(2):
            xb = XB + 8*(g % 2) + 4*mt
            a(f"ds_read_b128 v[{xb}:{xb+3}], v{vX0 + g%4} offset:{mt*32768 + g*1024}"); lq.issue(("f", g))
    def mm(g, nt, mt):
        f = FR + 8*(g % 2) + 4*nt; xb = XB + 8*(g % 2) + 4*mt
        acc = ACC + 16*(2*mt+nt)
        c = "0" if g == 0 else acc
        a(mfma(acc, xb, f, c) if kind == "V" else mfma(acc, f, xb, c))
    vq.wait(("w", 0))
    trr(0); xread(0)
    for g in range(32):
        nx = g + 1 < 32
        lq.wait(("f", g))
        mm(g, 0, 0)
        if nx:
            vq.wait(("w", g+1)); trr(g+1)
        mm(g, 1, 0)
        if nx: xread(g+1)
        mm(g, 0, 1)
        if g + PD < 32 or wrap:
            if dma_pre: dma_pre(g + PD)
            dma_step(a, vq, kind, (g+PD+phase) % RING, ("w", g+PD))
            if dma_post: dma_post(g + PD)
        mm(g, 1, 1)
        if hook_step: hook_step(g)

def glu_epilogue(a, vq, sdst):
    a(f"s_mov_b32 s31, {hexf(-1.4426950408889634)}")
    H = XB
    for mt in range(2):
        g = ACC + 32*mt; u = g + 16
        for i in range(16): a(f"v_mul_f32 v{g+i}, s31, v{g+i}")
        for i in range(16): a(f"v_exp_f32 v{g+i}, v{g+i}")
        for i in range(16): a(f"v_add_f32 v{g+i}, 1.0, v{g+i}")
        for i in range(16): a(f"v_rcp_f32 v{g+i}, v{g+i}")
        for i in range(16): a(f"v_mul_f32 v{g+i}, v{g+i}, v{u+i}")
        for d in range(8): a(f"v_cvt_pk_bf16_f32 v{H+8*mt+d}, v{g+2*d}, v{g+2*d+1}")
    for mt in range(2):
        for q in range(2):
            a(f"buffer_store_dwordx4 v[{H+8*mt+4*q}:{H+8*mt+4*q+3}], v{vL16}, s[{SWS}:{SWS+3}], s{sdst} offen offset:{mt*2048 + q*1024} sc1"); vq.issue("hst")

GRING = 4
GPD = GRING - 1 + P["pdx"]
GF, GX, GACC = 64, 96, 128
def gdma(a, vq, g):
    sl = (g % GRING) * 4096
    a(f"s_add_u32 s31, s30, {8*3584}")
    for i, (srd_, so) in enumerate(((SG, 30), (SG, 31), (SU, 30), (SU, 31))):
        a(f"s_add_u32 m0, s{sAREA}, {sl + 1024*i}")
        a(f"buffer_load_dwordx4 v{vWm}, s[{srd_}:{srd_+3}], s{so} offen lds"); vq.issue(("w", g))
    a(f"s_add_u32 s30, s30, {16*3584}")

def gunit(a, vq, lq, nu):
    tiles = [(p, n) for p in range(2) for n in range(nu)]
    def trr(g, p):
        sl = (g % GRING) * 4096 + p*2048
        for n in range(nu):
            f = GF + 16*(g % 2) + 4*(2*p + n)
            a(f"ds_read_b64_tr_b16 v[{f}:{f+1}], v{vT0+n} offset:{sl}"); lq.issue(("f", g))
            a(f"ds_read_b64_tr_b16 v[{f+2}:{f+3}], v{vT0+n} offset:{sl+512}"); lq.issue(("f", g))
    def xread(g):
        for mt in range(2):
            xb = GX + 8*(g % 2) + 4*mt
            a(f"ds_read_b128 v[{xb}:{xb+3}], v{vX0 + g%4} offset:{mt*32768 + g*1024}"); lq.issue(("f", g))
    def mm(g, p, n, mt):
        f = GF + 16*(g % 2) + 4*(2*p + n); xb = GX + 8*(g % 2) + 4*mt
        acc = GACC + 16*(4*mt + 2*p + n)
        a(mfma(acc, f, xb, "0" if g == 0 else acc))
    vq.wait(("w", 0))
    trr(0, 0); trr(0, 1); xread(0)
    for g in range(32):
        nx = g + 1 < 32
        lq.wait(("f", g))
        seq = [(p, n, mt) for mt in range(2) for (p, n) in tiles]
        acts = []
        if nx:
            acts.append(lambda: (vq.wait(("w", g+1)), trr(g+1, 0)))
            acts.append(lambda: trr(g+1, 1))
            acts.append(lambda: xread(g+1))
        if g + GPD < 32: acts.append(lambda: gdma(a, vq, g + GPD))
        for i, (p, n, mt) in enumerate(seq):
            mm(g, p, n, mt)
            if i < len(acts): acts[i]()
        for act in acts[len(seq):]: act()
        if P.get("gma") and g in (0, 3, 7, 11, 15, 23): mark(a, {0: 2, 3: 3, 7: 4, 11: 5, 15: 6, 23: 7}[g])

def gepilogue(a, vq, nu):
    a(f"s_mov_b32 s31, {hexf(-1.4426950408889634)}")
    a(f"s_setprio {P['prio_e']}")
    for n in range(nu):
        H = GF + 16*n
        for mt in range(2):
            g = GACC + 16*(4*mt + n); u = g + 32
            for i in range(16): a(f"v_mul_f32 v{g+i}, s31, v{g+i}")
            for i in range(16): a(f"v_exp_f32 v{g+i}, v{g+i}")
            for i in range(16): a(f"v_add_f32 v{g+i}, 1.0, v{g+i}")
            for i in range(16): a(f"v_rcp_f32 v{g+i}, v{g+i}")
            for i in range(16): a(f"v_mul_f32 v{g+i}, v{g+i}, v{u+i}")
            for d in range(8): a(f"v_cvt_pk_bf16_f32 v{H+8*mt+d}, v{g+2*d}, v{g+2*d+1}")
            if n == 1 and mt == 0: a("s_add_u32 s47, s48, 4096")
            so = 48 if n == 0 else 47
            for q in range(2):
                a(f"buffer_store_dwordx4 v[{H+8*mt+4*q}:{H+8*mt+4*q+3}], v{vL16}, s[{SWS}:{SWS+3}], s{so} offen offset:{mt*2048 + q*1024} sc1"); vq.issue("hst")
    a(f"s_setprio {P['prio_g']}")

def gmark(a, i):
    if not P.get("gm") and not P.get("gma"): mark(a, i)

def lds_add1(a, addr, ret=None):
    a("s_mov_b64 exec, 1")
    a(f"v_mov_b32 v2, {addr}")
    a("v_mov_b32 v3, 1")
    if ret is None: a("ds_add_u32 v2, v3")
    else: a(f"ds_add_rtn_u32 v{ret}, v2, v3")
    a("s_mov_b64 exec, -1")

def lds_spin(a, lab, addr, val, sleep=1, cmp="ge"):
    a(f"v_mov_b32 v2, {addr}")
    a.label(lab)
    a("ds_read_b32 v3, v2")
    a("s_waitcnt lgkmcnt(0)")
    a("v_readfirstlane_b32 s46, v3")
    a(f"s_cmp_{cmp}_u32 s46, {val}")
    a(f"s_cbranch_scc1 {lab}_OK")
    a(f"s_sleep {sleep}")
    a(f"s_branch {lab}")
    a.label(f"{lab}_OK")

def getnonce(a, lab):
    a(f"v_mov_b32 v2, {F_NC}")
    a.label(lab)
    a("ds_read_b64 v[4:5], v2")
    a("s_waitcnt lgkmcnt(0)")
    a(f"v_readfirstlane_b32 s{sNC}, v4")
    a(f"v_readfirstlane_b32 s{sNC+1}, v5")
    a(f"s_cmp_lg_u32 s{sNC}, 0")
    a(f"s_cbranch_scc1 {lab}_OK")
    a("s_sleep 1")
    a(f"s_branch {lab}")
    a.label(f"{lab}_OK")

def flag_store(a):
    a(f"v_mov_b32 v4, s{sNC}")
    a(f"v_mov_b32 v5, s{sNC+1}")
    a(f"buffer_store_dwordx2 v[4:5], v{vFO}, s[{SWS}:{SWS+3}], s99 offen sc1")

def publish(a, pfx):
    a("s_waitcnt vmcnt(0)")
    if not LNM[0] and not P.get("am"): mark(a, 10)
    a("s_mov_b64 exec, 1")
    a(f"v_mov_b32 v2, {F_PUB}")
    a("v_mov_b32 v3, 1")
    a("ds_add_rtn_u32 v4, v2, v3")
    a("s_waitcnt lgkmcnt(0)")
    a("v_readfirstlane_b32 s46, v4")
    a("s_cmp_eq_u32 s46, 1")
    a(f"s_cbranch_scc0 {pfx}_NOPUB")
    flag_store(a)
    a.label(f"{pfx}_NOPUB")
    a("s_mov_b64 exec, -1")

def mirror(a):
    a("s_or_b32 s74, s74, s96")
    a("s_mov_b64 exec, 1")
    a(f"v_mov_b32 v2, {F_MASK}")
    a("v_mov_b32 v3, s96")
    a("ds_or_b32 v2, v3")
    a("s_mov_b64 exec, -1")

def poll_once(a):
    a("s_mov_b32 exec_hi, 0")
    a(f"buffer_load_dwordx2 v[4:5], v{vFO}, s[{SWS}:{SWS+3}], s99 offen sc1")
    a("s_waitcnt vmcnt(0)")
    a(f"v_cmp_eq_u64 vcc, s[{sNC}:{sNC+1}], v[4:5]")
    a("s_mov_b32 exec_hi, -1")
    a("s_mov_b32 s96, vcc_lo")
    mirror(a)

def emit_y(a, dbg=False):
    sc1 = " sc1"
    srd(a, SX, KA_X, 2097152); srd(a, SQ, KA_WQKV, 512*1536*2)
    srd(a, SG, KA_WG, 512*1792*2); srd(a, SU, KA_WU, 512*1792*2)
    srd(a, SD, KA_WD, 1792*512*2); srd(a, SO, KA_WO, 512*512*2); srd(a, SWS, KA_WS, WS_BYTES)
    a(f"s_load_dwordx2 s[{SDBG}:{SDBG+1}], s[0:1], {KA_DBG}")
    a("s_mov_b32 s98, s2")
    ids(a)
    ln_addr_x(a)
    a("s_waitcnt lgkmcnt(0)")
    mark(a, 0)
    vq = Q(a, "vmcnt", 63); lq = Q(a, "lgkmcnt", 15)
    ln_loads(a, vq)
    a("s_barrier")
    ln_addr_rest(a)
    a(f"v_lshlrev_b32 v{vL16}, 4, v{vLn}")
    a(f"s_mul_i32 s21, s16, {SA}")
    a(f"s_add_u32 s21, s21, {L_AR}")
    a(f"s_mul_i32 s22, s16, {SGR}")
    a(f"s_add_u32 s22, s22, {L_GR - 4*SGR}")
    a("s_cmp_lt_u32 s16, 4")
    a(f"s_cselect_b32 s{sAREA}, s21, s22")
    lane_off8(a, vW8, 3072)
    lane_off8(a, vWm, 3584)
    a("s_add_u32 s21, s16, 1")
    a("s_cmp_eq_u32 s21, 3")
    a("s_cselect_b32 s21, 0, s21")
    a("s_lshl_b32 s29, s21, 10")
    a("s_lshl_b32 s21, s18, 7")
    a("s_add_u32 s29, s29, s21")
    a("s_lshr_b32 s21, s18, 1")
    a("s_mul_i32 s30, s21, 896")
    a("s_and_b32 s21, s18, 1")
    a("s_lshl_b32 s21, s21, 9")
    a("s_sub_u32 s22, s16, 4")
    a("s_lshl_b32 s22, s22, 7")
    a("s_add_u32 s21, s21, s22")
    a("s_cmp_eq_u32 s16, 7")
    a("s_cselect_b32 s21, 384, s21")
    a("s_add_u32 s30, s30, s21")
    tr_addr8(a, vT0, 10, f"s{sAREA}")
    a(f"v_add_u32 v2, s17, v{vLn}")
    a("v_and_b32 v2, 15, v2")
    a(f"v_xor_b32 v3, s17, v{vLn}")
    a("v_and_b32 v3, 16, v3")
    a(f"v_or_b32 v{vFO}, v2, v3")
    a(f"v_lshlrev_b32 v{vFO}, 7, v{vFO}")
    a("s_lshl_b32 s99, s18, 12")
    a(f"s_add_u32 s99, s99, {FL_OFF}")
    a("s_lshl_b32 s21, s17, 13")
    a("s_mul_i32 s22, s18, 3968")
    a("s_sub_u32 s21, s21, s22")
    a(f"s_add_u32 s21, s21, {FL2_OFF - FL_OFF + 56*128}")
    a("v_mov_b32 v2, s21")
    a(f"v_cmp_lt_u32 vcc, 31, v{vLn}")
    a(f"v_cndmask_b32 v{vFO}, v{vFO}, v2, vcc")
    a("v_mov_b32 v2, 0")
    a(f"v_lshlrev_b32 v3, 2, v{vLn}")
    a(f"v_add_u32 v3, {L_FL}, v3")
    a("ds_write_b32 v3, v2")
    T0 = LNT + 24
    vqx = Q(Asm(), "vmcnt", 63)
    base = list(vq.order)
    a("s_cmp_ge_u32 s16, 4")
    a("s_cbranch_scc1 Y_EG")
    a("s_cmp_eq_u32 s16, 3")
    a("s_cbranch_scc1 Y_E3")
    for g in range(ring_of("W") - 1 + P["pdx"]): dma_step(a, vq, "W", g, ("w", g))
    ln_stats(a, vq)
    a("s_branch Y_PRIMED")
    a.label("Y_E3")
    vq.order, vq.done = list(base), 0
    a(f"v_and_b32 v2, 31, v{vLn}")
    a(f"v_mul_u32_u24 v{T0}, 3072, v2")
    a(f"v_lshrrev_b32 v2, 5, v{vLn}")
    a(f"v_lshl_add_u32 v{T0+1}, v2, 10, v{T0}")
    a("s_lshl_b32 s21, s19, 5")
    a("s_mul_i32 s48, s21, 3072")
    a("s_lshl_b32 s22, s18, 7")
    a("s_add_u32 s48, s48, s22")
    a(f"buffer_load_dword v{T0+2}, v{T0+1}, s[{SQ}:{SQ+3}], s48 offen offset:1024"); vq.issue("t")
    a("s_mov_b32 exec_hi, 0")
    a(f"buffer_load_dword v{T0+3}, v{T0}, s[{SQ}:{SQ+3}], s48 offen"); vq.issue("t")
    a("s_mov_b32 exec_hi, -1")
    a(f"v_lshrrev_b32 v2, 2, v{vLn}")
    a(f"v_and_b32 v3, 3, v{vLn}")
    a(f"v_mul_u32_u24 v{T0}, 3584, v2")
    a(f"v_lshl_add_u32 v{T0}, v3, 7, v{T0}")
    a("s_mul_i32 s47, s21, 3584")
    a("s_mul_i32 s22, s18, 448")
    a("s_add_u32 s47, s47, s22")
    a(f"s_add_u32 s48, s47, {16*3584}")
    ln_stats(a, vq)
    a(f"buffer_load_dword v{T0+4}, v{T0}, s[{SG}:{SG+3}], s47 offen")
    a(f"buffer_load_dword v{T0+5}, v{T0}, s[{SU}:{SU+3}], s47 offen")
    a(f"buffer_load_dword v{T0+6}, v{T0}, s[{SG}:{SG+3}], s48 offen")
    a(f"buffer_load_dword v{T0+7}, v{T0}, s[{SU}:{SU+3}], s48 offen")
    a("s_branch Y_PRIMED")
    a.label("Y_EG")
    vq.order, vq.done = list(base), 0
    a(f"v_lshlrev_b32 v{vFO}, 7, v{vLn}")
    a("s_lshl_b32 s99, s17, 13")
    a(f"s_add_u32 s99, s99, {FL2_OFF}")
    if P["gprime"] == 2:
        for g in range(GPD): gdma(a, vq, g)
        ln_stats(a, vq)
    else:
        ln_stats(a, vq)
    a("s_cmp_eq_u32 s98, 0")
    a("s_cbranch_scc0 Y_PRIMED")
    a("s_cmp_eq_u32 s16, 7")
    a("s_cbranch_scc0 Y_PRIMED")
    a("s_memrealtime s[46:47]")
    a("s_mov_b64 exec, 1")
    a("v_mov_b32 v2, 0")
    a("s_waitcnt lgkmcnt(0)")
    a("s_or_b32 s46, s46, 1")
    a("v_mov_b32 v4, s46")
    a("v_mov_b32 v5, s47")
    a(f"global_store_dwordx2 v2, v[4:5], s[{SDBG}:{SDBG+1}] sc0 sc1")
    a("s_mov_b64 exec, -1")
    a.label("Y_PRIMED")
    ln_norm(a, lq)
    a("s_waitcnt lgkmcnt(0)"); lq.known_all()
    if LNM[0]: mark(a, 11)
    a("s_barrier")
    mark(a, 1)
    def reset(nprimed):
        vq.order = [("w", g) for g in range(ring_of("W") - 1 + P["pdx"]) for _ in range(2)] if nprimed else []
        vq.done = 0
        lq.order, lq.done = [], 0
    a("s_cmp_ge_u32 s16, 4")
    a("s_cbranch_scc1 Y_G")
    a("s_cmp_eq_u32 s16, 1")
    a("s_cbranch_scc1 Y_V")
    a("s_cmp_eq_u32 s16, 2")
    a("s_cbranch_scc1 Y_Q")
    a("s_cmp_eq_u32 s16, 3")
    a("s_cbranch_scc1 Y_POLLER")
    TMP = 224
    def go_add():
        a("s_waitcnt lgkmcnt(0)")
        lds_add1(a, F_GO)
    def k_epilogue():
        a(f"v_add_u32 v5, s{sAREA}, v{vL16}")
        for nt in range(2):
            for hh in range(2):
                for mt in range(2):
                    acc = ACC + 16*(2*mt+nt) + 8*hh
                    rr = TMP + 4*((2*hh+mt) % 4) + 16*nt
                    for d in range(4): a(f"v_cvt_pk_bf16_f32 v{rr+d}, v{acc+2*d}, v{acc+2*d+1}")
                    a(f"ds_write_b128 v5, v[{rr}:{rr+3}] offset:{(2*nt+hh)*2048 + mt*1024}")
        go_add()
        a("s_lshl_b32 s46, s18, 18")
        a("s_lshl_b32 s47, s17, 11")
        a("s_add_u32 s46, s46, s47")
        a(f"s_add_u32 s46, s46, {KF_OFF}")
        for nt in range(2):
            for hh in range(2):
                for mt in range(2):
                    rr = TMP + 4*((2*hh+mt) % 4) + 16*nt
                    a(f"buffer_store_dwordx4 v[{rr}:{rr+3}], v{vL16}, s[{SWS}:{SWS+3}], s46 offen offset:{mt*1024}{sc1}"); vq.issue("st")
                a("s_add_u32 s46, s46, 65536")
        if P["dual"]:
            a(f"s_sub_u32 s46, s46, {4*65536}")
            for nt in range(2):
                for hh in range(2):
                    for mt in range(2):
                        rr = TMP + 4*((2*hh+mt) % 4) + 16*nt
                        a(f"buffer_store_dwordx4 v[{rr}:{rr+3}], v{vL16}, s[{SWS}:{SWS+3}], s46 offen offset:{mt*1024}"); vq.issue("st")
                    a("s_add_u32 s46, s46, 65536")
    def v_epilogue():
        a(f"v_lshrrev_b32 v2, 5, v{vLn}")
        a(f"v_lshlrev_b32 v3, 8, v2")
        a(f"v_and_b32 v2, 15, v{vLn}")
        a(f"v_lshl_add_u32 v3, v2, 4, v3")
        a(f"v_bfe_u32 v2, v{vLn}, 4, 1")
        a(f"v_lshl_add_u32 v5, v2, 11, v3")
        a(f"v_add_u32 v5, s{sAREA}, v5")
        a(f"v_lshl_add_u32 v6, v2, 16, v3")
        for nt in range(2):
            for mt in range(2):
                for g in range(2):
                    acc = ACC + 16*(2*mt+nt) + 8*g
                    rr = TMP + 4*((2*mt+g) % 4) + 16*nt
                    for d in range(4): a(f"v_cvt_pk_bf16_f32 v{rr+d}, v{acc+2*d}, v{acc+2*d+1}")
                    a(f"ds_write_b128 v5, v[{rr}:{rr+3}] offset:{nt*4096 + mt*1024 + g*512}")
        go_add()
        a("s_lshl_b32 s46, s18, 18")
        a("s_lshl_b32 s47, s17, 11")
        a("s_add_u32 s46, s46, s47")
        a(f"s_add_u32 s46, s46, {VF_OFF}")
        for pl in range(2 if P["dual"] else 1):
            for nt in range(2):
                for mt in range(2):
                    for g in range(2):
                        rr = TMP + 4*((2*mt+g) % 4) + 16*nt
                        a(f"buffer_store_dwordx4 v[{rr}:{rr+3}], v6, s[{SWS}:{SWS+3}], s46 offen offset:{mt*1024+g*512}{sc1 if pl == 0 else ''}"); vq.issue("st")
                a("s_add_u32 s46, s46, 131072")
            if pl == 0 and P["dual"]: a(f"s_sub_u32 s46, s46, {2*131072}")
    for kindc, lab, epi in (("W", "Y_K", k_epilogue), ("V", "Y_V", v_epilogue)):
        a.label(lab)
        reset(True)
        a(f"s_setprio {P['prio_kv']}")
        def hook_step(g, lab=lab):
            if lab == "Y_K" and g == P["gstart"]:
                a(f"v_mov_b32 v2, {F_GS}")
                a("v_mov_b32 v3, 1")
                a("ds_write_b32 v2, v3"); lq.issue("gs")
        unit_body(a, vq, lq, kindc, False, hook_step)
        if not LNM[0] and not P.get("am"): mark(a, 8)
        epi()
        if not LNM[0] and not P.get("am"): mark(a, 9)
        lds_add1(a, F_P1)
        mark(a, 2)
        a("s_branch Y_AWAIT")
    a.label("Y_Q")
    reset(True)
    a(f"s_setprio {P['prio_kv']}")
    unit_body(a, vq, lq, "W", False)
    a("s_mov_b32 s31, 0x3eb8aa3b")
    a(f"v_add_u32 v2, {L_QO}, v{vL16}")
    for nt in range(2):
        for hh in range(2):
            for mt in range(2):
                acc = ACC + 16*(2*mt+nt) + 8*hh
                rr = TMP + 4*((2*hh+mt) % 4) + 16*nt
                for d in range(8): a(f"v_mul_f32 v{acc+d}, s31, v{acc+d}")
                for d in range(4): a(f"v_cvt_pk_bf16_f32 v{rr+d}, v{acc+2*d}, v{acc+2*d+1}")
                a(f"ds_write_b128 v2, v[{rr}:{rr+3}] offset:{((2*nt+hh)*2+mt)*1024}"); lq.issue("qw")
    a("s_waitcnt lgkmcnt(0)")
    lds_add1(a, F_P1)
    lds_add1(a, F_GO)
    mark(a, 2)
    a("s_branch Y_AWAIT")
    a.label("Y_POLLER")
    def nonce_fetch():
        a("s_mov_b32 s98, 0")
        a.label("Y_NF")
        if P.get("ncv"):
            a("v_mov_b32 v2, 0")
            a(f"global_load_dwordx2 v[4:5], v2, s[{SDBG}:{SDBG+1}] sc1")
            a("s_waitcnt vmcnt(0)")
            a(f"v_readfirstlane_b32 s{sNC}, v4")
            a(f"v_readfirstlane_b32 s{sNC+1}, v5")
        else:
            a(f"s_load_dwordx2 s[{sNC}:{sNC+1}], s[{SDBG}:{SDBG+1}], 0 glc")
            a("s_waitcnt lgkmcnt(0)")
        a(f"s_cmp_lg_u32 s{sNC}, 0")
        a("s_cbranch_scc1 Y_NF_OK")
        a("s_sleep 4")
        a("s_add_u32 s98, s98, 1")
        a("s_cmp_lt_u32 s98, 0x40000")
        a("s_cbranch_scc1 Y_NF")
        a(f"s_mov_b32 s{sNC}, 1")
        a.label("Y_NF_OK")
        a("s_mov_b64 exec, 1")
        a(f"v_mov_b32 v2, {F_NC}")
        a(f"v_mov_b32 v4, s{sNC}")
        a(f"v_mov_b32 v5, s{sNC+1}")
        a("ds_write_b64 v2, v[4:5]")
        a("s_mov_b64 exec, -1")
        mark(a, 8)
        if TS_ENABLE[0]: a("s_add_u32 s68, s82, s98")
    nonce_fetch()
    a.label("Y_AWAIT")
    a(f"s_setprio {P['prio_att']}")
    att_setup(a)
    getnonce(a, "Y_ANC")
    lds_spin(a, "Y_SPIN", F_GO, 3)
    mark(a, 3)
    emit_att(a, vq, lq, dbg)
    a("s_branch Y_END")
    a.label("Y_G")
    a(f"s_setprio {P['prio_g']}")
    vq.order, vq.done, lq.order, lq.done = [], 0, [], 0
    PDG = GPD
    if P["gprime"] == 2:
        vq.order = [("w", g) for g in range(PDG) for _ in range(4)]
    if P["gprime"] == 1:
        for g in range(PDG): gdma(a, vq, g)
    a("s_and_b32 s22, s18, 1")
    a("s_sub_u32 s21, s16, 4")
    a("s_lshl_b32 s21, s21, 1")
    a("s_add_u32 s21, s21, s22")
    a("s_cmp_eq_u32 s22, 1")
    a("s_cselect_b32 s47, 0, 6")
    a("s_lshl_b32 s22, s22, 6")
    a("s_cmp_eq_u32 s16, 7")
    a("s_cselect_b32 s21, s47, s21")
    a("s_cselect_b32 s22, s22, 0")
    a(f"v_xor_b32 v{vT0}, s22, v{vT0}")
    a("s_lshl_b32 s48, s17, 3")
    a("s_add_u32 s48, s48, s18")
    a("s_mul_i32 s48, s48, 28672")
    a("s_lshl_b32 s22, s21, 12")
    a("s_add_u32 s48, s48, s22")
    a(f"s_add_u32 s48, s48, {HF_OFF}")
    a("s_mul_i32 s49, s18, 7")
    a("s_add_u32 s49, s49, s21")
    a("s_cmp_eq_u32 s16, 7")
    a("s_cselect_b32 s73, 1, 3")
    a("s_cselect_b32 s72, 1, 2")
    if P["stouch"]:
        a("s_mul_i32 s21, s19, 114688")
        a("s_sub_u32 s47, s16, 4")
        a("s_mul_i32 s22, s47, 28672")
        a("s_add_u32 s21, s21, s22")
        a("s_lshl_b32 s22, s18, 7")
        a("s_add_u32 s21, s21, s22")
        a(f"s_add_u32 s46, s{SD}, s21")
        a(f"s_addc_u32 s47, s{SD+1}, 0")
        for o in range(0, 28*1024, 1024): a(f"s_load_dword s21, s[46:47], {o}")
        a("s_waitcnt lgkmcnt(0)")
        a("s_lshl_b32 s21, s19, 15")
        a("s_sub_u32 s47, s16, 4")
        a("s_lshl_b32 s22, s47, 13")
        a("s_add_u32 s21, s21, s22")
        a("s_lshl_b32 s22, s18, 7")
        a("s_add_u32 s21, s21, s22")
        a(f"s_add_u32 s46, s{SO}, s21")
        a(f"s_addc_u32 s47, s{SO+1}, 0")
        for o in range(0, 8*1024, 1024): a(f"s_load_dword s21, s[46:47], {o}")
        a("s_waitcnt lgkmcnt(0)")
        a("s_cmp_eq_u32 s16, 7")
    if P["gwait"]:
        if P.get("w7free"):
            a("s_cbranch_scc1 Y_GW_OK")
        lds_spin(a, "Y_GW", F_GS, 1)
    if P["gprime"] == 0:
        for g in range(PDG): gdma(a, vq, g)
    mark(a, 8)
    def hpublish():
        a("s_mov_b32 s46, s73")
        a("s_mov_b32 s47, 0")
        a("s_lshl_b64 s[46:47], s[46:47], s49")
        a("s_mov_b64 exec, s[46:47]")
        flag_store(a); vq.issue("fl")
        a("s_mov_b64 exec, -1")
    sv = (list(vq.order), vq.done)
    a("s_cmp_eq_u32 s16, 7")
    a("s_cbranch_scc1 Y_G1")
    gunit(a, vq, lq, 2)
    mark(a, 10)
    gepilogue(a, vq, 2)
    mark(a, 9)
    a("s_branch Y_GDONE")
    a.label("Y_G1")
    vq.order, vq.done = sv
    lq.order, lq.done = [], 0
    gunit(a, vq, lq, 1)
    mark(a, 10)
    gepilogue(a, vq, 1)
    mark(a, 9)
    a.label("Y_GDONE")
    lds_add1(a, F_P1)
    SOUT = SQ
    a(f"s_load_dwordx2 s[{SOUT}:{SOUT+1}], s[0:1], {KA_OUT}")
    a(f"s_mov_b32 s{SOUT+2}, 2097152")
    getnonce(a, "Y_GNC")
    a("s_waitcnt vmcnt(0) lgkmcnt(0)")
    hpublish()
    gmark(a, 2)
    vq.order, vq.done, lq.order, lq.done = [], 0, [], 0
    lane_off8(a, vW8, 1024)
    tr_addr8(a, vT0, 9, f"s{sAREA}")
    a("s_sub_u32 s21, s16, 4")
    a("s_lshr_b32 s76, s21, 1")
    a("s_and_b32 s77, s21, 1")
    a("s_lshl_b32 s22, s77, 6")
    a(f"v_xor_b32 v{vT0}, s22, v{vT0}")
    a(f"v_xor_b32 v{vT0+1}, s22, v{vT0+1}")
    a("s_lshl_b32 s79, s21, 14")
    a(f"s_sub_u32 s22, s79, s{sAREA}")
    a(f"v_add_u32 v{vTx}, s22, v{vT0}")
    a(f"v_add_u32 v{vTx+1}, s22, v{vT0+1}")
    a("s_mul_i32 s29, s21, 458752")
    a("s_lshl_b32 s22, s18, 7")
    a("s_add_u32 s29, s29, s22")
    a("s_lshl_b32 s30, s17, 3")
    a("s_lshl_b32 s22, s21, 1")
    a("s_add_u32 s30, s30, s22")
    a("s_mul_i32 s30, s30, 28672")
    a(f"s_add_u32 s30, s30, {HF_OFF}")
    a("s_lshl_b32 s22, s76, 11")
    a("s_add_u32 s48, s30, s22")
    a("s_xor_b32 s22, s22, 2048")
    a("s_add_u32 s49, s30, s22")
    KS = [(c, u, q) for c in range(2) for u in range(7) for q in range(2)]
    NK = len(KS)
    NOWN = RINGG - 4
    DSLOT = [("o", 2048*i) for i in range(NOWN)] + [("x", 2048*i) for i in range(8)]
    NS = len(DSLOT)
    LW, LH = P["lw"], P["lh"]
    HR = LH + 1
    DACC, DFR, HB, PV = 64, 128, 144, 6
    assert HB + 8*HR <= 256 and LW < NS
    def ddma(t):
        c, u, q = KS[t]
        reg, off = DSLOT[t % NS]
        b = sAREA if reg == "o" else 79
        for i in range(2):
            a(f"s_add_u32 s31, s29, {(c*224 + u*32 + q*16 + 8*i)*1024}")
            a(f"s_add_u32 m0, s{b}, {off + 1024*i}")
            if P.get("nowd"): a("s_nop 0")
            else: a(f"buffer_load_dwordx4 v{vW8}, s[{SD}:{SD+3}], s31 offen lds")
            vq.issue(("d", t))
    def hload(t):
        c, u, q = KS[t]
        r = HB + 8*(t % HR)
        for m in range(2):
            a(f"s_add_u32 s31, s{48+m}, {c*28672 + u*4096 + q*1024}")
            if P.get("nohl"): a("s_nop 0")
            else: a(f"buffer_load_dwordx4 v[{r+4*m}:{r+4*m+3}], v{vL16}, s[{SWS}:{SWS+3}], s31 offen sc1")
            vq.issue(("h", t))
    def dtr(t):
        reg, off = DSLOT[t % NS]
        v = vT0 if reg == "o" else vTx
        f = DFR + 8*(t % 2)
        for nt in range(2):
            a(f"ds_read_b64_tr_b16 v[{f+4*nt}:{f+4*nt+1}], v{v+nt} offset:{off}"); lq.issue(("f", t))
            a(f"ds_read_b64_tr_b16 v[{f+4*nt+2}:{f+4*nt+3}], v{v+nt} offset:{off+1024}"); lq.issue(("f", t))
    def dmm(t, m, n):
        a(mfma(DACC + 16*(2*m + n), DFR + 8*(t % 2) + 4*n, HB + 8*(t % HR) + 4*m, "0" if t == 0 else DACC + 16*(2*m + n)))
    def pollwait(pfx, sleep):
        a("s_mov_b32 s98, 0")
        a.label(f"{pfx}_C")
        a("s_and_b64 s[46:47], s[96:97], s[74:75]")
        a("s_cmp_eq_u64 s[46:47], s[74:75]")
        a(f"s_cbranch_scc1 {pfx}_D")
        if sleep: a(f"s_sleep {sleep}")
        a("s_mov_b64 exec, s[74:75]")
        a(f"buffer_load_dwordx2 v[{PV}:{PV+1}], v{vFO}, s[{SWS}:{SWS+3}], s99 offen sc1")
        a("s_waitcnt vmcnt(0)")
        a(f"v_cmp_eq_u64 vcc, s[{sNC}:{sNC+1}], v[{PV}:{PV+1}]")
        a("s_mov_b64 exec, -1")
        a("s_or_b64 s[96:97], s[96:97], vcc")
        a("s_add_u32 s98, s98, 1")
        a("s_cmp_lt_u32 s98, 0x40000")
        a(f"s_cbranch_scc1 {pfx}_C")
        a.label(f"{pfx}_D")
    for t in range(NOWN): ddma(t)
    a("s_mul_i32 s22, s21, 14")
    a("s_mov_b64 s[96:97], 0")
    a("s_mov_b32 s74, 0x3fff")
    a("s_mov_b32 s75, 0")
    a("s_lshl_b64 s[74:75], s[74:75], s22")
    if P.get("p1late"):
        lds_spin(a, "Y_GS", F_P1, 7, sleep=4)
        gmark(a, 3)
        pollwait("Y_P1", P["hsleep"])
        for t in range(LH): hload(t)
    else:
        pollwait("Y_P1", P["hsleep"])
        for t in range(LH): hload(t)
        lds_spin(a, "Y_GS", F_P1, 7)
        gmark(a, 3)
    for t in range(NOWN, LW): ddma(t)
    a(f"s_setprio {P['prio_d']}")
    vq.wait(("d", 0))
    dtr(0)
    for t in range(NK):
        nx = t + 1 < NK
        lq.wait(("f", t))
        vq.wait(("h", t))
        dmm(t, 0, 0)
        if nx:
            vq.wait(("d", t+1)); dtr(t+1)
        dmm(t, 0, 1)
        if t + LW < NK: ddma(t + LW)
        dmm(t, 1, 0)
        dmm(t, 1, 1)
        if t + LH < NK: hload(t + LH)
    gmark(a, 4)
    a("s_lshl_b32 s30, s77, 1")
    a("s_add_u32 s30, s30, s76")
    a("s_lshl_b32 s30, s30, 17")
    a("s_lshl_b32 s31, s18, 7")
    a("s_add_u32 s30, s30, s31")
    for i in range(16):
        a(f"s_add_u32 m0, s79, {1024*i}")
        a(f"buffer_load_dwordx4 v{vW8}, s[{SO}:{SO+3}], s30 offen lds")
        a("s_add_u32 s30, s30, 8192")
    XR = 24
    vXO = 3
    a(f"v_and_b32 v{vXO}, 31, v{vLn}")
    a(f"v_lshlrev_b32 v{vXO}, 10, v{vXO}")
    a(f"v_lshrrev_b32 v4, 5, v{vLn}")
    a(f"v_lshl_add_u32 v{vXO}, v4, 4, v{vXO}")
    a("s_lshl_b32 s78, s17, 16")
    a("s_lshl_b32 s47, s76, 15")
    a("s_add_u32 s78, s78, s47")
    a("s_lshl_b32 s47, s18, 7")
    a("s_add_u32 s78, s78, s47")
    a("s_lshl_b32 s47, s77, 6")
    a("s_add_u32 s78, s78, s47")
    a(f"v_mov_b32 v{vTx}, v{vXO}")
    vXO = vTx
    for q in range(2):
        a(f"buffer_load_dwordx4 v[{XR+4*q}:{XR+4*q+3}], v{vXO}, s[{SX}:{SX+3}], s78 offen offset:{32*q}")
    AO, AP = 32, 48
    for jj in range(1, 4):
        a(f"s_xor_b32 s46, s21, {jj}")
        if jj < 3:
            a(f"s_mul_i32 s46, s46, {SGR}")
            a(f"s_add_u32 s46, s46, {L_GR + SGR - 8192 + (jj-1)*4096}")
        else:
            a("s_lshl_b32 s46, s46, 12")
            a(f"s_add_u32 s46, s46, {L_AR}")
        a(f"v_add_u32 v2, s46, v{vL16}")
        for r4 in range(4):
            r = DACC + 16*jj + 4*r4
            a(f"ds_write_b128 v2, v[{r}:{r+3}] offset:{1024*r4}")
    a("s_waitcnt vmcnt(0) lgkmcnt(0)")
    lds_add1(a, F_PP)
    lds_spin(a, "Y_GPP", F_PP, 4)
    gmark(a, 5)
    a(f"s_mul_i32 s46, s21, {SGR}")
    a(f"s_add_u32 s46, s46, {L_GR + SGR - 8192}")
    a(f"v_add_u32 v2, s46, v{vL16}")
    a("s_lshl_b32 s46, s21, 12")
    a(f"s_add_u32 s46, s46, {L_AR}")
    a(f"v_add_u32 v3, s46, v{vL16}")
    for jj in range(3):
        for r4 in range(4):
            r = 80 + 16*jj + 4*r4
            if jj < 2: a(f"ds_read_b128 v[{r}:{r+3}], v2 offset:{4096*jj + 1024*r4}")
            else: a(f"ds_read_b128 v[{r}:{r+3}], v3 offset:{1024*r4}")
    a("s_waitcnt lgkmcnt(0)")
    for r in range(16):
        a(f"v_add_f32 v{AO+r}, v{DACC+r}, v{80+r}")
        a(f"v_add_f32 v{96+r}, v{96+r}, v{112+r}")
    for r in range(16):
        a(f"v_add_f32 v{AO+r}, v{AO+r}, v{96+r}")
        a(f"v_mov_b32 v{AP+r}, 0")
    WF = 128
    a(f"s_lshl_b32 s47, s77, 14")
    a(f"s_add_u32 s47, s47, {L_X}")
    tr_addr8(a, vT0, 9, "s47")
    for ks in range(16):
        off = (ks >> 3)*32768 + (ks & 7)*2048
        for nt in range(2):
            f = WF + 8*ks + 4*nt
            a(f"ds_read_b64_tr_b16 v[{f}:{f+1}], v{vT0+nt} offset:{off}")
            a(f"ds_read_b64_tr_b16 v[{f+2}:{f+3}], v{vT0+nt} offset:{off+1024}")
    a("s_waitcnt lgkmcnt(0)")
    gmark(a, 6)
    lds_spin(a, "Y_GOC", F_OC, 4, sleep=2)
    a("s_lshl_b32 s75, s77, 2")
    a("s_add_u32 s75, s75, 24")
    a("s_lshl_b32 s75, 15, s75")
    a("s_mov_b32 s74, 0")
    a("s_mov_b64 s[96:97], 0")
    pollwait("Y_PO", P["osleep"])
    gmark(a, 7)
    a("s_lshl_b32 s46, s17, 1")
    a("s_add_u32 s46, s46, s76")
    a("s_lshl_b32 s46, s46, 15")
    a("s_lshl_b32 s47, s77, 14")
    a("s_add_u32 s46, s46, s47")
    a(f"s_add_u32 s46, s46, {OF_OFF}")
    OFR = 64
    vq.order, vq.done = [], 0
    for ks in range(16):
        a(f"buffer_load_dwordx4 v[{OFR+4*ks}:{OFR+4*ks+3}], v{vL16}, s[{SWS}:{SWS+3}], s46 offen offset:{1024*(ks%4)} sc1"); vq.issue(("o", ks))
        if ks % 4 == 3 and ks < 15: a("s_add_u32 s46, s46, 4096")
    a("s_cmp_eq_u32 s77, 0")
    a("s_cbranch_scc0 Y_OK1")
    for kh in range(2):
        if kh == 1: a.label("Y_OK1")
        sv = (list(vq.order), vq.done)
        for ks in range(16):
            vq.wait(("o", ks))
            a(mfma(AP, WF + 8*ks + 4*(1-kh), OFR + 4*ks, AP))
            a(mfma(AO, WF + 8*ks + 4*kh, OFR + 4*ks, AO))
        if kh == 0:
            a("s_branch Y_OK2")
            vq.order, vq.done = sv
    a.label("Y_OK2")
    gmark(a, 11)
    a("s_sub_u32 s21, s16, 4")
    a(f"s_mul_i32 s46, s21, {SGR}")
    a(f"s_add_u32 s46, s46, {L_GR}")
    a(f"v_add_u32 v2, s46, v{vL16}")
    a("s_nop 7")
    for r4 in range(4):
        a(f"ds_write_b128 v2, v[{AP+4*r4}:{AP+4*r4+3}] offset:{1024*r4}")
    a("s_waitcnt lgkmcnt(0)")
    a("s_lshl_b32 s47, s76, 2")
    a(f"s_add_u32 s47, s47, {F_X0}")
    a("s_mov_b64 exec, 1")
    a("v_mov_b32 v4, s47")
    a("v_mov_b32 v5, 1")
    a("ds_add_u32 v4, v5")
    a("s_mov_b64 exec, -1")
    a("v_mov_b32 v4, s47")
    a.label("Y_XS")
    a("ds_read_b32 v5, v4")
    a("s_waitcnt lgkmcnt(0)")
    a("v_readfirstlane_b32 s46, v5")
    a("s_cmp_ge_u32 s46, 2")
    a("s_cbranch_scc0 Y_XS")
    a("s_xor_b32 s21, s21, 1")
    a(f"s_mul_i32 s46, s21, {SGR}")
    a(f"s_add_u32 s46, s46, {L_GR}")
    a(f"v_add_u32 v2, s46, v{vL16}")
    for r4 in range(4):
        a(f"ds_read_b128 v[{AP+4*r4}:{AP+4*r4+3}], v2 offset:{1024*r4}")
    a("s_waitcnt lgkmcnt(0)")
    for r in range(16): a(f"v_add_f32 v{AO+r}, v{AO+r}, v{AP+r}")
    for q in range(2):
        for d in range(4): a(f"v_permlane32_swap_b32 v{AO+8*q+d}, v{AO+8*q+4+d}")
    for q in range(2):
        for d in range(4):
            a(f"v_lshlrev_b32 v4, 16, v{XR+4*q+d}")
            a(f"v_and_b32 v5, 0xffff0000, v{XR+4*q+d}")
            a(f"v_add_f32 v{AO+8*q+2*d}, v{AO+8*q+2*d}, v4")
            a(f"v_add_f32 v{AO+8*q+2*d+1}, v{AO+8*q+2*d+1}, v5")
        for d in range(4): a(f"v_cvt_pk_bf16_f32 v{AP+4*q+d}, v{AO+8*q+2*d}, v{AO+8*q+2*d+1}")
        a(f"buffer_store_dwordx4 v[{AP+4*q}:{AP+4*q+3}], v{vXO}, s[{SOUT}:{SOUT+3}], s78 offen offset:{32*q}")

def att_setup(a):
    R = P["kvr"]; KR = 136; VR = KR + 4*R
    a(f"v_lshrrev_b32 v2, 5, v{vLn}")
    a(f"v_lshlrev_b32 v{vVo}, 8, v2")
    a(f"v_and_b32 v2, 15, v{vLn}")
    a(f"v_lshl_add_u32 v{vVo}, v2, 4, v{vVo}")
    a(f"v_and_b32 v2, 27, v{vLn}")
    a(f"v_mov_b32 v{VR}, 0x3f803f80")
    a("v_cmp_eq_u32 vcc, 16, v2")
    a(f"v_cndmask_b32 v{VR}, 0, v{VR}, vcc")
    for r in range(1, 8*R): a(f"v_mov_b32 v{VR+r}, v{VR}")

def emit_att(a, vq, lq, dbg):
    pfx = "AT"
    R = P["kvr"]; LA = R - 1
    Qf = [24, 28]; NEG = [32, 48]; S = [64, 80]; O = [96, 112]; Pp = 128; KR = 136; VR = KR + 4*R; T = VR + 8*R
    assert T + 2 <= 256
    NIT = 64 // R
    a("s_mov_b32 s19, s16")
    a("s_lshl_b32 s21, s18, 2")
    a("s_add_u32 s21, s21, s19")
    a("s_lshl_b32 s21, s21, 16")
    a(f"s_add_u32 s21, s21, {KF_OFF}")
    a("s_lshl_b32 s22, s17, 11")
    a("s_mov_b32 s74, 1")
    a("s_mov_b32 s75, 1")
    a("s_mov_b32 s76, 0x0000ffff")
    a("s_mov_b32 s77, 0x0000ffff")
    vq.order, vq.done, lq.order, lq.done = [], 0, [], 0
    refresh = []
    def kvload(t, site):
        if t % 2 == 0:
            a("s_andn2_b32 s96, s74, s75")
            a(f"s_cbranch_scc0 {pfx}_RF{site}")
            a.label(f"{pfx}_BK{site}")
            a("s_ff1_i32_b32 s96, s96")
            a("s_bitset1_b32 s75, s96")
            a("s_add_u32 s23, s96, s17")
            a("s_and_b32 s23, s23, 15")
            a("s_xor_b32 s96, s96, s17")
            a("s_and_b32 s96, s96, 16")
            a("s_or_b32 s23, s23, s96")
            a("s_lshl_b32 s23, s23, 11")
            refresh.append(site)
        else:
            a("s_add_u32 s23, s23, 1024")
        a("s_add_u32 s46, s21, s23")
        a(f"buffer_load_dwordx4 v[{KR+4*(t%R)}:{KR+4*(t%R)+3}], v{vL16}, s[{SWS}:{SWS+3}], s46 offen sc1"); vq.issue(("K", t))
        a(f"s_add_u32 s47, s46, {VF_OFF-KF_OFF}")
        a("s_mov_b64 exec, s[76:77]")
        r = VR + 8*(t % R)
        a(f"buffer_load_dwordx4 v[{r}:{r+3}], v{vVo}, s[{SWS}:{SWS+3}], s47 offen sc1"); vq.issue(("V", t))
        a(f"buffer_load_dwordx4 v[{r+4}:{r+7}], v{vVo}, s[{SWS}:{SWS+3}], s47 offen offset:512 sc1"); vq.issue(("V", t))
        a("s_mov_b64 exec, -1")
    def emit_refresh(site):
        a.label(f"{pfx}_RF{site}")
        a("s_mov_b32 s98, 0")
        a.label(f"{pfx}_RL{site}")
        a(f"v_mov_b32 v2, {F_MASK}")
        a("ds_read_b32 v3, v2")
        a("s_waitcnt lgkmcnt(0)")
        a("v_readfirstlane_b32 s96, v3")
        a("s_or_b32 s74, s74, s96")
        a("s_andn2_b32 s96, s74, s75")
        a(f"s_cbranch_scc1 {pfx}_BK{site}")
        poll_once(a)
        if TS_ENABLE[0]: a("s_add_u32 s64, s64, 1")
        a("s_andn2_b32 s96, s74, s75")
        a(f"s_cbranch_scc1 {pfx}_BK{site}")
        a(f"s_sleep {P['rsleep']}")
        a("s_add_u32 s98, s98, 1")
        a("s_cmp_lt_u32 s98, 0x40000")
        a(f"s_cbranch_scc1 {pfx}_RL{site}")
        a("s_not_b32 s96, s75")
        a(f"s_branch {pfx}_BK{site}")
    if TS_ENABLE[0]: a("s_mov_b32 s64, s82")
    a("s_lshl_b32 s46, s19, 11")
    a(f"s_add_u32 s47, s46, {L_QO}")
    a(f"v_add_u32 v2, s47, v{vL16}")
    a(f"ds_read_b128 v[{Qf[0]}:{Qf[0]+3}], v2")
    a(f"ds_read_b128 v[{Qf[1]}:{Qf[1]+3}], v2 offset:1024")
    a(f"s_add_u32 s47, s46, {L_AR}")
    a(f"v_add_u32 v2, s47, v{vL16}")
    a(f"ds_read_b128 v[{KR}:{KR+3}], v2")
    a(f"ds_read_b128 v[{KR+4}:{KR+7}], v2 offset:1024")
    a(f"s_add_u32 s47, s46, {L_AR + SA}")
    a(f"v_add_u32 v2, s47, v{vVo}")
    a("s_mov_b64 exec, s[76:77]")
    for t in range(2):
        a(f"ds_read_b128 v[{VR+8*t}:{VR+8*t+3}], v2 offset:{1024*t}")
        a(f"ds_read_b128 v[{VR+8*t+4}:{VR+8*t+7}], v2 offset:{1024*t+512}")
    a("s_mov_b64 exec, -1")
    for q in range(2):
        for r in range(16): a(f"v_mov_b32 v{O[q]+r}, 0")
    a("s_waitcnt lgkmcnt(0)")
    m = T
    for q in range(2):
        a(mfma(S[0], KR, Qf[q], "0"))
        a(mfma(S[1], KR+4, Qf[q], "0"))
        a(f"v_max3_f32 v{m}, v{S[0]}, v{S[0]+1}, v{S[0]+2}")
        for r in range(3, 15, 2):
            a(f"v_max3_f32 v{m}, v{m}, v{S[0]+r}, v{S[0]+r+1}")
        a(f"v_max3_f32 v{m}, v{m}, v{S[0]+15}, v{S[1]}")
        for r in range(1, 15, 2):
            a(f"v_max3_f32 v{m}, v{m}, v{S[1]+r}, v{S[1]+r+1}")
        a(f"v_max_f32 v{m}, v{m}, v{S[1]+15}")
        a(f"v_mov_b32 v{m+1}, v{m}")
        a(f"v_permlane32_swap_b32 v{m}, v{m+1}")
        a(f"v_max_f32 v{m}, v{m}, v{m+1}")
        a(f"v_add_f32 v{m}, {hexf(ATT_OFFSET)}, v{m}")
        a(f"v_sub_f32 v{NEG[q]}, 0, v{m}")
        for r in range(1, 16): a(f"v_mov_b32 v{NEG[q]+r}, v{NEG[q]}")
    for r in range(4, 8): a(f"v_mov_b32 v{Pp+r}, 0")
    if not P.get("am"): mark(a, 11)
    a("s_cmp_lt_u32 s16, 2")
    a(f"s_cbranch_scc0 {pfx}_NP")
    publish(a, "KVP")
    a.label(f"{pfx}_NP")
    for t in range(2, LA): kvload(t, f'P{t}')
    a(mfma(S[0], KR, Qf[0], NEG[0]))
    a("s_mov_b32 s26, 0")
    a("s_nop 7")
    mark(a, 4)
    E = lambda r: a(f"v_exp_f32 v{r}, v{r}")
    C = lambda d, r: a(f"v_cvt_pk_bf16_f32 v{d}, v{r}, v{r+1}")
    entry = [("V", 0), ("V", 0)] + [x for i in range(1, LA) for x in (("K", i), ("V", i), ("V", i))]
    def body(last):
        vq.order = list(entry); vq.done = 0
        for t in range(R):
            for q in range(2):
                Sa = S[q]; Sb = S[1-q]
                if q == 0:
                    a(mfma(Sb, KR + 4*(t % R), Qf[1], NEG[1]))
                elif not (last and t == R-1):
                    vq.wait(("K", t+1))
                    a(mfma(Sb, KR + 4*((t+1) % R), Qf[0], NEG[0]))
                E(Sa+0); E(Sa+1); E(Sa+2); E(Sa+3)
                C(Pp+0, Sa+0); E(Sa+4); C(Pp+1, Sa+2); E(Sa+5); E(Sa+6); E(Sa+7)
                tp = t if q == 1 else t - 1
                a(mfma(O[1-q], VR + 8*(tp % R) + 4, Pp+4, O[1-q]))
                if q == 0 and (not last or t + LA < R): kvload(t + LA, f'{"Z" if last else "L"}{t}')
                E(Sa+8); C(Pp+2, Sa+4); E(Sa+9); C(Pp+3, Sa+6); E(Sa+10); E(Sa+11)
                E(Sa+12); C(Pp+4, Sa+8)
                if q == 0: vq.wait(("V", t))
                a(mfma(O[q], VR + 8*(t % R), Pp, O[q]))
                E(Sa+13); C(Pp+5, Sa+10); E(Sa+14); E(Sa+15)
                C(Pp+6, Sa+12); C(Pp+7, Sa+14)
        if not last:
            shift = lambda tg: (tg[0], tg[1] - R)
            known_k = ("K", R)
            tail = [shift(x) for x in vq.order[[i for i, x in enumerate(vq.order) if x == known_k][-1]+1:]]
            assert tail == entry, (tail, entry)
    a.label(f"{pfx}_LOOP")
    body(False)
    a("s_add_u32 s26, s26, 1")
    if P.get("am") and TS_ENABLE[0]:
        for k, mi in ((1, 8), (3, 9), (5, 10), (7, 11)):
            a(f"s_cmp_eq_u32 s26, {k*NIT//8}")
            a(f"s_cbranch_scc0 {pfx}_AM{k}")
            mark(a, mi)
            a.label(f"{pfx}_AM{k}")
    a(f"s_cmp_lt_u32 s26, {NIT-1}")
    a(f"s_cbranch_scc1 {pfx}_LOOP")
    body(True)
    mark(a, 5)
    a(mfma(O[1], VR + 8*(R-1) + 4, Pp+4, O[1]))
    OWN, TT, QOWN = 80, 48, 60
    a("s_nop 15")
    for q in range(2):
        a("s_mov_b32 s46, 0x207")
        a("s_mov_b32 s47, 0x2ff")
        for r in range(9): a(f"v_mov_b32 v{OWN+r}, v{O[q]+r}")
        a(f"v_cmp_class_f32 s[78:79], v{OWN+8}, s47")
        for r in range(8):
            a(f"v_cmp_class_f32 vcc, v{OWN+r}, s46")
            a("s_or_b64 s[78:79], s[78:79], vcc")
        a("s_cmp_lg_u64 s[78:79], 0")
        a(f"s_cbranch_scc1 {pfx}_SLOW{q}")
        a.label(f"{pfx}_OUT{q}")
        a(f"v_rcp_f32 v{TT}, v{OWN+8}")
        for r in range(8): a(f"v_mul_f32 v{OWN+r}, v{OWN+r}, v{TT}")
        for d in range(4): a(f"v_cvt_pk_bf16_f32 v{T-8+4*q+d}, v{OWN+2*d}, v{OWN+2*d+1}")
        a("s_lshl_b32 s46, s17, 1"); a(f"s_add_u32 s46, s46, {q}"); a("s_lshl_b32 s46, s46, 15")
        a("s_lshl_b32 s47, s18, 2"); a("s_add_u32 s47, s47, s19"); a("s_lshl_b32 s47, s47, 10")
        a("s_add_u32 s46, s46, s47"); a(f"s_add_u32 s46, s46, {OF_OFF}")
        a(f"buffer_store_dwordx4 v[{T-8+4*q}:{T-5+4*q}], v{vL16}, s[{SWS}:{SWS+3}], s46 offen sc1")
    a("s_waitcnt vmcnt(0)")
    mark(a, 6)
    a("s_mov_b64 exec, 1")
    a(f"v_mov_b32 v2, {F_OC+12}")
    a("v_mov_b32 v3, 1")
    a("ds_add_rtn_u32 v4, v2, v3")
    a("s_waitcnt lgkmcnt(0)")
    a("v_readfirstlane_b32 s46, v4")
    a("s_cmp_eq_u32 s46, 3")
    a(f"s_cbranch_scc0 {pfx}_NOPUB")
    a("s_mov_b32 exec_lo, 0")
    a("s_mov_b32 exec_hi, 1")
    flag_store(a)
    a(f"v_mov_b32 v2, {F_OC}")
    a("v_mov_b32 v3, 4")
    a("ds_write_b32 v2, v3")
    a.label(f"{pfx}_NOPUB")
    a("s_mov_b64 exec, -1")
    a(f"s_branch {pfx}_END")
    for site in refresh: emit_refresh(site)
    KS, VS, SS, NS_, PS = KR, VR, S[0], NEG[0], Pp
    for q in range(2):
        a.label(f"{pfx}_SLOW{q}")
        for r in range(4): a(f"v_mov_b32 v{QOWN+r}, v{Qf[q]+r}")
        a("s_mov_b32 s46, s21")
        a(f"v_mov_b32 v{TT}, 0xff800000")
        a("s_mov_b32 s26, 0")
        a.label(f"{pfx}_SL1_{q}")
        a(f"buffer_load_dwordx4 v[{KS}:{KS+3}], v{vL16}, s[{SWS}:{SWS+3}], s46 offen sc1")
        a("s_waitcnt vmcnt(0)")
        a(mfma(SS, KS, QOWN, "0"))
        for r in range(0, 16, 2):
            a(f"v_max3_f32 v{TT}, v{TT}, v{SS+r}, v{SS+r+1}")
        a("s_add_u32 s46, s46, 1024")
        a("s_add_u32 s26, s26, 1")
        a("s_cmp_lt_u32 s26, 64")
        a(f"s_cbranch_scc1 {pfx}_SL1_{q}")
        a(f"v_mov_b32 v{TT+1}, v{TT}")
        a(f"v_permlane32_swap_b32 v{TT}, v{TT+1}")
        a(f"v_max_f32 v{TT}, v{TT}, v{TT+1}")
        a(f"v_sub_f32 v{NS_}, 0, v{TT}")
        for r in range(1, 16): a(f"v_mov_b32 v{NS_+r}, v{NS_}")
        for r in range(16): a(f"v_mov_b32 v{OWN+r}, 0")
        a("s_mov_b32 s46, s21")
        a("s_mov_b32 s26, 0")
        a.label(f"{pfx}_SL2_{q}")
        a(f"buffer_load_dwordx4 v[{KS}:{KS+3}], v{vL16}, s[{SWS}:{SWS+3}], s46 offen sc1")
        a(f"s_add_u32 s47, s46, {VF_OFF-KF_OFF}")
        a("s_mov_b64 exec, s[76:77]")
        a(f"buffer_load_dwordx4 v[{VS}:{VS+3}], v{vVo}, s[{SWS}:{SWS+3}], s47 offen sc1")
        a(f"buffer_load_dwordx4 v[{VS+4}:{VS+7}], v{vVo}, s[{SWS}:{SWS+3}], s47 offen offset:512 sc1")
        a("s_mov_b64 exec, -1")
        a("s_waitcnt vmcnt(0)")
        a(mfma(SS, KS, QOWN, NS_))
        for r in range(16): E(SS+r)
        for d in range(8): C(PS+d, SS+2*d)
        a(mfma(OWN, VS, PS, OWN))
        a(mfma(OWN, VS+4, PS+4, OWN))
        a("s_add_u32 s46, s46, 1024")
        a("s_add_u32 s26, s26, 1")
        a("s_cmp_lt_u32 s26, 64")
        a(f"s_cbranch_scc1 {pfx}_SL2_{q}")
        a("s_nop 15")
        a(f"s_branch {pfx}_OUT{q}")
    a.label(f"{pfx}_END")

def gen_y(label, dbg=False):
    k = Kernel(label, 256, 512, LDS_TOTAL, 256, 100)
    a = k.a
    a("s_cmp_ge_u32 s2, 256")
    a("s_cbranch_scc1 Y_END")
    emit_y(a, dbg)
    a.label("Y_END")
    return k

if __name__ == "__main__":
    import sys
    out = sys.argv[1]; opts = sys.argv[2:]
    if "ts" in opts: TS_ENABLE[0] = True
    if "lnm" in opts: LNM[0] = True
    for o in opts:
        if "=" in o:
            kk, vv = o.split("="); P[kk] = int(vv)
    ks = [gen_y(NAME + "_kernel", dbg="dbg" in opts)]
    open(out, "w").write(build_file(ks))
```

```python
from common import *
import z
from z import lane_off8, tr_addr8, ln_loads, gen_fin2, PF_OFF, ATT_OFFSET
P = dict(gstart=28, prio_kv=3, prio_att=0, prio_g=0, gwait=1, zrow=1, psleep=8, rsleep=4, ringa=4, ringg=8, gprime=0, pdx=1, prio_e=2, prio_d=0, lw=9, lh=7, hsleep=8, fsleep=16, osleep=2, dual=1, kvr=8, stouch=1, pwait=1, ncv=1, fsh=7, lock=1, lsleep=2, kv1=1, h1=1, o1=1, sched=1, ptog=0, phi=2, pk=0, qstart=0, deep=0, fa=1, spr=0, gspr=0, gtouch=0)
sBOR = 50
def S1(k): return " sc1" if P[k] else ""
import sys
for o in sys.argv[2:]:
    if "=" in o:
        kk, vv = o.split("="); P[kk] = int(vv)

L_X, L_AR, LDS_TOTAL = 0, 65536, 163840
SA, SGR = P["ringa"]*2048, P["ringg"]*2048
L_GR = L_AR + 3*SA
L_QO = L_AR + 2*SA
L_FL = 159744
assert L_GR + 4*SGR <= L_FL and SA >= 8192 and SGR >= 8192 + 2*2048
F_PUB, F_GO, F_QD, F_GS, F_P1, F_MASK = L_FL, L_FL+4, L_FL+8, L_FL+12, L_FL+16, L_FL+20
SQ, SG, SU, SX, SD, SO, SWS, SDBG = 4, 8, 12, 24, 32, 36, 40, 44
sAREA = 28
vLn, vW8, vWm, vT0, vTm, vX0, vL16, vVo, vTx = 1, 10, 11, 12, 14, 16, 20, 21, 22
LNX, LNT = 64, 96
ACC, FR, XB = 128, 192, 208
RINGG = P["ringg"]
def ring_of(kind): return P["ringa"] if kind in "WV" else RINGG
LNM = [False]
FL_OFF = 0x3000000
FL2_OFF = FL_OFF + 0x10000
F_PP, F_FM, F_OC, F_X0, F_NC = L_FL+24, L_FL+28, L_FL+32, L_FL+48, L_FL+56
F_LK = L_FL+64
sNC = 2
vFO, vSN = 8, 9

def ids(a):
    a("v_and_b32 v1, 63, v0")
    a("v_lshrrev_b32 v2, 6, v0")
    a("v_readfirstlane_b32 s16, v2")
    if P.get("badmap"):
        a("s_lshr_b32 s20, s2, 5"); a("s_and_b32 s21, s2, 31")
    else:
        a("s_and_b32 s20, s2, 7")
        a("s_lshr_b32 s21, s2, 3")
    a("s_lshr_b32 s19, s21, 1")
    a("s_lshr_b32 s17, s20, 2")
    a("s_lshl_b32 s17, s17, 4")
    a("s_add_u32 s17, s17, s19")
    a("s_and_b32 s18, s20, 3")
    a("s_lshl_b32 s18, s18, 1")
    a("s_and_b32 s21, s21, 1")
    a("s_add_u32 s18, s18, s21")

def ln_addr_x(a):
    r, c = LNT+2, LNT+3
    a(f"v_lshrrev_b32 v{r}, 3, v{vLn}")
    a(f"v_and_b32 v{c}, 7, v{vLn}")
    a(f"v_lshlrev_b32 v{LNT}, 10, v{r}")
    a(f"v_lshl_add_u32 v{LNT}, v{c}, 4, v{LNT}")
    a("s_lshl_b32 s23, s17, 16")
    a("s_lshl_b32 s22, s16, 13")
    a("s_add_u32 s23, s23, s22")

def ln_addr_rest(a):
    r, c = LNT+2, LNT+3
    t = LNT+4
    a(f"v_lshrrev_b32 v{t}, 1, v{c}")
    a(f"v_lshlrev_b32 v{t}, 10, v{t}")
    a(f"v_and_b32 v{t+1}, 1, v{c}")
    a(f"v_lshl_add_u32 v{t}, v{t+1}, 9, v{t}")
    a("s_and_b32 s21, s16, 3")
    a("s_lshl_b32 s21, s21, 7")
    a("s_lshr_b32 s22, s16, 2")
    a("s_lshl_b32 s22, s22, 15")
    a("s_add_u32 s22, s22, s21")
    a(f"v_xor_b32 v{t+1}, v{r}, v{c}")
    a(f"v_lshl_add_u32 v{LNT+1}, v{t+1}, 4, v{t}")
    a(f"v_add_u32 v{LNT+1}, s22, v{LNT+1}")
    a(f"v_lshrrev_b32 v{t}, 5, v{vLn}")
    for q in range(4):
        a(f"v_add_u32 v{t+1}, {2*q}, v{t}")
        a(f"v_xor_b32 v{t+1}, v{t+1}, v{vLn}")
        a(f"v_lshlrev_b32 v{vX0+q}, 4, v{t+1}")

def ln_stats(a, vq):
    X = LNX
    ONES, A1, B1, A2, B2 = LNT+8, LNT+9, LNT+10, LNT+11, LNT+12
    a(f"v_mov_b32 v{ONES}, 0x3f803f80")
    for r in (A1, B1, A2, B2): a(f"v_mov_b32 v{r}, 0")
    if LNM[0]: mark(a, 8)
    for i in range(8):
        vq.wait(("x", i))
        if LNM[0] and i == 0: mark(a, 9)
        for d in range(4):
            r = X + 4*i + d
            a(f"v_dot2c_f32_bf16 v{A1 if d%2==0 else B1}, v{r}, v{ONES}")
            a(f"v_dot2c_f32_bf16 v{A2 if d%2==0 else B2}, v{r}, v{r}")
    a("s_nop 2")
    if LNM[0]: mark(a, 10)

def ln_norm(a, lq):
    X = LNX
    ONES, A1, B1, A2, B2 = LNT+8, LNT+9, LNT+10, LNT+11, LNT+12
    a(f"v_add_f32 v{A1}, v{A1}, v{B1}")
    a(f"v_add_f32 v{A2}, v{A2}, v{B2}")
    for mod in ("quad_perm:[1,0,3,2]", "quad_perm:[2,3,0,1]", "row_half_mirror"):
        a(f"v_add_f32_dpp v{A1}, v{A1}, v{A1} {mod} row_mask:0xf bank_mask:0xf")
        a(f"v_add_f32_dpp v{A2}, v{A2}, v{A2} {mod} row_mask:0xf bank_mask:0xf")
    a(f"v_mul_f32 v{A1}, 0x3b000000, v{A1}")
    a(f"v_mul_f32 v{A2}, 0x3b000000, v{A2}")
    a(f"v_fma_f32 v{A2}, -v{A1}, v{A1}, v{A2}")
    a(f"v_max_f32 v{A2}, 0, v{A2}")
    a(f"v_add_f32 v{A2}, 0x3727c5ac, v{A2}")
    SC, BI = LNT+14, LNT+13
    a(f"v_rsq_f32 v{SC}, v{A2}")
    a(f"v_mul_f32 v{BI}, v{A1}, v{SC}")
    a(f"v_sub_f32 v{BI}, 0, v{BI}")
    T = LNT+16
    for kx in range(32):
        r = X + kx; t = T + 2*(kx % 4)
        a(f"v_lshlrev_b32 v{t}, 16, v{r}")
        a(f"v_and_b32 v{t+1}, 0xffff0000, v{r}")
        a(f"v_fma_f32 v{t}, v{t}, v{SC}, v{BI}")
        a(f"v_fma_f32 v{t+1}, v{t+1}, v{SC}, v{BI}")
        a(f"v_cvt_pk_bf16_f32 v{r}, v{t}, v{t+1}")
        if kx % 4 == 3:
            i = kx // 4
            a(f"ds_write_b128 v{LNT+1}, v[{X+4*i}:{X+4*i+3}] offset:{i*4096}")
            lq.issue(("xw", i))

def dma_step(a, vq, kind, slot, tag, base=None, half=None):
    sl = slot * 2048
    if kind in "WV":
        for i in (range(2) if half is None else [half]):
            a(f"s_add_u32 m0, s{sAREA if base is None else base}, {sl + 1024*i}")
            a(f"buffer_load_dwordx4 v{vW8}, s[{SQ}:{SQ+3}], s29 offen lds"); vq.issue(tag)
            a(f"s_add_u32 s29, s29, {8*3072}")
    else:
        a(f"s_add_u32 m0, s{sAREA}, {sl}")
        a(f"buffer_load_dwordx4 v{vWm}, s[{SG}:{SG+3}], s30 offen lds"); vq.issue(tag)
        a(f"s_add_u32 m0, s{sAREA}, {sl + 1024}")
        a(f"buffer_load_dwordx4 v{vWm}, s[{SU}:{SU+3}], s30 offen lds"); vq.issue(tag)
        a(f"s_add_u32 s30, s30, {16*3584}")

def unit_body(a, vq, lq, kind, wrap, hook_step=None, dma_pre=None, phase=0, dma_post=None):
    RING = ring_of(kind); PD = RING - 1 + P["pdx"]
    deep = P["deep"] and kind in "WV"
    dslot = lambda g: g % 8 if (g < 28 or P["deep"] == 2) else g - 28
    def ddma(gp):
        sl = dslot(gp)
        dma_step(a, vq, kind, sl % 4, ("w", gp), base=(sBOR if sl >= 4 else None))
    def trr(g):
        sl = ((g + phase) % RING) * 2048
        vt = vT0
        if deep:
            sl = (dslot(g) % 4) * 2048
            if dslot(g) >= 4: vt = vTx
        f = fbuf(g)
        for nt in range(2):
            if kind in "WV":
                a(f"ds_read_b64_tr_b16 v[{f+4*nt}:{f+4*nt+1}], v{vt+nt} offset:{sl}"); lq.issue(("f", g))
                a(f"ds_read_b64_tr_b16 v[{f+4*nt+2}:{f+4*nt+3}], v{vt+nt} offset:{sl+512}"); lq.issue(("f", g))
            else:
                a(f"ds_read_b64_tr_b16 v[{f+4*nt}:{f+4*nt+1}], v{vTm} offset:{sl+nt*1024}"); lq.issue(("f", g))
                a(f"ds_read_b64_tr_b16 v[{f+4*nt+2}:{f+4*nt+3}], v{vTm} offset:{sl+nt*1024+256}"); lq.issue(("f", g))
    FA = P["fa"]
    fbuf = (lambda g: [FR, FR+8, 224][g % 3]) if FA == 3 else (lambda g: FR + 8*(g % 2))
    xbuf = (lambda g: [XB, XB+8, 232][g % 3]) if FA == 3 else (lambda g: XB + 8*(g % 2))
    def xread(g):
        for mt in range(2):
            xb = xbuf(g) + 4*mt
            a(f"ds_read_b128 v[{xb}:{xb+3}], v{vX0 + g%4} offset:{mt*32768 + g*1024}"); lq.issue(("f", g))
    def mm(g, nt, mt):
        f = fbuf(g) + 4*nt; xb = xbuf(g) + 4*mt
        acc = ACC + 16*(2*mt+nt)
        c = "0" if g == 0 else acc
        a(mfma(acc, xb, f, c) if kind == "V" else mfma(acc, f, xb, c))
    if deep:
        assert RING == 4 and PD == 4 and P["gstart"] >= (24 if P["deep"] == 1 else 31)
        for gp in range(4, 8): ddma(gp)
    vq.wait(("w", 0))
    trr(0); xread(0)
    AH = 2 if FA == 3 else 1
    if FA == 3:
        vq.wait(("w", 1)); trr(1); xread(1)
    for g in range(32):
        nx = g + AH < 32
        lq.wait(("f", g))
        if nx and FA >= 2: xread(g+AH)
        mm(g, 0, 0)
        if nx:
            vq.wait(("w", g+AH)); trr(g+AH)
        mm(g, 1, 0)
        if nx and FA == 1: xread(g+1)
        if P["spr"] and not deep and g + PD < 32:
            dma_step(a, vq, kind, (g+PD+phase) % RING, ("w", g+PD), half=0)
            mm(g, 0, 1)
            dma_step(a, vq, kind, (g+PD+phase) % RING, ("w", g+PD), half=1)
            mm(g, 1, 1)
            if hook_step: hook_step(g)
            continue
        mm(g, 0, 1)
        if deep:
            if g < (20 if P["deep"] == 1 else 24): ddma(g + 8)
            elif 24 <= g < 28 and P["deep"] == 1: ddma(g + 4)
        elif g + PD < 32 or wrap:
            if dma_pre: dma_pre(g + PD)
            dma_step(a, vq, kind, (g+PD+phase) % RING, ("w", g+PD))
            if dma_post: dma_post(g + PD)
        mm(g, 1, 1)
        if hook_step: hook_step(g)

def glu_epilogue(a, vq, sdst):
    a(f"s_mov_b32 s31, {hexf(-1.4426950408889634)}")
    H = XB
    for mt in range(2):
        g = ACC + 32*mt; u = g + 16
        for i in range(16): a(f"v_mul_f32 v{g+i}, s31, v{g+i}")
        for i in range(16): a(f"v_exp_f32 v{g+i}, v{g+i}")
        for i in range(16): a(f"v_add_f32 v{g+i}, 1.0, v{g+i}")
        for i in range(16): a(f"v_rcp_f32 v{g+i}, v{g+i}")
        for i in range(16): a(f"v_mul_f32 v{g+i}, v{g+i}, v{u+i}")
        for d in range(8): a(f"v_cvt_pk_bf16_f32 v{H+8*mt+d}, v{g+2*d}, v{g+2*d+1}")
    for mt in range(2):
        for q in range(2):
            a(f"buffer_store_dwordx4 v[{H+8*mt+4*q}:{H+8*mt+4*q+3}], v{vL16}, s[{SWS}:{SWS+3}], s{sdst} offen offset:{mt*2048 + q*1024} sc1"); vq.issue("hst")

GRING = 4
GPD = GRING - 1 + P["pdx"]
GF, GX, GACC = 64, 96, 128
def gdma(a, vq, g, part=None):
    sl = (g % GRING) * 4096
    if part in (None, 0): a(f"s_add_u32 s31, s30, {8*3584}")
    for i, (srd_, so) in enumerate(((SG, 30), (SG, 31), (SU, 30), (SU, 31))):
        if part is not None and i != part: continue
        a(f"s_add_u32 m0, s{sAREA}, {sl + 1024*i}")
        a(f"buffer_load_dwordx4 v{vWm}, s[{srd_}:{srd_+3}], s{so} offen lds"); vq.issue(("w", g))
    if part in (None, 3): a(f"s_add_u32 s30, s30, {16*3584}")

def gunit(a, vq, lq, nu):
    tiles = [(p, n) for p in range(2) for n in range(nu)]
    def trr(g, p):
        sl = (g % GRING) * 4096 + p*2048
        for n in range(nu):
            f = GF + 16*(g % 2) + 4*(2*p + n)
            a(f"ds_read_b64_tr_b16 v[{f}:{f+1}], v{vT0+n} offset:{sl}"); lq.issue(("f", g))
            a(f"ds_read_b64_tr_b16 v[{f+2}:{f+3}], v{vT0+n} offset:{sl+512}"); lq.issue(("f", g))
    def xread(g):
        for mt in range(2):
            xb = GX + 8*(g % 2) + 4*mt
            a(f"ds_read_b128 v[{xb}:{xb+3}], v{vX0 + g%4} offset:{mt*32768 + g*1024}"); lq.issue(("f", g))
    def mm(g, p, n, mt):
        f = GF + 16*(g % 2) + 4*(2*p + n); xb = GX + 8*(g % 2) + 4*mt
        acc = GACC + 16*(4*mt + 2*p + n)
        a(mfma(acc, f, xb, "0" if g == 0 else acc))
    vq.wait(("w", 0))
    trr(0, 0); trr(0, 1); xread(0)
    for g in range(32):
        nx = g + 1 < 32
        lq.wait(("f", g))
        seq = [(p, n, mt) for mt in range(2) for (p, n) in tiles]
        acts = []
        if nx:
            acts.append(lambda: (vq.wait(("w", g+1)), trr(g+1, 0)))
            acts.append(lambda: trr(g+1, 1))
            acts.append(lambda: xread(g+1))
        if g + GPD < 32:
            if P["gspr"]:
                for part in range(4): acts.append(lambda part=part: gdma(a, vq, g + GPD, part))
            else: acts.append(lambda: gdma(a, vq, g + GPD))
        for i, (p, n, mt) in enumerate(seq):
            mm(g, p, n, mt)
            if i < len(acts): acts[i]()
        for act in acts[len(seq):]: act()
        if P.get("gma") and g in (0, 3, 7, 11, 15, 23): mark(a, {0: 2, 3: 3, 7: 4, 11: 5, 15: 6, 23: 7}[g])

def gepilogue(a, vq, nu):
    a(f"s_mov_b32 s31, {hexf(-1.4426950408889634)}")
    if P["pk"]:
        a("s_mov_b32 s30, s31")
        a("s_mov_b32 s31, 1.0")
    a(f"s_setprio {P['prio_e']}")
    for n in range(nu):
        H = GF + 16*n
        for mt in range(2):
            g = GACC + 16*(4*mt + n); u = g + 32
            if P["pk"]:
                for i in range(0, 16, 2): a(f"v_pk_mul_f32 v[{g+i}:{g+i+1}], v[{g+i}:{g+i+1}], s[30:31] op_sel_hi:[1,0]")
                for i in range(16): a(f"v_exp_f32 v{g+i}, v{g+i}")
                for i in range(0, 16, 2): a(f"v_pk_add_f32 v[{g+i}:{g+i+1}], v[{g+i}:{g+i+1}], s[30:31] op_sel:[0,1] op_sel_hi:[1,1]")
                for i in range(16): a(f"v_rcp_f32 v{g+i}, v{g+i}")
                for i in range(0, 16, 2): a(f"v_pk_mul_f32 v[{g+i}:{g+i+1}], v[{g+i}:{g+i+1}], v[{u+i}:{u+i+1}]")
            else:
                for i in range(16): a(f"v_mul_f32 v{g+i}, s31, v{g+i}")
                for i in range(16): a(f"v_exp_f32 v{g+i}, v{g+i}")
                for i in range(16): a(f"v_add_f32 v{g+i}, 1.0, v{g+i}")
                for i in range(16): a(f"v_rcp_f32 v{g+i}, v{g+i}")
                for i in range(16): a(f"v_mul_f32 v{g+i}, v{g+i}, v{u+i}")
            for d in range(8): a(f"v_cvt_pk_bf16_f32 v{H+8*mt+d}, v{g+2*d}, v{g+2*d+1}")
            if n == 1 and mt == 0: a("s_add_u32 s47, s48, 4096")
            so = 48 if n == 0 else 47
            for q in range(2):
                a(f"buffer_store_dwordx4 v[{H+8*mt+4*q}:{H+8*mt+4*q+3}], v{vL16}, s[{SWS}:{SWS+3}], s{so} offen offset:{mt*2048 + q*1024} sc1"); vq.issue("hst")
    a(f"s_setprio {P['prio_g']}")

def gmark(a, i):
    if not P.get("gm") and not P.get("gma"): mark(a, i)

def lds_add1(a, addr, ret=None):
    a("s_mov_b64 exec, 1")
    a(f"v_mov_b32 v2, {addr}")
    a("v_mov_b32 v3, 1")
    if ret is None: a("ds_add_u32 v2, v3")
    else: a(f"ds_add_rtn_u32 v{ret}, v2, v3")
    a("s_mov_b64 exec, -1")

def lds_spin(a, lab, addr, val, sleep=1, cmp="ge"):
    a(f"v_mov_b32 v2, {addr}")
    a.label(lab)
    a("ds_read_b32 v3, v2")
    a("s_waitcnt lgkmcnt(0)")
    a("v_readfirstlane_b32 s46, v3")
    a(f"s_cmp_{cmp}_u32 s46, {val}")
    a(f"s_cbranch_scc1 {lab}_OK")
    a(f"s_sleep {sleep}")
    a(f"s_branch {lab}")
    a.label(f"{lab}_OK")

def getnonce(a, lab):
    a(f"v_mov_b32 v2, {F_NC}")
    a.label(lab)
    a("ds_read_b64 v[4:5], v2")
    a("s_waitcnt lgkmcnt(0)")
    a(f"v_readfirstlane_b32 s{sNC}, v4")
    a(f"v_readfirstlane_b32 s{sNC+1}, v5")
    a(f"s_cmp_lg_u32 s{sNC}, 0")
    a(f"s_cbranch_scc1 {lab}_OK")
    a("s_sleep 1")
    a(f"s_branch {lab}")
    a.label(f"{lab}_OK")

def flag_store(a):
    a(f"v_mov_b32 v4, s{sNC}")
    a(f"v_mov_b32 v5, s{sNC+1}")
    a(f"buffer_store_dwordx2 v[4:5], v{vFO}, s[{SWS}:{SWS+3}], s99 offen sc1")

def publish(a, pfx):
    a("s_waitcnt vmcnt(0)")
    if not LNM[0] and not P.get("am"): mark(a, 10)
    a("s_mov_b64 exec, 1")
    a(f"v_mov_b32 v2, {F_PUB}")
    a("v_mov_b32 v3, 1")
    a("ds_add_rtn_u32 v4, v2, v3")
    a("s_waitcnt lgkmcnt(0)")
    a("v_readfirstlane_b32 s46, v4")
    a("s_cmp_eq_u32 s46, 1")
    a(f"s_cbranch_scc0 {pfx}_NOPUB")
    flag_store(a)
    a.label(f"{pfx}_NOPUB")
    a("s_mov_b64 exec, -1")

def mirror(a):
    a("s_or_b32 s74, s74, s96")
    a("s_mov_b64 exec, 1")
    a(f"v_mov_b32 v2, {F_MASK}")
    a("v_mov_b32 v3, s96")
    a("ds_or_b32 v2, v3")
    a("s_mov_b64 exec, -1")

def poll_once(a):
    a("s_mov_b32 exec_hi, 0")
    a(f"buffer_load_dwordx2 v[4:5], v{vFO}, s[{SWS}:{SWS+3}], s99 offen sc1")
    a("s_waitcnt vmcnt(0)")
    a(f"v_cmp_eq_u64 vcc, s[{sNC}:{sNC+1}], v[4:5]")
    a("s_mov_b32 exec_hi, -1")
    a("s_mov_b32 s96, vcc_lo")
    mirror(a)

def emit_y(a, dbg=False):
    sc1 = " sc1"
    srd(a, SX, KA_X, 2097152); srd(a, SQ, KA_WQKV, 512*1536*2)
    srd(a, SG, KA_WG, 512*1792*2); srd(a, SU, KA_WU, 512*1792*2)
    srd(a, SD, KA_WD, 1792*512*2); srd(a, SO, KA_WO, 512*512*2); srd(a, SWS, KA_WS, WS_BYTES)
    a(f"s_load_dwordx2 s[{SDBG}:{SDBG+1}], s[0:1], {KA_DBG}")
    a("s_mov_b32 s98, s2")
    ids(a)
    ln_addr_x(a)
    a("s_waitcnt lgkmcnt(0)")
    mark(a, 0)
    vq = Q(a, "vmcnt", 63); lq = Q(a, "lgkmcnt", 15)
    ln_loads(a, vq)
    a("s_barrier")
    ln_addr_rest(a)
    a(f"v_lshlrev_b32 v{vL16}, 4, v{vLn}")
    a(f"s_mul_i32 s21, s16, {SA}")
    a(f"s_add_u32 s21, s21, {L_AR}")
    a(f"s_mul_i32 s22, s16, {SGR}")
    a(f"s_add_u32 s22, s22, {L_GR - 4*SGR}")
    a("s_cmp_lt_u32 s16, 4")
    a(f"s_cselect_b32 s{sAREA}, s21, s22")
    lane_off8(a, vW8, 3072)
    lane_off8(a, vWm, 3584)
    a("s_add_u32 s21, s16, 1")
    a("s_cmp_eq_u32 s21, 3")
    a("s_cselect_b32 s21, 0, s21")
    a("s_lshl_b32 s29, s21, 10")
    a("s_lshl_b32 s21, s18, 7")
    a("s_add_u32 s29, s29, s21")
    a("s_lshr_b32 s21, s18, 1")
    a("s_mul_i32 s30, s21, 896")
    a("s_and_b32 s21, s18, 1")
    a("s_lshl_b32 s21, s21, 9")
    a("s_sub_u32 s22, s16, 4")
    a("s_lshl_b32 s22, s22, 7")
    a("s_add_u32 s21, s21, s22")
    a("s_cmp_eq_u32 s16, 7")
    a("s_cselect_b32 s21, 384, s21")
    a("s_add_u32 s30, s30, s21")
    tr_addr8(a, vT0, 10, f"s{sAREA}")
    if P["deep"]:
        a(f"s_mul_i32 s{sBOR}, s16, {SGR}")
        a(f"s_add_u32 s{sBOR}, s{sBOR}, {L_GR}")
        a(f"s_sub_u32 s21, s{sBOR}, s{sAREA}")
        a(f"v_add_u32 v{vTx}, s21, v{vT0}")
        a(f"v_add_u32 v{vTx+1}, s21, v{vT0+1}")
    a(f"v_add_u32 v2, s17, v{vLn}")
    a("v_and_b32 v2, 15, v2")
    a(f"v_xor_b32 v3, s17, v{vLn}")
    a("v_and_b32 v3, 16, v3")
    a(f"v_or_b32 v{vFO}, v2, v3")
    a(f"v_lshlrev_b32 v{vFO}, {P['fsh']}, v{vFO}")
    a("s_lshl_b32 s99, s18, 12")
    a(f"s_add_u32 s99, s99, {FL_OFF}")
    a("s_lshl_b32 s21, s17, 13")
    a(f"s_mul_i32 s22, s18, {4096 - (1 << P['fsh'])}")
    a("s_sub_u32 s21, s21, s22")
    a(f"s_add_u32 s21, s21, {FL2_OFF - FL_OFF + (56 << P['fsh'])}")
    a("v_mov_b32 v2, s21")
    a(f"v_cmp_lt_u32 vcc, 31, v{vLn}")
    a(f"v_cndmask_b32 v{vFO}, v{vFO}, v2, vcc")
    a("v_mov_b32 v2, 0")
    a(f"v_lshlrev_b32 v3, 2, v{vLn}")
    a(f"v_add_u32 v3, {L_FL}, v3")
    a("ds_write_b32 v3, v2")
    T0 = LNT + 24
    vqx = Q(Asm(), "vmcnt", 63)
    base = list(vq.order)
    a("s_cmp_ge_u32 s16, 4")
    a("s_cbranch_scc1 Y_EG")
    a("s_cmp_eq_u32 s16, 3")
    a("s_cbranch_scc1 Y_E3")
    for g in range(ring_of("W") - 1 + P["pdx"]): dma_step(a, vq, "W", g, ("w", g))
    ln_stats(a, vq)
    a("s_branch Y_PRIMED")
    a.label("Y_E3")
    vq.order, vq.done = list(base), 0
    a(f"v_and_b32 v2, 31, v{vLn}")
    a(f"v_mul_u32_u24 v{T0}, 3072, v2")
    a(f"v_lshrrev_b32 v2, 5, v{vLn}")
    a(f"v_lshl_add_u32 v{T0+1}, v2, 10, v{T0}")
    a("s_lshl_b32 s21, s19, 5")
    a("s_mul_i32 s48, s21, 3072")
    a("s_lshl_b32 s22, s18, 7")
    a("s_add_u32 s48, s48, s22")
    a(f"buffer_load_dword v{T0+2}, v{T0+1}, s[{SQ}:{SQ+3}], s48 offen offset:1024"); vq.issue("t")
    a("s_mov_b32 exec_hi, 0")
    a(f"buffer_load_dword v{T0+3}, v{T0}, s[{SQ}:{SQ+3}], s48 offen"); vq.issue("t")
    a("s_mov_b32 exec_hi, -1")
    a(f"v_lshrrev_b32 v2, 2, v{vLn}")
    a(f"v_and_b32 v3, 3, v{vLn}")
    a(f"v_mul_u32_u24 v{T0}, 3584, v2")
    a(f"v_lshl_add_u32 v{T0}, v3, 7, v{T0}")
    a("s_mul_i32 s47, s21, 3584")
    a("s_mul_i32 s22, s18, 448")
    a("s_add_u32 s47, s47, s22")
    a(f"s_add_u32 s48, s47, {16*3584}")
    ln_stats(a, vq)
    def gutouch():
        a(f"buffer_load_dword v{T0+4}, v{T0}, s[{SG}:{SG+3}], s47 offen")
        a(f"buffer_load_dword v{T0+5}, v{T0}, s[{SU}:{SU+3}], s47 offen")
        a(f"buffer_load_dword v{T0+6}, v{T0}, s[{SG}:{SG+3}], s48 offen")
        a(f"buffer_load_dword v{T0+7}, v{T0}, s[{SU}:{SU+3}], s48 offen")
    if P["gtouch"] == 0: gutouch()
    a("s_branch Y_PRIMED")
    a.label("Y_EG")
    vq.order, vq.done = list(base), 0
    a(f"v_lshlrev_b32 v{vFO}, {P['fsh']}, v{vLn}")
    a("s_lshl_b32 s99, s17, 13")
    a(f"s_add_u32 s99, s99, {FL2_OFF}")
    if P["gprime"] == 2:
        for g in range(GPD): gdma(a, vq, g)
        ln_stats(a, vq)
    else:
        ln_stats(a, vq)
    a("s_cmp_eq_u32 s98, 0")
    a("s_cbranch_scc0 Y_PRIMED")
    a("s_cmp_eq_u32 s16, 7")
    a("s_cbranch_scc0 Y_PRIMED")
    a("s_memrealtime s[46:47]")
    a("s_mov_b64 exec, 1")
    a("v_mov_b32 v2, 0")
    a("s_waitcnt lgkmcnt(0)")
    a("s_or_b32 s46, s46, 1")
    a("v_mov_b32 v4, s46")
    a("v_mov_b32 v5, s47")
    a(f"global_store_dwordx2 v2, v[4:5], s[{SDBG}:{SDBG+1}] sc0 sc1")
    a("s_mov_b64 exec, -1")
    a.label("Y_PRIMED")
    ln_norm(a, lq)
    a("s_waitcnt lgkmcnt(0)"); lq.known_all()
    if LNM[0]: mark(a, 11)
    a("s_barrier")
    mark(a, 1)
    def reset(nprimed):
        vq.order = [("w", g) for g in range(ring_of("W") - 1 + P["pdx"]) for _ in range(2)] if nprimed else []
        vq.done = 0
        lq.order, lq.done = [], 0
    a("s_cmp_ge_u32 s16, 4")
    a("s_cbranch_scc1 Y_G")
    a("s_cmp_eq_u32 s16, 1")
    a("s_cbranch_scc1 Y_V")
    a("s_cmp_eq_u32 s16, 2")
    a("s_cbranch_scc1 Y_Q")
    a("s_cmp_eq_u32 s16, 3")
    a("s_cbranch_scc1 Y_POLLER")
    TMP = 224
    def go_add():
        a("s_waitcnt lgkmcnt(0)")
        lds_add1(a, F_GO)
    def k_epilogue():
        a(f"v_add_u32 v5, s{sAREA}, v{vL16}")
        for nt in range(2):
            for hh in range(2):
                for mt in range(2):
                    acc = ACC + 16*(2*mt+nt) + 8*hh
                    rr = TMP + 4*((2*hh+mt) % 4) + 16*nt
                    for d in range(4): a(f"v_cvt_pk_bf16_f32 v{rr+d}, v{acc+2*d}, v{acc+2*d+1}")
                    a(f"ds_write_b128 v5, v[{rr}:{rr+3}] offset:{(2*nt+hh)*2048 + mt*1024}")
        go_add()
        a("s_lshl_b32 s46, s18, 18")
        a("s_lshl_b32 s47, s17, 11")
        a("s_add_u32 s46, s46, s47")
        a(f"s_add_u32 s46, s46, {KF_OFF}")
        for nt in range(2):
            for hh in range(2):
                for mt in range(2):
                    rr = TMP + 4*((2*hh+mt) % 4) + 16*nt
                    a(f"buffer_store_dwordx4 v[{rr}:{rr+3}], v{vL16}, s[{SWS}:{SWS+3}], s46 offen offset:{mt*1024}{sc1}"); vq.issue("st")
                a("s_add_u32 s46, s46, 65536")
        if P["dual"]:
            a(f"s_sub_u32 s46, s46, {4*65536}")
            for nt in range(2):
                for hh in range(2):
                    for mt in range(2):
                        rr = TMP + 4*((2*hh+mt) % 4) + 16*nt
                        a(f"buffer_store_dwordx4 v[{rr}:{rr+3}], v{vL16}, s[{SWS}:{SWS+3}], s46 offen offset:{mt*1024}"); vq.issue("st")
                    a("s_add_u32 s46, s46, 65536")
    def v_epilogue():
        a(f"v_lshrrev_b32 v2, 5, v{vLn}")
        a(f"v_lshlrev_b32 v3, 8, v2")
        a(f"v_and_b32 v2, 15, v{vLn}")
        a(f"v_lshl_add_u32 v3, v2, 4, v3")
        a(f"v_bfe_u32 v2, v{vLn}, 4, 1")
        a(f"v_lshl_add_u32 v5, v2, 11, v3")
        a(f"v_add_u32 v5, s{sAREA}, v5")
        a(f"v_lshl_add_u32 v6, v2, 16, v3")
        for nt in range(2):
            for mt in range(2):
                for g in range(2):
                    acc = ACC + 16*(2*mt+nt) + 8*g
                    rr = TMP + 4*((2*mt+g) % 4) + 16*nt
                    for d in range(4): a(f"v_cvt_pk_bf16_f32 v{rr+d}, v{acc+2*d}, v{acc+2*d+1}")
                    a(f"ds_write_b128 v5, v[{rr}:{rr+3}] offset:{nt*4096 + mt*1024 + g*512}")
        go_add()
        a("s_lshl_b32 s46, s18, 18")
        a("s_lshl_b32 s47, s17, 11")
        a("s_add_u32 s46, s46, s47")
        a(f"s_add_u32 s46, s46, {VF_OFF}")
        for pl in range(2 if P["dual"] else 1):
            for nt in range(2):
                for mt in range(2):
                    for g in range(2):
                        rr = TMP + 4*((2*mt+g) % 4) + 16*nt
                        a(f"buffer_store_dwordx4 v[{rr}:{rr+3}], v6, s[{SWS}:{SWS+3}], s46 offen offset:{mt*1024+g*512}{sc1 if pl == 0 else ''}"); vq.issue("st")
                a("s_add_u32 s46, s46, 131072")
            if pl == 0 and P["dual"]: a(f"s_sub_u32 s46, s46, {2*131072}")
    def gs_add():
        a("s_mov_b64 exec, 1")
        a(f"v_mov_b32 v2, {F_GS}")
        a("v_mov_b32 v3, 1")
        a("ds_add_u32 v2, v3"); lq.issue("gs")
        a("s_mov_b64 exec, -1")
    for kindc, lab, epi in (("W", "Y_K", k_epilogue), ("V", "Y_V", v_epilogue)):
        a.label(lab)
        reset(True)
        a(f"s_setprio {P['prio_kv']}")
        def hook_step(g, lab=lab):
            if P.get("km") and g in (0, 7, 15, 23): mark(a, {0: 8, 7: 9, 15: 10, 23: 11}[g])
            if P["deep"]:
                if g == P["gstart"]: gs_add()
            elif lab == "Y_K" and g == P["gstart"]:
                a(f"v_mov_b32 v2, {F_GS}")
                a("v_mov_b32 v3, 1")
                a("ds_write_b32 v2, v3"); lq.issue("gs")
            if lab == "Y_K" and P["qstart"] and g == P["qstart"]:
                a(f"v_mov_b32 v2, {F_QD}")
                a("v_mov_b32 v3, 1")
                a("ds_write_b32 v2, v3"); lq.issue("qs")
        unit_body(a, vq, lq, kindc, False, hook_step)
        if not LNM[0] and not P.get("am"): mark(a, 8)
        epi()
        if not LNM[0] and not P.get("am"): mark(a, 9)
        lds_add1(a, F_P1)
        mark(a, 2)
        a("s_branch Y_AWAIT")
    a.label("Y_Q")
    reset(True)
    a(f"s_setprio {P['prio_kv'] if not P['qstart'] else P.get('prio_q', 2)}")
    if P["qstart"]: lds_spin(a, "Y_QS", F_QD, 1, sleep=2)
    unit_body(a, vq, lq, "W", False, (lambda g: gs_add() if g == P["gstart"] else None) if P["deep"] else None)
    a("s_mov_b32 s31, 0x3eb8aa3b")
    a(f"v_add_u32 v2, {L_QO}, v{vL16}")
    for nt in range(2):
        for hh in range(2):
            for mt in range(2):
                acc = ACC + 16*(2*mt+nt) + 8*hh
                rr = TMP + 4*((2*hh+mt) % 4) + 16*nt
                for d in range(8): a(f"v_mul_f32 v{acc+d}, s31, v{acc+d}")
                for d in range(4): a(f"v_cvt_pk_bf16_f32 v{rr+d}, v{acc+2*d}, v{acc+2*d+1}")
                a(f"ds_write_b128 v2, v[{rr}:{rr+3}] offset:{((2*nt+hh)*2+mt)*1024}"); lq.issue("qw")
    a("s_waitcnt lgkmcnt(0)")
    lds_add1(a, F_P1)
    lds_add1(a, F_GO)
    mark(a, 2)
    a("s_branch Y_AWAIT")
    a.label("Y_POLLER")
    def nonce_fetch():
        a("s_mov_b32 s98, 0")
        a.label("Y_NF")
        if P.get("ncv"):
            a("v_mov_b32 v2, 0")
            a(f"global_load_dwordx2 v[4:5], v2, s[{SDBG}:{SDBG+1}] sc1")
            a("s_waitcnt vmcnt(0)")
            a(f"v_readfirstlane_b32 s{sNC}, v4")
            a(f"v_readfirstlane_b32 s{sNC+1}, v5")
        else:
            a(f"s_load_dwordx2 s[{sNC}:{sNC+1}], s[{SDBG}:{SDBG+1}], 0 glc")
            a("s_waitcnt lgkmcnt(0)")
        a(f"s_cmp_lg_u32 s{sNC}, 0")
        a("s_cbranch_scc1 Y_NF_OK")
        a("s_sleep 4")
        a("s_add_u32 s98, s98, 1")
        a("s_cmp_lt_u32 s98, 0x40000")
        a("s_cbranch_scc1 Y_NF")
        a(f"s_mov_b32 s{sNC}, 1")
        a.label("Y_NF_OK")
        a("s_mov_b64 exec, 1")
        a(f"v_mov_b32 v2, {F_NC}")
        a(f"v_mov_b32 v4, s{sNC}")
        a(f"v_mov_b32 v5, s{sNC+1}")
        a("ds_write_b64 v2, v[4:5]")
        a("s_mov_b64 exec, -1")
        mark(a, 8)
        if TS_ENABLE[0]: a("s_add_u32 s68, s82, s98")
    if P["gtouch"] == 2: gutouch()
    nonce_fetch()
    if P["gtouch"] == 1:
        gutouch()
        a("s_waitcnt vmcnt(0)")
    a.label("Y_AWAIT")
    a(f"s_setprio {P['prio_att']}")
    att_setup(a)
    getnonce(a, "Y_ANC")
    lds_spin(a, "Y_SPIN", F_GO, 3)
    mark(a, 3)
    emit_att(a, vq, lq, dbg)
    a("s_branch Y_END")
    a.label("Y_G")
    a(f"s_setprio {P['prio_g']}")
    vq.order, vq.done, lq.order, lq.done = [], 0, [], 0
    PDG = GPD
    if P["gprime"] == 2:
        vq.order = [("w", g) for g in range(PDG) for _ in range(4)]
    if P["gprime"] == 1:
        for g in range(PDG): gdma(a, vq, g)
    a("s_and_b32 s22, s18, 1")
    a("s_sub_u32 s21, s16, 4")
    a("s_lshl_b32 s21, s21, 1")
    a("s_add_u32 s21, s21, s22")
    a("s_cmp_eq_u32 s22, 1")
    a("s_cselect_b32 s47, 0, 6")
    a("s_lshl_b32 s22, s22, 6")
    a("s_cmp_eq_u32 s16, 7")
    a("s_cselect_b32 s21, s47, s21")
    a("s_cselect_b32 s22, s22, 0")
    a(f"v_xor_b32 v{vT0}, s22, v{vT0}")
    a("s_lshl_b32 s48, s17, 3")
    a("s_add_u32 s48, s48, s18")
    a("s_mul_i32 s48, s48, 28672")
    a("s_lshl_b32 s22, s21, 12")
    a("s_add_u32 s48, s48, s22")
    a(f"s_add_u32 s48, s48, {HF_OFF}")
    a("s_mul_i32 s49, s18, 7")
    a("s_add_u32 s49, s49, s21")
    a("s_cmp_eq_u32 s16, 7")
    a("s_cselect_b32 s73, 1, 3")
    a("s_cselect_b32 s72, 1, 2")
    def stouch():
        a("s_mul_i32 s21, s19, 114688")
        a("s_sub_u32 s47, s16, 4")
        a("s_mul_i32 s22, s47, 28672")
        a("s_add_u32 s21, s21, s22")
        a("s_lshl_b32 s22, s18, 7")
        a("s_add_u32 s21, s21, s22")
        a(f"s_add_u32 s46, s{SD}, s21")
        a(f"s_addc_u32 s47, s{SD+1}, 0")
        for o in range(0, 28*1024, 1024): a(f"s_load_dword s21, s[46:47], {o}")
        a("s_waitcnt lgkmcnt(0)")
        a("s_lshl_b32 s21, s19, 15")
        a("s_sub_u32 s47, s16, 4")
        a("s_lshl_b32 s22, s47, 13")
        a("s_add_u32 s21, s21, s22")
        a("s_lshl_b32 s22, s18, 7")
        a("s_add_u32 s21, s21, s22")
        a(f"s_add_u32 s46, s{SO}, s21")
        a(f"s_addc_u32 s47, s{SO+1}, 0")
        for o in range(0, 8*1024, 1024): a(f"s_load_dword s21, s[46:47], {o}")
        a("s_waitcnt lgkmcnt(0)")
        a("s_cmp_eq_u32 s16, 7")
    if P["stouch"] == 1: stouch()
    if P["gwait"]:
        if P.get("w7free"):
            a("s_cbranch_scc1 Y_GW_OK")
        lds_spin(a, "Y_GW", F_GS, 3 if P["deep"] else 1)
    if P["gprime"] == 0:
        for g in range(PDG): gdma(a, vq, g)
    mark(a, 8)
    def hpublish():
        a("s_mov_b32 s46, s73")
        a("s_mov_b32 s47, 0")
        a("s_lshl_b64 s[46:47], s[46:47], s49")
        a("s_mov_b64 exec, s[46:47]")
        flag_store(a); vq.issue("fl")
        a("s_mov_b64 exec, -1")
    sv = (list(vq.order), vq.done)
    a("s_cmp_eq_u32 s16, 7")
    a("s_cbranch_scc1 Y_G1")
    gunit(a, vq, lq, 2)
    mark(a, 10)
    gepilogue(a, vq, 2)
    mark(a, 9)
    a("s_branch Y_GDONE")
    a.label("Y_G1")
    vq.order, vq.done = sv
    lq.order, lq.done = [], 0
    gunit(a, vq, lq, 1)
    mark(a, 10)
    gepilogue(a, vq, 1)
    mark(a, 9)
    a.label("Y_GDONE")
    lds_add1(a, F_P1)
    SOUT = SQ
    a(f"s_load_dwordx2 s[{SOUT}:{SOUT+1}], s[0:1], {KA_OUT}")
    a(f"s_mov_b32 s{SOUT+2}, 2097152")
    getnonce(a, "Y_GNC")
    a("s_waitcnt vmcnt(0) lgkmcnt(0)")
    hpublish()
    gmark(a, 2)
    if P["stouch"] == 2: stouch()
    vq.order, vq.done, lq.order, lq.done = [], 0, [], 0
    lane_off8(a, vW8, 1024)
    tr_addr8(a, vT0, 9, f"s{sAREA}")
    a("s_sub_u32 s21, s16, 4")
    a("s_lshr_b32 s76, s21, 1")
    a("s_and_b32 s77, s21, 1")
    a("s_lshl_b32 s22, s77, 6")
    a(f"v_xor_b32 v{vT0}, s22, v{vT0}")
    a(f"v_xor_b32 v{vT0+1}, s22, v{vT0+1}")
    a("s_lshl_b32 s79, s21, 14")
    a(f"s_sub_u32 s22, s79, s{sAREA}")
    a(f"v_add_u32 v{vTx}, s22, v{vT0}")
    a(f"v_add_u32 v{vTx+1}, s22, v{vT0+1}")
    a("s_mul_i32 s29, s21, 458752")
    a("s_lshl_b32 s22, s18, 7")
    a("s_add_u32 s29, s29, s22")
    a("s_lshl_b32 s30, s17, 3")
    a("s_lshl_b32 s22, s21, 1")
    a("s_add_u32 s30, s30, s22")
    a("s_mul_i32 s30, s30, 28672")
    a(f"s_add_u32 s30, s30, {HF_OFF}")
    a("s_lshl_b32 s22, s76, 11")
    a("s_add_u32 s48, s30, s22")
    a("s_xor_b32 s22, s22, 2048")
    a("s_add_u32 s49, s30, s22")
    KS = [(c, u, q) for c in range(2) for u in range(7) for q in range(2)]
    NK = len(KS)
    NOWN = RINGG - 4
    DSLOT = [("o", 2048*i) for i in range(NOWN)] + [("x", 2048*i) for i in range(8)]
    NS = len(DSLOT)
    LW, LH = P["lw"], P["lh"]
    HR = LH + 1
    DACC, DFR, HB, PV = 64, 128, 144, 6
    assert HB + 8*HR <= 256 and LW < NS
    def ddma(t):
        c, u, q = KS[t]
        reg, off = DSLOT[t % NS]
        b = sAREA if reg == "o" else 79
        for i in range(2):
            a(f"s_add_u32 s31, s29, {(c*224 + u*32 + q*16 + 8*i)*1024}")
            a(f"s_add_u32 m0, s{b}, {off + 1024*i}")
            if P.get("nowd"): a("s_nop 0")
            else: a(f"buffer_load_dwordx4 v{vW8}, s[{SD}:{SD+3}], s31 offen lds")
            vq.issue(("d", t))
    def hload(t):
        c, u, q = KS[t]
        r = HB + 8*(t % HR)
        for m in range(2):
            a(f"s_add_u32 s31, s{48+m}, {c*28672 + u*4096 + q*1024}")
            if P.get("nohl"): a("s_nop 0")
            else: a(f"buffer_load_dwordx4 v[{r+4*m}:{r+4*m+3}], v{vL16}, s[{SWS}:{SWS+3}], s31 offen{S1('h1')}")
            vq.issue(("h", t))
    def dtr(t):
        reg, off = DSLOT[t % NS]
        v = vT0 if reg == "o" else vTx
        f = DFR + 8*(t % 2)
        for nt in range(2):
            a(f"ds_read_b64_tr_b16 v[{f+4*nt}:{f+4*nt+1}], v{v+nt} offset:{off}"); lq.issue(("f", t))
            a(f"ds_read_b64_tr_b16 v[{f+4*nt+2}:{f+4*nt+3}], v{v+nt} offset:{off+1024}"); lq.issue(("f", t))
    def dmm(t, m, n):
        a(mfma(DACC + 16*(2*m + n), DFR + 8*(t % 2) + 4*n, HB + 8*(t % HR) + 4*m, "0" if t == 0 else DACC + 16*(2*m + n)))
    def pollwait(pfx, sleep):
        a("s_mov_b32 s98, 0")
        a.label(f"{pfx}_C")
        a("s_and_b64 s[46:47], s[96:97], s[74:75]")
        a("s_cmp_eq_u64 s[46:47], s[74:75]")
        a(f"s_cbranch_scc1 {pfx}_D")
        if sleep: a(f"s_sleep {sleep}")
        a("s_mov_b64 exec, s[74:75]")
        a(f"buffer_load_dwordx2 v[{PV}:{PV+1}], v{vFO}, s[{SWS}:{SWS+3}], s99 offen sc1")
        a("s_waitcnt vmcnt(0)")
        a(f"v_cmp_eq_u64 vcc, s[{sNC}:{sNC+1}], v[{PV}:{PV+1}]")
        a("s_mov_b64 exec, -1")
        a("s_or_b64 s[96:97], s[96:97], vcc")
        a("s_add_u32 s98, s98, 1")
        a("s_cmp_lt_u32 s98, 0x40000")
        a(f"s_cbranch_scc1 {pfx}_C")
        a.label(f"{pfx}_D")
    for t in range(NOWN): ddma(t)
    a("s_mul_i32 s22, s21, 14")
    a("s_mov_b64 s[96:97], 0")
    a("s_mov_b32 s74, 0x3fff")
    a("s_mov_b32 s75, 0")
    a("s_lshl_b64 s[74:75], s[74:75], s22")
    if P.get("p1late"):
        lds_spin(a, "Y_GS", F_P1, 7, sleep=4)
        gmark(a, 3)
        pollwait("Y_P1", P["hsleep"])
        for t in range(LH): hload(t)
    else:
        pollwait("Y_P1", P["hsleep"])
        for t in range(LH): hload(t)
        lds_spin(a, "Y_GS", F_P1, 7)
        gmark(a, 3)
    for t in range(NOWN, LW): ddma(t)
    a(f"s_setprio {P['prio_d']}")
    vq.wait(("d", 0))
    dtr(0)
    for t in range(NK):
        nx = t + 1 < NK
        lq.wait(("f", t))
        vq.wait(("h", t))
        dmm(t, 0, 0)
        if nx:
            vq.wait(("d", t+1)); dtr(t+1)
        dmm(t, 0, 1)
        if t + LW < NK: ddma(t + LW)
        dmm(t, 1, 0)
        dmm(t, 1, 1)
        if t + LH < NK: hload(t + LH)
    gmark(a, 4)
    a("s_lshl_b32 s30, s77, 1")
    a("s_add_u32 s30, s30, s76")
    a("s_lshl_b32 s30, s30, 17")
    a("s_lshl_b32 s31, s18, 7")
    a("s_add_u32 s30, s30, s31")
    for i in range(16):
        a(f"s_add_u32 m0, s79, {1024*i}")
        a(f"buffer_load_dwordx4 v{vW8}, s[{SO}:{SO+3}], s30 offen lds")
        a("s_add_u32 s30, s30, 8192")
    XR = 24
    vXO = 3
    a(f"v_and_b32 v{vXO}, 31, v{vLn}")
    a(f"v_lshlrev_b32 v{vXO}, 10, v{vXO}")
    a(f"v_lshrrev_b32 v4, 5, v{vLn}")
    a(f"v_lshl_add_u32 v{vXO}, v4, 4, v{vXO}")
    a("s_lshl_b32 s78, s17, 16")
    a("s_lshl_b32 s47, s76, 15")
    a("s_add_u32 s78, s78, s47")
    a("s_lshl_b32 s47, s18, 7")
    a("s_add_u32 s78, s78, s47")
    a("s_lshl_b32 s47, s77, 6")
    a("s_add_u32 s78, s78, s47")
    a(f"v_mov_b32 v{vTx}, v{vXO}")
    vXO = vTx
    for q in range(2):
        a(f"buffer_load_dwordx4 v[{XR+4*q}:{XR+4*q+3}], v{vXO}, s[{SX}:{SX+3}], s78 offen offset:{32*q}")
    AO, AP = 32, 48
    for jj in range(1, 4):
        a(f"s_xor_b32 s46, s21, {jj}")
        if jj < 3:
            a(f"s_mul_i32 s46, s46, {SGR}")
            a(f"s_add_u32 s46, s46, {L_GR + SGR - 8192 + (jj-1)*4096}")
        else:
            a("s_lshl_b32 s46, s46, 12")
            a(f"s_add_u32 s46, s46, {L_AR}")
        a(f"v_add_u32 v2, s46, v{vL16}")
        for r4 in range(4):
            r = DACC + 16*jj + 4*r4
            a(f"ds_write_b128 v2, v[{r}:{r+3}] offset:{1024*r4}")
    a("s_waitcnt vmcnt(0) lgkmcnt(0)")
    lds_add1(a, F_PP)
    lds_spin(a, "Y_GPP", F_PP, 4)
    gmark(a, 5)
    a(f"s_mul_i32 s46, s21, {SGR}")
    a(f"s_add_u32 s46, s46, {L_GR + SGR - 8192}")
    a(f"v_add_u32 v2, s46, v{vL16}")
    a("s_lshl_b32 s46, s21, 12")
    a(f"s_add_u32 s46, s46, {L_AR}")
    a(f"v_add_u32 v3, s46, v{vL16}")
    for jj in range(3):
        for r4 in range(4):
            r = 80 + 16*jj + 4*r4
            if jj < 2: a(f"ds_read_b128 v[{r}:{r+3}], v2 offset:{4096*jj + 1024*r4}")
            else: a(f"ds_read_b128 v[{r}:{r+3}], v3 offset:{1024*r4}")
    a("s_waitcnt lgkmcnt(0)")
    for r in range(16):
        a(f"v_add_f32 v{AO+r}, v{DACC+r}, v{80+r}")
        a(f"v_add_f32 v{96+r}, v{96+r}, v{112+r}")
    for r in range(16):
        a(f"v_add_f32 v{AO+r}, v{AO+r}, v{96+r}")
        a(f"v_mov_b32 v{AP+r}, 0")
    WF = 128
    a(f"s_lshl_b32 s47, s77, 14")
    a(f"s_add_u32 s47, s47, {L_X}")
    tr_addr8(a, vT0, 9, "s47")
    for ks in range(16):
        off = (ks >> 3)*32768 + (ks & 7)*2048
        for nt in range(2):
            f = WF + 8*ks + 4*nt
            a(f"ds_read_b64_tr_b16 v[{f}:{f+1}], v{vT0+nt} offset:{off}")
            a(f"ds_read_b64_tr_b16 v[{f+2}:{f+3}], v{vT0+nt} offset:{off+1024}")
    a("s_waitcnt lgkmcnt(0)")
    gmark(a, 6)
    lds_spin(a, "Y_GOC", F_OC, 4, sleep=2)
    a("s_lshl_b32 s75, s77, 2")
    a("s_add_u32 s75, s75, 24")
    a("s_lshl_b32 s75, 15, s75")
    a("s_mov_b32 s74, 0")
    a("s_mov_b64 s[96:97], 0")
    pollwait("Y_PO", P["osleep"])
    gmark(a, 7)
    a("s_lshl_b32 s46, s17, 1")
    a("s_add_u32 s46, s46, s76")
    a("s_lshl_b32 s46, s46, 15")
    a("s_lshl_b32 s47, s77, 14")
    a("s_add_u32 s46, s46, s47")
    a(f"s_add_u32 s46, s46, {OF_OFF}")
    OFR = 64
    vq.order, vq.done = [], 0
    for ks in range(16):
        a(f"buffer_load_dwordx4 v[{OFR+4*ks}:{OFR+4*ks+3}], v{vL16}, s[{SWS}:{SWS+3}], s46 offen offset:{1024*(ks%4)}{S1('o1')}"); vq.issue(("o", ks))
        if ks % 4 == 3 and ks < 15: a("s_add_u32 s46, s46, 4096")
    a("s_cmp_eq_u32 s77, 0")
    a("s_cbranch_scc0 Y_OK1")
    for kh in range(2):
        if kh == 1: a.label("Y_OK1")
        sv = (list(vq.order), vq.done)
        for ks in range(16):
            vq.wait(("o", ks))
            a(mfma(AP, WF + 8*ks + 4*(1-kh), OFR + 4*ks, AP))
            a(mfma(AO, WF + 8*ks + 4*kh, OFR + 4*ks, AO))
        if kh == 0:
            a("s_branch Y_OK2")
            vq.order, vq.done = sv
    a.label("Y_OK2")
    gmark(a, 11)
    a("s_sub_u32 s21, s16, 4")
    a(f"s_mul_i32 s46, s21, {SGR}")
    a(f"s_add_u32 s46, s46, {L_GR}")
    a(f"v_add_u32 v2, s46, v{vL16}")
    a("s_nop 7")
    for r4 in range(4):
        a(f"ds_write_b128 v2, v[{AP+4*r4}:{AP+4*r4+3}] offset:{1024*r4}")
    a("s_waitcnt lgkmcnt(0)")
    a("s_lshl_b32 s47, s76, 2")
    a(f"s_add_u32 s47, s47, {F_X0}")
    a("s_mov_b64 exec, 1")
    a("v_mov_b32 v4, s47")
    a("v_mov_b32 v5, 1")
    a("ds_add_u32 v4, v5")
    a("s_mov_b64 exec, -1")
    a("v_mov_b32 v4, s47")
    a.label("Y_XS")
    a("ds_read_b32 v5, v4")
    a("s_waitcnt lgkmcnt(0)")
    a("v_readfirstlane_b32 s46, v5")
    a("s_cmp_ge_u32 s46, 2")
    a("s_cbranch_scc0 Y_XS")
    a("s_xor_b32 s21, s21, 1")
    a(f"s_mul_i32 s46, s21, {SGR}")
    a(f"s_add_u32 s46, s46, {L_GR}")
    a(f"v_add_u32 v2, s46, v{vL16}")
    for r4 in range(4):
        a(f"ds_read_b128 v[{AP+4*r4}:{AP+4*r4+3}], v2 offset:{1024*r4}")
    a("s_waitcnt lgkmcnt(0)")
    for r in range(16): a(f"v_add_f32 v{AO+r}, v{AO+r}, v{AP+r}")
    for q in range(2):
        for d in range(4): a(f"v_permlane32_swap_b32 v{AO+8*q+d}, v{AO+8*q+4+d}")
    for q in range(2):
        for d in range(4):
            a(f"v_lshlrev_b32 v4, 16, v{XR+4*q+d}")
            a(f"v_and_b32 v5, 0xffff0000, v{XR+4*q+d}")
            a(f"v_add_f32 v{AO+8*q+2*d}, v{AO+8*q+2*d}, v4")
            a(f"v_add_f32 v{AO+8*q+2*d+1}, v{AO+8*q+2*d+1}, v5")
        for d in range(4): a(f"v_cvt_pk_bf16_f32 v{AP+4*q+d}, v{AO+8*q+2*d}, v{AO+8*q+2*d+1}")
        a(f"buffer_store_dwordx4 v[{AP+4*q}:{AP+4*q+3}], v{vXO}, s[{SOUT}:{SOUT+3}], s78 offen offset:{32*q}")

def att_setup(a):
    R = P["kvr"]; KR = 136; VR = KR + 4*R
    a(f"v_lshrrev_b32 v2, 5, v{vLn}")
    a(f"v_lshlrev_b32 v{vVo}, 8, v2")
    a(f"v_and_b32 v2, 15, v{vLn}")
    a(f"v_lshl_add_u32 v{vVo}, v2, 4, v{vVo}")
    a(f"v_and_b32 v2, 27, v{vLn}")
    a(f"v_mov_b32 v{VR}, 0x3f803f80")
    a("v_cmp_eq_u32 vcc, 16, v2")
    a(f"v_cndmask_b32 v{VR}, 0, v{VR}, vcc")
    for r in range(1, 8*R): a(f"v_mov_b32 v{VR+r}, v{VR}")

def emit_att(a, vq, lq, dbg):
    pfx = "AT"
    R = P["kvr"]; LA = R - 1
    Qf = [24, 28]; NEG = [32, 48]; S = [64, 80]; O = [96, 112]; Pp = 128; KR = 136; VR = KR + 4*R; T = VR + 8*R
    assert T + 2 <= 256
    NIT = 64 // R
    a("s_mov_b32 s19, s16")
    a("s_lshl_b32 s21, s18, 2")
    a("s_add_u32 s21, s21, s19")
    a("s_lshl_b32 s21, s21, 16")
    a(f"s_add_u32 s21, s21, {KF_OFF}")
    a("s_lshl_b32 s22, s17, 11")
    a("s_mov_b32 s74, 1")
    a("s_mov_b32 s75, 1")
    a("s_mov_b32 s76, 0x0000ffff")
    a("s_mov_b32 s77, 0x0000ffff")
    vq.order, vq.done, lq.order, lq.done = [], 0, [], 0
    refresh = []
    def kvload(t, site):
        if t % 2 == 0:
            a("s_andn2_b32 s96, s74, s75")
            a(f"s_cbranch_scc0 {pfx}_RF{site}")
            a.label(f"{pfx}_BK{site}")
            a("s_ff1_i32_b32 s96, s96")
            a("s_bitset1_b32 s75, s96")
            a("s_add_u32 s23, s96, s17")
            a("s_and_b32 s23, s23, 15")
            a("s_xor_b32 s96, s96, s17")
            a("s_and_b32 s96, s96, 16")
            a("s_or_b32 s23, s23, s96")
            a("s_lshl_b32 s23, s23, 11")
            refresh.append(site)
        else:
            a("s_add_u32 s23, s23, 1024")
        a("s_add_u32 s46, s21, s23")
        a(f"buffer_load_dwordx4 v[{KR+4*(t%R)}:{KR+4*(t%R)+3}], v{vL16}, s[{SWS}:{SWS+3}], s46 offen{S1('kv1')}"); vq.issue(("K", t))
        a(f"s_add_u32 s47, s46, {VF_OFF-KF_OFF}")
        a("s_mov_b64 exec, s[76:77]")
        r = VR + 8*(t % R)
        a(f"buffer_load_dwordx4 v[{r}:{r+3}], v{vVo}, s[{SWS}:{SWS+3}], s47 offen{S1('kv1')}"); vq.issue(("V", t))
        a(f"buffer_load_dwordx4 v[{r+4}:{r+7}], v{vVo}, s[{SWS}:{SWS+3}], s47 offen offset:512{S1('kv1')}"); vq.issue(("V", t))
        a("s_mov_b64 exec, -1")
    def emit_refresh(site):
        a.label(f"{pfx}_RF{site}")
        a("s_mov_b32 s98, 0")
        a.label(f"{pfx}_RL{site}")
        a(f"v_mov_b32 v2, {F_MASK}")
        a("ds_read_b32 v3, v2")
        a("s_waitcnt lgkmcnt(0)")
        a("v_readfirstlane_b32 s96, v3")
        a("s_or_b32 s74, s74, s96")
        a("s_andn2_b32 s96, s74, s75")
        a(f"s_cbranch_scc1 {pfx}_BK{site}")
        if P["lock"]:
            a("s_mov_b64 exec, 1")
            a(f"v_mov_b32 v2, {F_LK}")
            a("v_mov_b32 v3, 1")
            a("ds_wrxchg_rtn_b32 v4, v2, v3")
            a("s_waitcnt lgkmcnt(0)")
            a("v_readfirstlane_b32 s96, v4")
            a("s_mov_b64 exec, -1")
            a("s_cmp_eq_u32 s96, 0")
            a(f"s_cbranch_scc1 {pfx}_RG{site}")
            a(f"s_sleep {P['lsleep']}")
            a(f"s_branch {pfx}_RC{site}")
            a.label(f"{pfx}_RG{site}")
        poll_once(a)
        if P["lock"]:
            if P["lock"] == 2:
                a("s_andn2_b32 s96, s74, s75")
                a(f"s_cbranch_scc1 {pfx}_RR{site}")
                a(f"s_sleep {P['rsleep']}")
                a.label(f"{pfx}_RR{site}")
            a("s_mov_b64 exec, 1")
            a(f"v_mov_b32 v2, {F_LK}")
            a("v_mov_b32 v3, 0")
            a("ds_write_b32 v2, v3")
            a("s_mov_b64 exec, -1")
        if TS_ENABLE[0]: a("s_add_u32 s64, s64, 1")
        a("s_andn2_b32 s96, s74, s75")
        a(f"s_cbranch_scc1 {pfx}_BK{site}")
        if P["lock"] != 2: a(f"s_sleep {P['rsleep']}")
        a.label(f"{pfx}_RC{site}")
        a("s_add_u32 s98, s98, 1")
        a("s_cmp_lt_u32 s98, 0x40000")
        a(f"s_cbranch_scc1 {pfx}_RL{site}")
        a("s_not_b32 s96, s75")
        a(f"s_branch {pfx}_BK{site}")
    if TS_ENABLE[0]: a("s_mov_b32 s64, s82")
    a("s_lshl_b32 s46, s19, 11")
    a(f"s_add_u32 s47, s46, {L_QO}")
    a(f"v_add_u32 v2, s47, v{vL16}")
    a(f"ds_read_b128 v[{Qf[0]}:{Qf[0]+3}], v2")
    a(f"ds_read_b128 v[{Qf[1]}:{Qf[1]+3}], v2 offset:1024")
    a(f"s_add_u32 s47, s46, {L_AR}")
    a(f"v_add_u32 v2, s47, v{vL16}")
    a(f"ds_read_b128 v[{KR}:{KR+3}], v2")
    a(f"ds_read_b128 v[{KR+4}:{KR+7}], v2 offset:1024")
    a(f"s_add_u32 s47, s46, {L_AR + SA}")
    a(f"v_add_u32 v2, s47, v{vVo}")
    a("s_mov_b64 exec, s[76:77]")
    for t in range(2):
        a(f"ds_read_b128 v[{VR+8*t}:{VR+8*t+3}], v2 offset:{1024*t}")
        a(f"ds_read_b128 v[{VR+8*t+4}:{VR+8*t+7}], v2 offset:{1024*t+512}")
    a("s_mov_b64 exec, -1")
    for q in range(2):
        for r in range(16): a(f"v_mov_b32 v{O[q]+r}, 0")
    a("s_waitcnt lgkmcnt(0)")
    m = T
    for q in range(2):
        a(mfma(S[0], KR, Qf[q], "0"))
        a(mfma(S[1], KR+4, Qf[q], "0"))
        a(f"v_max3_f32 v{m}, v{S[0]}, v{S[0]+1}, v{S[0]+2}")
        for r in range(3, 15, 2):
            a(f"v_max3_f32 v{m}, v{m}, v{S[0]+r}, v{S[0]+r+1}")
        a(f"v_max3_f32 v{m}, v{m}, v{S[0]+15}, v{S[1]}")
        for r in range(1, 15, 2):
            a(f"v_max3_f32 v{m}, v{m}, v{S[1]+r}, v{S[1]+r+1}")
        a(f"v_max_f32 v{m}, v{m}, v{S[1]+15}")
        a(f"v_mov_b32 v{m+1}, v{m}")
        a(f"v_permlane32_swap_b32 v{m}, v{m+1}")
        a(f"v_max_f32 v{m}, v{m}, v{m+1}")
        a(f"v_add_f32 v{m}, {hexf(ATT_OFFSET)}, v{m}")
        a(f"v_sub_f32 v{NEG[q]}, 0, v{m}")
        for r in range(1, 16): a(f"v_mov_b32 v{NEG[q]+r}, v{NEG[q]}")
    for r in range(4 if P["sched"] == 1 else 0, 8): a(f"v_mov_b32 v{Pp+r}, 0")
    if not P.get("am"): mark(a, 11)
    a("s_cmp_lt_u32 s16, 2")
    a(f"s_cbranch_scc0 {pfx}_NP")
    publish(a, "KVP")
    a.label(f"{pfx}_NP")
    for t in range(2, LA): kvload(t, f'P{t}')
    a(mfma(S[0], KR, Qf[0], NEG[0]))
    a("s_mov_b32 s26, 0")
    a("s_nop 7")
    mark(a, 4)
    E = lambda r: a(f"v_exp_f32 v{r}, v{r}")
    C = lambda d, r: a(f"v_cvt_pk_bf16_f32 v{d}, v{r}, v{r+1}")
    entry = [("V", 0), ("V", 0)] + [x for i in range(1, LA) for x in (("K", i), ("V", i), ("V", i))]
    def body(last):
        vq.order = list(entry); vq.done = 0
        for t in range(R):
            for q in range(2):
                Sa = S[q]; Sb = S[1-q]
                def QK():
                    if q == 0:
                        a(mfma(Sb, KR + 4*(t % R), Qf[1], NEG[1]))
                    elif not (last and t == R-1):
                        vq.wait(("K", t+1))
                        a(mfma(Sb, KR + 4*((t+1) % R), Qf[0], NEG[0]))
                def KVL():
                    if q == 0 and (not last or t + LA < R): kvload(t + LA, f'{"Z" if last else "L"}{t}')
                tp = t if q == 1 else t - 1
                if P["sched"] == 1:
                    QK()
                    E(Sa+0); E(Sa+1); E(Sa+2); E(Sa+3)
                    C(Pp+0, Sa+0); E(Sa+4); C(Pp+1, Sa+2); E(Sa+5); E(Sa+6); E(Sa+7)
                    a(mfma(O[1-q], VR + 8*(tp % R) + 4, Pp+4, O[1-q]))
                    KVL()
                    E(Sa+8); C(Pp+2, Sa+4); E(Sa+9); C(Pp+3, Sa+6); E(Sa+10); E(Sa+11)
                    E(Sa+12); C(Pp+4, Sa+8)
                    if q == 0: vq.wait(("V", t))
                    a(mfma(O[q], VR + 8*(t % R), Pp, O[q]))
                    E(Sa+13); C(Pp+5, Sa+10); E(Sa+14); E(Sa+15)
                    C(Pp+6, Sa+12); C(Pp+7, Sa+14)
                else:
                    if q == 1: vq.wait(("V", t))
                    if P["ptog"]: a(f"s_setprio {P['phi']}")
                    a(mfma(O[1-q], VR + 8*(tp % R), Pp, O[1-q]))
                    E(Sa+0); E(Sa+1); E(Sa+2)
                    a(mfma(O[1-q], VR + 8*(tp % R) + 4, Pp+4, O[1-q]))
                    E(Sa+3); E(Sa+4); E(Sa+5)
                    QK()
                    if P["ptog"]: a(f"s_setprio {P['prio_att']}")
                    E(Sa+6); C(Pp+0, Sa+0); E(Sa+7); C(Pp+1, Sa+2); E(Sa+8); C(Pp+2, Sa+4); E(Sa+9)
                    KVL()
                    E(Sa+10); C(Pp+3, Sa+6); E(Sa+11); C(Pp+4, Sa+8); E(Sa+12); E(Sa+13); C(Pp+5, Sa+10); E(Sa+14); E(Sa+15)
                    C(Pp+6, Sa+12); C(Pp+7, Sa+14)
        if not last:
            shift = lambda tg: (tg[0], tg[1] - R)
            known_k = ("K", R)
            tail = [shift(x) for x in vq.order[[i for i, x in enumerate(vq.order) if x == known_k][-1]+1:]]
            assert tail == entry, (tail, entry)
    a.label(f"{pfx}_LOOP")
    body(False)
    a("s_add_u32 s26, s26, 1")
    if P.get("am") and TS_ENABLE[0] and not P.get("km"):
        for k, mi in ((1, 8), (3, 9), (5, 10), (7, 11)):
            a(f"s_cmp_eq_u32 s26, {k*NIT//8}")
            a(f"s_cbranch_scc0 {pfx}_AM{k}")
            mark(a, mi)
            a.label(f"{pfx}_AM{k}")
    a(f"s_cmp_lt_u32 s26, {NIT-1}")
    a(f"s_cbranch_scc1 {pfx}_LOOP")
    body(True)
    mark(a, 5)
    if P["ptog"]: a(f"s_setprio {P['phi']}")
    if P["sched"] != 1:
        a("s_nop 1")
        a(mfma(O[1], VR + 8*(R-1), Pp, O[1]))
    a(mfma(O[1], VR + 8*(R-1) + 4, Pp+4, O[1]))
    OWN, TT, QOWN = 80, 48, 60
    a("s_nop 15")
    for q in range(2):
        a("s_mov_b32 s46, 0x207")
        a("s_mov_b32 s47, 0x2ff")
        for r in range(9): a(f"v_mov_b32 v{OWN+r}, v{O[q]+r}")
        a(f"v_cmp_class_f32 s[78:79], v{OWN+8}, s47")
        for r in range(8):
            a(f"v_cmp_class_f32 vcc, v{OWN+r}, s46")
            a("s_or_b64 s[78:79], s[78:79], vcc")
        a("s_cmp_lg_u64 s[78:79], 0")
        a(f"s_cbranch_scc1 {pfx}_SLOW{q}")
        a.label(f"{pfx}_OUT{q}")
        a(f"v_rcp_f32 v{TT}, v{OWN+8}")
        for r in range(8): a(f"v_mul_f32 v{OWN+r}, v{OWN+r}, v{TT}")
        for d in range(4): a(f"v_cvt_pk_bf16_f32 v{T-8+4*q+d}, v{OWN+2*d}, v{OWN+2*d+1}")
        a("s_lshl_b32 s46, s17, 1"); a(f"s_add_u32 s46, s46, {q}"); a("s_lshl_b32 s46, s46, 15")
        a("s_lshl_b32 s47, s18, 2"); a("s_add_u32 s47, s47, s19"); a("s_lshl_b32 s47, s47, 10")
        a("s_add_u32 s46, s46, s47"); a(f"s_add_u32 s46, s46, {OF_OFF}")
        a(f"buffer_store_dwordx4 v[{T-8+4*q}:{T-5+4*q}], v{vL16}, s[{SWS}:{SWS+3}], s46 offen sc1")
    a("s_waitcnt vmcnt(0)")
    mark(a, 6)
    a("s_mov_b64 exec, 1")
    a(f"v_mov_b32 v2, {F_OC+12}")
    a("v_mov_b32 v3, 1")
    a("ds_add_rtn_u32 v4, v2, v3")
    a("s_waitcnt lgkmcnt(0)")
    a("v_readfirstlane_b32 s46, v4")
    a("s_cmp_eq_u32 s46, 3")
    a(f"s_cbranch_scc0 {pfx}_NOPUB")
    a("s_mov_b32 exec_lo, 0")
    a("s_mov_b32 exec_hi, 1")
    flag_store(a)
    a(f"v_mov_b32 v2, {F_OC}")
    a("v_mov_b32 v3, 4")
    a("ds_write_b32 v2, v3")
    a.label(f"{pfx}_NOPUB")
    a("s_mov_b64 exec, -1")
    a(f"s_branch {pfx}_END")
    for site in refresh: emit_refresh(site)
    KS, VS, SS, NS_, PS = KR, VR, S[0], NEG[0], Pp
    for q in range(2):
        a.label(f"{pfx}_SLOW{q}")
        for r in range(4): a(f"v_mov_b32 v{QOWN+r}, v{Qf[q]+r}")
        a("s_mov_b32 s46, s21")
        a(f"v_mov_b32 v{TT}, 0xff800000")
        a("s_mov_b32 s26, 0")
        a.label(f"{pfx}_SL1_{q}")
        a(f"buffer_load_dwordx4 v[{KS}:{KS+3}], v{vL16}, s[{SWS}:{SWS+3}], s46 offen sc1")
        a("s_waitcnt vmcnt(0)")
        a(mfma(SS, KS, QOWN, "0"))
        for r in range(0, 16, 2):
            a(f"v_max3_f32 v{TT}, v{TT}, v{SS+r}, v{SS+r+1}")
        a("s_add_u32 s46, s46, 1024")
        a("s_add_u32 s26, s26, 1")
        a("s_cmp_lt_u32 s26, 64")
        a(f"s_cbranch_scc1 {pfx}_SL1_{q}")
        a(f"v_mov_b32 v{TT+1}, v{TT}")
        a(f"v_permlane32_swap_b32 v{TT}, v{TT+1}")
        a(f"v_max_f32 v{TT}, v{TT}, v{TT+1}")
        a(f"v_sub_f32 v{NS_}, 0, v{TT}")
        for r in range(1, 16): a(f"v_mov_b32 v{NS_+r}, v{NS_}")
        for r in range(16): a(f"v_mov_b32 v{OWN+r}, 0")
        a("s_mov_b32 s46, s21")
        a("s_mov_b32 s26, 0")
        a.label(f"{pfx}_SL2_{q}")
        a(f"buffer_load_dwordx4 v[{KS}:{KS+3}], v{vL16}, s[{SWS}:{SWS+3}], s46 offen sc1")
        a(f"s_add_u32 s47, s46, {VF_OFF-KF_OFF}")
        a("s_mov_b64 exec, s[76:77]")
        a(f"buffer_load_dwordx4 v[{VS}:{VS+3}], v{vVo}, s[{SWS}:{SWS+3}], s47 offen sc1")
        a(f"buffer_load_dwordx4 v[{VS+4}:{VS+7}], v{vVo}, s[{SWS}:{SWS+3}], s47 offen offset:512 sc1")
        a("s_mov_b64 exec, -1")
        a("s_waitcnt vmcnt(0)")
        a(mfma(SS, KS, QOWN, NS_))
        for r in range(16): E(SS+r)
        for d in range(8): C(PS+d, SS+2*d)
        a(mfma(OWN, VS, PS, OWN))
        a(mfma(OWN, VS+4, PS+4, OWN))
        a("s_add_u32 s46, s46, 1024")
        a("s_add_u32 s26, s26, 1")
        a("s_cmp_lt_u32 s26, 64")
        a(f"s_cbranch_scc1 {pfx}_SL2_{q}")
        a("s_nop 15")
        a(f"s_branch {pfx}_OUT{q}")
    a.label(f"{pfx}_END")

def gen_y(label, dbg=False):
    k = Kernel(label, 256, 512, LDS_TOTAL, 256, 100)
    a = k.a
    a("s_cmp_ge_u32 s2, 256")
    a("s_cbranch_scc1 Y_END")
    emit_y(a, dbg)
    a.label("Y_END")
    return k

if __name__ == "__main__":
    import sys
    out = sys.argv[1]; opts = sys.argv[2:]
    if "ts" in opts: TS_ENABLE[0] = True
    if "lnm" in opts: LNM[0] = True
    for o in opts:
        if "=" in o:
            kk, vv = o.split("="); P[kk] = int(vv)
    ks = [gen_y(NAME + "_kernel", dbg="dbg" in opts)]
    open(out, "w").write(build_file(ks))
```

```python
from common import *
import z
from z import lane_off8, tr_addr8, ln_loads, gen_fin2, PF_OFF, ATT_OFFSET
P = dict(gstart=28, prio_kv=3, prio_att=0, prio_g=0, gwait=1, zrow=1, psleep=8, rsleep=4, ringa=4, ringg=8, gprime=0, pdx=1, prio_e=2, prio_d=0, lw=9, lh=7, hsleep=8, fsleep=16, osleep=2, dual=1, kvr=8, stouch=1, pwait=1, ncv=1, fsh=7, lock=1, lsleep=2, kv1=1, h1=1, o1=1, sched=1, ptog=0, phi=2, pk=0, qstart=0, deep=0, fa=1, spr=0, gspr=0, gtouch=0, ilv=0, srd2=0, epub=0, rdl=0)
sBOR = 50
def S1(k): return " sc1" if P[k] else ""
import sys
for o in sys.argv[2:]:
    if "=" in o:
        kk, vv = o.split("="); P[kk] = int(vv)

L_X, L_AR, LDS_TOTAL = 0, 65536, 163840
SA, SGR = P["ringa"]*2048, P["ringg"]*2048
L_GR = L_AR + 3*SA
L_QO = L_AR + 2*SA
L_FL = 159744
assert L_GR + 4*SGR <= L_FL and SA >= 8192 and SGR >= 8192 + 2*2048
F_PUB, F_GO, F_QD, F_GS, F_P1, F_MASK = L_FL, L_FL+4, L_FL+8, L_FL+12, L_FL+16, L_FL+20
SQ, SG, SU, SX, SD, SO, SWS, SDBG = 4, 8, 12, 24, 32, 36, 40, 44
sAREA = 28
vLn, vW8, vWm, vT0, vTm, vX0, vL16, vVo, vTx = 1, 10, 11, 12, 14, 16, 20, 21, 22
LNX, LNT = 64, 96
ACC, FR, XB = 128, 192, 208
RINGG = P["ringg"]
def ring_of(kind): return P["ringa"] if kind in "WV" else RINGG
LNM = [False]
FL_OFF = 0x3000000
FL2_OFF = FL_OFF + 0x10000
F_PP, F_FM, F_OC, F_X0, F_NC = L_FL+24, L_FL+28, L_FL+32, L_FL+48, L_FL+56
F_LK = L_FL+64
sNC = 2
vFO, vSN = 8, 9

def ids(a):
    a("v_and_b32 v1, 63, v0")
    a("v_lshrrev_b32 v2, 6, v0")
    a("v_readfirstlane_b32 s16, v2")
    if P.get("badmap"):
        a("s_lshr_b32 s20, s2, 5"); a("s_and_b32 s21, s2, 31")
    else:
        a("s_and_b32 s20, s2, 7")
        a("s_lshr_b32 s21, s2, 3")
    a("s_lshr_b32 s19, s21, 1")
    a("s_lshr_b32 s17, s20, 2")
    a("s_lshl_b32 s17, s17, 4")
    a("s_add_u32 s17, s17, s19")
    a("s_and_b32 s18, s20, 3")
    a("s_lshl_b32 s18, s18, 1")
    a("s_and_b32 s21, s21, 1")
    a("s_add_u32 s18, s18, s21")

def ln_addr_x(a):
    r, c = LNT+2, LNT+3
    a(f"v_lshrrev_b32 v{r}, 3, v{vLn}")
    a(f"v_and_b32 v{c}, 7, v{vLn}")
    a(f"v_lshlrev_b32 v{LNT}, 10, v{r}")
    a(f"v_lshl_add_u32 v{LNT}, v{c}, 4, v{LNT}")
    a("s_lshl_b32 s23, s17, 16")
    a("s_lshl_b32 s22, s16, 13")
    a("s_add_u32 s23, s23, s22")

def ln_addr_rest(a):
    r, c = LNT+2, LNT+3
    t = LNT+4
    a(f"v_lshrrev_b32 v{t}, 1, v{c}")
    a(f"v_lshlrev_b32 v{t}, 10, v{t}")
    a(f"v_and_b32 v{t+1}, 1, v{c}")
    a(f"v_lshl_add_u32 v{t}, v{t+1}, 9, v{t}")
    a("s_and_b32 s21, s16, 3")
    a("s_lshl_b32 s21, s21, 7")
    a("s_lshr_b32 s22, s16, 2")
    a("s_lshl_b32 s22, s22, 15")
    a("s_add_u32 s22, s22, s21")
    a(f"v_xor_b32 v{t+1}, v{r}, v{c}")
    a(f"v_lshl_add_u32 v{LNT+1}, v{t+1}, 4, v{t}")
    a(f"v_add_u32 v{LNT+1}, s22, v{LNT+1}")
    a(f"v_lshrrev_b32 v{t}, 5, v{vLn}")
    for q in range(4):
        a(f"v_add_u32 v{t+1}, {2*q}, v{t}")
        a(f"v_xor_b32 v{t+1}, v{t+1}, v{vLn}")
        a(f"v_lshlrev_b32 v{vX0+q}, 4, v{t+1}")

def ln_stats(a, vq):
    X = LNX
    ONES, A1, B1, A2, B2 = LNT+8, LNT+9, LNT+10, LNT+11, LNT+12
    a(f"v_mov_b32 v{ONES}, 0x3f803f80")
    for r in (A1, B1, A2, B2): a(f"v_mov_b32 v{r}, 0")
    if LNM[0]: mark(a, 8)
    for i in range(8):
        vq.wait(("x", i))
        if LNM[0] and i == 0: mark(a, 9)
        for d in range(4):
            r = X + 4*i + d
            a(f"v_dot2c_f32_bf16 v{A1 if d%2==0 else B1}, v{r}, v{ONES}")
            a(f"v_dot2c_f32_bf16 v{A2 if d%2==0 else B2}, v{r}, v{r}")
    a("s_nop 2")
    if LNM[0]: mark(a, 10)

def ln_norm(a, lq):
    X = LNX
    ONES, A1, B1, A2, B2 = LNT+8, LNT+9, LNT+10, LNT+11, LNT+12
    a(f"v_add_f32 v{A1}, v{A1}, v{B1}")
    a(f"v_add_f32 v{A2}, v{A2}, v{B2}")
    for mod in ("quad_perm:[1,0,3,2]", "quad_perm:[2,3,0,1]", "row_half_mirror"):
        a(f"v_add_f32_dpp v{A1}, v{A1}, v{A1} {mod} row_mask:0xf bank_mask:0xf")
        a(f"v_add_f32_dpp v{A2}, v{A2}, v{A2} {mod} row_mask:0xf bank_mask:0xf")
    a(f"v_mul_f32 v{A1}, 0x3b000000, v{A1}")
    a(f"v_mul_f32 v{A2}, 0x3b000000, v{A2}")
    a(f"v_fma_f32 v{A2}, -v{A1}, v{A1}, v{A2}")
    a(f"v_max_f32 v{A2}, 0, v{A2}")
    a(f"v_add_f32 v{A2}, 0x3727c5ac, v{A2}")
    SC, BI = LNT+14, LNT+13
    a(f"v_rsq_f32 v{SC}, v{A2}")
    a(f"v_mul_f32 v{BI}, v{A1}, v{SC}")
    a(f"v_sub_f32 v{BI}, 0, v{BI}")
    T = LNT+16
    for kx in range(32):
        r = X + kx; t = T + 2*(kx % 4)
        a(f"v_lshlrev_b32 v{t}, 16, v{r}")
        a(f"v_and_b32 v{t+1}, 0xffff0000, v{r}")
        a(f"v_fma_f32 v{t}, v{t}, v{SC}, v{BI}")
        a(f"v_fma_f32 v{t+1}, v{t+1}, v{SC}, v{BI}")
        a(f"v_cvt_pk_bf16_f32 v{r}, v{t}, v{t+1}")
        if kx % 4 == 3:
            i = kx // 4
            a(f"ds_write_b128 v{LNT+1}, v[{X+4*i}:{X+4*i+3}] offset:{i*4096}")
            lq.issue(("xw", i))

def dma_step(a, vq, kind, slot, tag, base=None, half=None):
    sl = slot * 2048
    if kind in "WV":
        for i in (range(2) if half is None else [half]):
            a(f"s_add_u32 m0, s{sAREA if base is None else base}, {sl + 1024*i}")
            a(f"buffer_load_dwordx4 v{vW8}, s[{SQ}:{SQ+3}], s29 offen lds"); vq.issue(tag)
            a(f"s_add_u32 s29, s29, {8*3072}")
    else:
        a(f"s_add_u32 m0, s{sAREA}, {sl}")
        a(f"buffer_load_dwordx4 v{vWm}, s[{SG}:{SG+3}], s30 offen lds"); vq.issue(tag)
        a(f"s_add_u32 m0, s{sAREA}, {sl + 1024}")
        a(f"buffer_load_dwordx4 v{vWm}, s[{SU}:{SU+3}], s30 offen lds"); vq.issue(tag)
        a(f"s_add_u32 s30, s30, {16*3584}")

def unit_body(a, vq, lq, kind, wrap, hook_step=None, dma_pre=None, phase=0, dma_post=None):
    RING = ring_of(kind); PD = RING - 1 + P["pdx"]
    deep = P["deep"] and kind in "WV"
    dslot = lambda g: g % 8 if (g < 28 or P["deep"] == 2) else g - 28
    def ddma(gp):
        sl = dslot(gp)
        dma_step(a, vq, kind, sl % 4, ("w", gp), base=(sBOR if sl >= 4 else None))
    def trr(g):
        sl = ((g + phase) % RING) * 2048
        vt = vT0
        if deep:
            sl = (dslot(g) % 4) * 2048
            if dslot(g) >= 4: vt = vTx
        f = fbuf(g)
        for nt in range(2):
            if kind in "WV":
                a(f"ds_read_b64_tr_b16 v[{f+4*nt}:{f+4*nt+1}], v{vt+nt} offset:{sl}"); lq.issue(("f", g))
                a(f"ds_read_b64_tr_b16 v[{f+4*nt+2}:{f+4*nt+3}], v{vt+nt} offset:{sl+512}"); lq.issue(("f", g))
            else:
                a(f"ds_read_b64_tr_b16 v[{f+4*nt}:{f+4*nt+1}], v{vTm} offset:{sl+nt*1024}"); lq.issue(("f", g))
                a(f"ds_read_b64_tr_b16 v[{f+4*nt+2}:{f+4*nt+3}], v{vTm} offset:{sl+nt*1024+256}"); lq.issue(("f", g))
    FA = P["fa"]
    fbuf = (lambda g: [FR, FR+8, 224][g % 3]) if FA == 3 else (lambda g: FR + 8*(g % 2))
    xbuf = (lambda g: [XB, XB+8, 232][g % 3]) if FA == 3 else (lambda g: XB + 8*(g % 2))
    def xread(g):
        for mt in range(2):
            xb = xbuf(g) + 4*mt
            a(f"ds_read_b128 v[{xb}:{xb+3}], v{vX0 + g%4} offset:{mt*32768 + g*1024}"); lq.issue(("f", g))
    def mm(g, nt, mt):
        f = fbuf(g) + 4*nt; xb = xbuf(g) + 4*mt
        acc = ACC + 16*(2*mt+nt)
        c = "0" if g == 0 else acc
        a(mfma(acc, xb, f, c) if kind == "V" else mfma(acc, f, xb, c))
    if deep:
        assert RING == 4 and PD == 4 and P["gstart"] >= (24 if P["deep"] == 1 else 31)
        for gp in range(4, 8): ddma(gp)
    vq.wait(("w", 0))
    trr(0); xread(0)
    AH = 2 if FA == 3 else 1
    if FA == 3:
        vq.wait(("w", 1)); trr(1); xread(1)
    for g in range(32):
        nx = g + AH < 32
        lq.wait(("f", g))
        if nx and FA >= 2: xread(g+AH)
        mm(g, 0, 0)
        if nx:
            vq.wait(("w", g+AH)); trr(g+AH)
        mm(g, 1, 0)
        if nx and FA == 1: xread(g+1)
        if P["spr"] and not deep and g + PD < 32:
            dma_step(a, vq, kind, (g+PD+phase) % RING, ("w", g+PD), half=0)
            mm(g, 0, 1)
            dma_step(a, vq, kind, (g+PD+phase) % RING, ("w", g+PD), half=1)
            mm(g, 1, 1)
            if hook_step: hook_step(g)
            continue
        mm(g, 0, 1)
        if deep:
            if g < (20 if P["deep"] == 1 else 24): ddma(g + 8)
            elif 24 <= g < 28 and P["deep"] == 1: ddma(g + 4)
        elif g + PD < 32 or wrap:
            if dma_pre: dma_pre(g + PD)
            dma_step(a, vq, kind, (g+PD+phase) % RING, ("w", g+PD))
            if dma_post: dma_post(g + PD)
        mm(g, 1, 1)
        if hook_step: hook_step(g)

def glu_epilogue(a, vq, sdst):
    a(f"s_mov_b32 s31, {hexf(-1.4426950408889634)}")
    H = XB
    for mt in range(2):
        g = ACC + 32*mt; u = g + 16
        for i in range(16): a(f"v_mul_f32 v{g+i}, s31, v{g+i}")
        for i in range(16): a(f"v_exp_f32 v{g+i}, v{g+i}")
        for i in range(16): a(f"v_add_f32 v{g+i}, 1.0, v{g+i}")
        for i in range(16): a(f"v_rcp_f32 v{g+i}, v{g+i}")
        for i in range(16): a(f"v_mul_f32 v{g+i}, v{g+i}, v{u+i}")
        for d in range(8): a(f"v_cvt_pk_bf16_f32 v{H+8*mt+d}, v{g+2*d}, v{g+2*d+1}")
    for mt in range(2):
        for q in range(2):
            a(f"buffer_store_dwordx4 v[{H+8*mt+4*q}:{H+8*mt+4*q+3}], v{vL16}, s[{SWS}:{SWS+3}], s{sdst} offen offset:{mt*2048 + q*1024} sc1"); vq.issue("hst")

GRING = 4
GPD = GRING - 1 + P["pdx"]
GF, GX, GACC = 64, 96, 128
def gdma(a, vq, g, part=None):
    sl = (g % GRING) * 4096
    if part in (None, 0): a(f"s_add_u32 s31, s30, {8*3584}")
    for i, (srd_, so) in enumerate(((SG, 30), (SG, 31), (SU, 30), (SU, 31))):
        if part is not None and i != part: continue
        a(f"s_add_u32 m0, s{sAREA}, {sl + 1024*i}")
        a(f"buffer_load_dwordx4 v{vWm}, s[{srd_}:{srd_+3}], s{so} offen lds"); vq.issue(("w", g))
    if part in (None, 3): a(f"s_add_u32 s30, s30, {16*3584}")

def gunit(a, vq, lq, nu):
    tiles = [(p, n) for p in range(2) for n in range(nu)]
    def trr(g, p):
        sl = (g % GRING) * 4096 + p*2048
        for n in range(nu):
            f = GF + 16*(g % 2) + 4*(2*p + n)
            a(f"ds_read_b64_tr_b16 v[{f}:{f+1}], v{vT0+n} offset:{sl}"); lq.issue(("f", g))
            a(f"ds_read_b64_tr_b16 v[{f+2}:{f+3}], v{vT0+n} offset:{sl+512}"); lq.issue(("f", g))
    def xread(g):
        for mt in range(2):
            xb = GX + 8*(g % 2) + 4*mt
            a(f"ds_read_b128 v[{xb}:{xb+3}], v{vX0 + g%4} offset:{mt*32768 + g*1024}"); lq.issue(("f", g))
    def mm(g, p, n, mt):
        f = GF + 16*(g % 2) + 4*(2*p + n); xb = GX + 8*(g % 2) + 4*mt
        acc = GACC + 16*(4*mt + 2*p + n)
        a(mfma(acc, f, xb, "0" if g == 0 else acc))
    vq.wait(("w", 0))
    trr(0, 0); trr(0, 1); xread(0)
    for g in range(32):
        nx = g + 1 < 32
        lq.wait(("f", g))
        seq = [(p, n, mt) for mt in range(2) for (p, n) in tiles]
        acts = []
        if nx:
            acts.append(lambda: (vq.wait(("w", g+1)), trr(g+1, 0)))
            acts.append(lambda: trr(g+1, 1))
            acts.append(lambda: xread(g+1))
        if g + GPD < 32:
            if P["gspr"]:
                for part in range(4): acts.append(lambda part=part: gdma(a, vq, g + GPD, part))
            else: acts.append(lambda: gdma(a, vq, g + GPD))
        for i, (p, n, mt) in enumerate(seq):
            mm(g, p, n, mt)
            if i < len(acts): acts[i]()
        for act in acts[len(seq):]: act()
        if P.get("gma") and g in (0, 3, 7, 11, 15, 23): mark(a, {0: 2, 3: 3, 7: 4, 11: 5, 15: 6, 23: 7}[g])

def gepilogue(a, vq, nu):
    a(f"s_mov_b32 s31, {hexf(-1.4426950408889634)}")
    if P["pk"]:
        a("s_mov_b32 s30, s31")
        a("s_mov_b32 s31, 1.0")
    a(f"s_setprio {P['prio_e']}")
    for n in range(nu):
        H = GF + 16*n
        for mt in range(2):
            g = GACC + 16*(4*mt + n); u = g + 32
            if P["pk"]:
                for i in range(0, 16, 2): a(f"v_pk_mul_f32 v[{g+i}:{g+i+1}], v[{g+i}:{g+i+1}], s[30:31] op_sel_hi:[1,0]")
                for i in range(16): a(f"v_exp_f32 v{g+i}, v{g+i}")
                for i in range(0, 16, 2): a(f"v_pk_add_f32 v[{g+i}:{g+i+1}], v[{g+i}:{g+i+1}], s[30:31] op_sel:[0,1] op_sel_hi:[1,1]")
                for i in range(16): a(f"v_rcp_f32 v{g+i}, v{g+i}")
                for i in range(0, 16, 2): a(f"v_pk_mul_f32 v[{g+i}:{g+i+1}], v[{g+i}:{g+i+1}], v[{u+i}:{u+i+1}]")
            else:
                for i in range(16): a(f"v_mul_f32 v{g+i}, s31, v{g+i}")
                for i in range(16): a(f"v_exp_f32 v{g+i}, v{g+i}")
                for i in range(16): a(f"v_add_f32 v{g+i}, 1.0, v{g+i}")
                for i in range(16): a(f"v_rcp_f32 v{g+i}, v{g+i}")
                for i in range(16): a(f"v_mul_f32 v{g+i}, v{g+i}, v{u+i}")
            for d in range(8): a(f"v_cvt_pk_bf16_f32 v{H+8*mt+d}, v{g+2*d}, v{g+2*d+1}")
            if n == 1 and mt == 0: a("s_add_u32 s47, s48, 4096")
            so = 48 if n == 0 else 47
            for q in range(2):
                a(f"buffer_store_dwordx4 v[{H+8*mt+4*q}:{H+8*mt+4*q+3}], v{vL16}, s[{SWS}:{SWS+3}], s{so} offen offset:{mt*2048 + q*1024} sc1"); vq.issue("hst")
    a(f"s_setprio {P['prio_g']}")

def gmark(a, i):
    if not P.get("gm") and not P.get("gma"): mark(a, i)

def lds_add1(a, addr, ret=None):
    a("s_mov_b64 exec, 1")
    a(f"v_mov_b32 v2, {addr}")
    a("v_mov_b32 v3, 1")
    if ret is None: a("ds_add_u32 v2, v3")
    else: a(f"ds_add_rtn_u32 v{ret}, v2, v3")
    a("s_mov_b64 exec, -1")

def lds_spin(a, lab, addr, val, sleep=1, cmp="ge"):
    a(f"v_mov_b32 v2, {addr}")
    a.label(lab)
    a("ds_read_b32 v3, v2")
    a("s_waitcnt lgkmcnt(0)")
    a("v_readfirstlane_b32 s46, v3")
    a(f"s_cmp_{cmp}_u32 s46, {val}")
    a(f"s_cbranch_scc1 {lab}_OK")
    a(f"s_sleep {sleep}")
    a(f"s_branch {lab}")
    a.label(f"{lab}_OK")

def getnonce(a, lab):
    a(f"v_mov_b32 v2, {F_NC}")
    a.label(lab)
    a("ds_read_b64 v[4:5], v2")
    a("s_waitcnt lgkmcnt(0)")
    a(f"v_readfirstlane_b32 s{sNC}, v4")
    a(f"v_readfirstlane_b32 s{sNC+1}, v5")
    a(f"s_cmp_lg_u32 s{sNC}, 0")
    a(f"s_cbranch_scc1 {lab}_OK")
    a("s_sleep 1")
    a(f"s_branch {lab}")
    a.label(f"{lab}_OK")

def flag_store(a):
    a(f"v_mov_b32 v4, s{sNC}")
    a(f"v_mov_b32 v5, s{sNC+1}")
    a(f"buffer_store_dwordx2 v[4:5], v{vFO}, s[{SWS}:{SWS+3}], s99 offen sc1")

def publish(a, pfx):
    a("s_waitcnt vmcnt(0)")
    if not LNM[0] and not P.get("am"): mark(a, 10)
    a("s_mov_b64 exec, 1")
    a(f"v_mov_b32 v2, {F_PUB}")
    a("v_mov_b32 v3, 1")
    a("ds_add_rtn_u32 v4, v2, v3")
    a("s_waitcnt lgkmcnt(0)")
    a("v_readfirstlane_b32 s46, v4")
    a("s_cmp_eq_u32 s46, 1")
    a(f"s_cbranch_scc0 {pfx}_NOPUB")
    flag_store(a)
    a.label(f"{pfx}_NOPUB")
    a("s_mov_b64 exec, -1")

def mirror(a):
    a("s_or_b32 s74, s74, s96")
    a("s_mov_b64 exec, 1")
    a(f"v_mov_b32 v2, {F_MASK}")
    a("v_mov_b32 v3, s96")
    a("ds_or_b32 v2, v3")
    a("s_mov_b64 exec, -1")

def poll_once(a):
    a("s_mov_b32 exec_hi, 0")
    a(f"buffer_load_dwordx2 v[4:5], v{vFO}, s[{SWS}:{SWS+3}], s99 offen sc1")
    a("s_waitcnt vmcnt(0)")
    a(f"v_cmp_eq_u64 vcc, s[{sNC}:{sNC+1}], v[4:5]")
    a("s_mov_b32 exec_hi, -1")
    a("s_mov_b32 s96, vcc_lo")
    mirror(a)

def emit_y(a, dbg=False):
    sc1 = " sc1"
    srd(a, SX, KA_X, 2097152); srd(a, SQ, KA_WQKV, 512*1536*2)
    srd(a, SG, KA_WG, 512*1792*2); srd(a, SU, KA_WU, 512*1792*2)
    srd(a, SD, KA_WD, 1792*512*2); srd(a, SO, KA_WO, 512*512*2); srd(a, SWS, KA_WS, WS_BYTES)
    a(f"s_load_dwordx2 s[{SDBG}:{SDBG+1}], s[0:1], {KA_DBG}")
    a("s_mov_b32 s98, s2")
    ids(a)
    ln_addr_x(a)
    a("s_waitcnt lgkmcnt(0)")
    mark(a, 0)
    vq = Q(a, "vmcnt", 63); lq = Q(a, "lgkmcnt", 15)
    ln_loads(a, vq)
    a("s_barrier")
    ln_addr_rest(a)
    a(f"v_lshlrev_b32 v{vL16}, 4, v{vLn}")
    a(f"s_mul_i32 s21, s16, {SA}")
    a(f"s_add_u32 s21, s21, {L_AR}")
    a(f"s_mul_i32 s22, s16, {SGR}")
    a(f"s_add_u32 s22, s22, {L_GR - 4*SGR}")
    a("s_cmp_lt_u32 s16, 4")
    a(f"s_cselect_b32 s{sAREA}, s21, s22")
    lane_off8(a, vW8, 3072)
    lane_off8(a, vWm, 3584)
    a("s_add_u32 s21, s16, 1")
    a("s_cmp_eq_u32 s21, 3")
    a("s_cselect_b32 s21, 0, s21")
    a("s_lshl_b32 s29, s21, 10")
    a("s_lshl_b32 s21, s18, 7")
    a("s_add_u32 s29, s29, s21")
    a("s_lshr_b32 s21, s18, 1")
    a("s_mul_i32 s30, s21, 896")
    a("s_and_b32 s21, s18, 1")
    a("s_lshl_b32 s21, s21, 9")
    a("s_sub_u32 s22, s16, 4")
    a("s_lshl_b32 s22, s22, 7")
    a("s_add_u32 s21, s21, s22")
    a("s_cmp_eq_u32 s16, 7")
    a("s_cselect_b32 s21, 384, s21")
    a("s_add_u32 s30, s30, s21")
    tr_addr8(a, vT0, 10, f"s{sAREA}")
    if P["deep"]:
        a(f"s_mul_i32 s{sBOR}, s16, {SGR}")
        a(f"s_add_u32 s{sBOR}, s{sBOR}, {L_GR}")
        a(f"s_sub_u32 s21, s{sBOR}, s{sAREA}")
        a(f"v_add_u32 v{vTx}, s21, v{vT0}")
        a(f"v_add_u32 v{vTx+1}, s21, v{vT0+1}")
    a(f"v_add_u32 v2, s17, v{vLn}")
    a("v_and_b32 v2, 15, v2")
    a(f"v_xor_b32 v3, s17, v{vLn}")
    a("v_and_b32 v3, 16, v3")
    a(f"v_or_b32 v{vFO}, v2, v3")
    a(f"v_lshlrev_b32 v{vFO}, {P['fsh']}, v{vFO}")
    a("s_lshl_b32 s99, s18, 12")
    a(f"s_add_u32 s99, s99, {FL_OFF}")
    a("s_lshl_b32 s21, s17, 13")
    a(f"s_mul_i32 s22, s18, {4096 - (1 << P['fsh'])}")
    a("s_sub_u32 s21, s21, s22")
    a(f"s_add_u32 s21, s21, {FL2_OFF - FL_OFF + (56 << P['fsh'])}")
    a("v_mov_b32 v2, s21")
    a(f"v_cmp_lt_u32 vcc, 31, v{vLn}")
    a(f"v_cndmask_b32 v{vFO}, v{vFO}, v2, vcc")
    a("v_mov_b32 v2, 0")
    a(f"v_lshlrev_b32 v3, 2, v{vLn}")
    a(f"v_add_u32 v3, {L_FL}, v3")
    a("ds_write_b32 v3, v2")
    T0 = LNT + 24
    vqx = Q(Asm(), "vmcnt", 63)
    base = list(vq.order)
    a("s_cmp_ge_u32 s16, 4")
    a("s_cbranch_scc1 Y_EG")
    a("s_cmp_eq_u32 s16, 3")
    a("s_cbranch_scc1 Y_E3")
    for g in range(ring_of("W") - 1 + P["pdx"]): dma_step(a, vq, "W", g, ("w", g))
    ln_stats(a, vq)
    a("s_branch Y_PRIMED")
    a.label("Y_E3")
    vq.order, vq.done = list(base), 0
    a(f"v_and_b32 v2, 31, v{vLn}")
    a(f"v_mul_u32_u24 v{T0}, 3072, v2")
    a(f"v_lshrrev_b32 v2, 5, v{vLn}")
    a(f"v_lshl_add_u32 v{T0+1}, v2, 10, v{T0}")
    a("s_lshl_b32 s21, s19, 5")
    a("s_mul_i32 s48, s21, 3072")
    a("s_lshl_b32 s22, s18, 7")
    a("s_add_u32 s48, s48, s22")
    a(f"buffer_load_dword v{T0+2}, v{T0+1}, s[{SQ}:{SQ+3}], s48 offen offset:1024"); vq.issue("t")
    a("s_mov_b32 exec_hi, 0")
    a(f"buffer_load_dword v{T0+3}, v{T0}, s[{SQ}:{SQ+3}], s48 offen"); vq.issue("t")
    a("s_mov_b32 exec_hi, -1")
    a(f"v_lshrrev_b32 v2, 2, v{vLn}")
    a(f"v_and_b32 v3, 3, v{vLn}")
    a(f"v_mul_u32_u24 v{T0}, 3584, v2")
    a(f"v_lshl_add_u32 v{T0}, v3, 7, v{T0}")
    a("s_mul_i32 s47, s21, 3584")
    a("s_mul_i32 s22, s18, 448")
    a("s_add_u32 s47, s47, s22")
    a(f"s_add_u32 s48, s47, {16*3584}")
    ln_stats(a, vq)
    def gutouch():
        a(f"buffer_load_dword v{T0+4}, v{T0}, s[{SG}:{SG+3}], s47 offen")
        a(f"buffer_load_dword v{T0+5}, v{T0}, s[{SU}:{SU+3}], s47 offen")
        a(f"buffer_load_dword v{T0+6}, v{T0}, s[{SG}:{SG+3}], s48 offen")
        a(f"buffer_load_dword v{T0+7}, v{T0}, s[{SU}:{SU+3}], s48 offen")
    if P["gtouch"] == 0: gutouch()
    a("s_branch Y_PRIMED")
    a.label("Y_EG")
    vq.order, vq.done = list(base), 0
    a(f"v_lshlrev_b32 v{vFO}, {P['fsh']}, v{vLn}")
    a("s_lshl_b32 s99, s17, 13")
    a(f"s_add_u32 s99, s99, {FL2_OFF}")
    if P["gprime"] == 2:
        for g in range(GPD): gdma(a, vq, g)
        ln_stats(a, vq)
    else:
        ln_stats(a, vq)
    a("s_cmp_eq_u32 s98, 0")
    a("s_cbranch_scc0 Y_PRIMED")
    a("s_cmp_eq_u32 s16, 7")
    a("s_cbranch_scc0 Y_PRIMED")
    a("s_memrealtime s[46:47]")
    a("s_mov_b64 exec, 1")
    a("v_mov_b32 v2, 0")
    a("s_waitcnt lgkmcnt(0)")
    a("s_or_b32 s46, s46, 1")
    a("v_mov_b32 v4, s46")
    a("v_mov_b32 v5, s47")
    a(f"global_store_dwordx2 v2, v[4:5], s[{SDBG}:{SDBG+1}] sc0 sc1")
    a("s_mov_b64 exec, -1")
    a.label("Y_PRIMED")
    ln_norm(a, lq)
    a("s_waitcnt lgkmcnt(0)"); lq.known_all()
    if LNM[0]: mark(a, 11)
    a("s_barrier")
    mark(a, 1)
    def reset(nprimed):
        vq.order = [("w", g) for g in range(ring_of("W") - 1 + P["pdx"]) for _ in range(2)] if nprimed else []
        vq.done = 0
        lq.order, lq.done = [], 0
    a("s_cmp_ge_u32 s16, 4")
    a("s_cbranch_scc1 Y_G")
    a("s_cmp_eq_u32 s16, 1")
    a("s_cbranch_scc1 Y_V")
    a("s_cmp_eq_u32 s16, 2")
    a("s_cbranch_scc1 Y_Q")
    a("s_cmp_eq_u32 s16, 3")
    a("s_cbranch_scc1 Y_POLLER")
    TMP = 224
    def go_add():
        a("s_waitcnt lgkmcnt(0)")
        lds_add1(a, F_GO)
    def k_epilogue():
        a(f"v_add_u32 v5, s{sAREA}, v{vL16}")
        def lds_copy(cvt):
            for nt in range(2):
                for hh in range(2):
                    for mt in range(2):
                        acc = ACC + 16*(2*mt+nt) + 8*hh
                        rr = TMP + 4*((2*hh+mt) % 4) + 16*nt
                        if cvt:
                            for d in range(4): a(f"v_cvt_pk_bf16_f32 v{rr+d}, v{acc+2*d}, v{acc+2*d+1}")
                        a(f"ds_write_b128 v5, v[{rr}:{rr+3}] offset:{(2*nt+hh)*2048 + mt*1024}")
            go_add()
        if not P["epub"]: lds_copy(True)
        a("s_lshl_b32 s46, s18, 18")
        a("s_lshl_b32 s47, s17, 11")
        a("s_add_u32 s46, s46, s47")
        a(f"s_add_u32 s46, s46, {KF_OFF}")
        for nt in range(2):
            for hh in range(2):
                for mt in range(2):
                    rr = TMP + 4*((2*hh+mt) % 4) + 16*nt
                    if P["epub"]:
                        acc = ACC + 16*(2*mt+nt) + 8*hh
                        for d in range(4): a(f"v_cvt_pk_bf16_f32 v{rr+d}, v{acc+2*d}, v{acc+2*d+1}")
                    a(f"buffer_store_dwordx4 v[{rr}:{rr+3}], v{vL16}, s[{SWS}:{SWS+3}], s46 offen offset:{mt*1024}{sc1}"); vq.issue("st")
                a("s_add_u32 s46, s46, 65536")
        if P["epub"]: lds_copy(False)
        assert not P["dual"]
    def v_epilogue():
        a(f"v_lshrrev_b32 v2, 5, v{vLn}")
        a(f"v_lshlrev_b32 v3, 8, v2")
        a(f"v_and_b32 v2, 15, v{vLn}")
        a(f"v_lshl_add_u32 v3, v2, 4, v3")
        a(f"v_bfe_u32 v2, v{vLn}, 4, 1")
        a(f"v_lshl_add_u32 v5, v2, 11, v3")
        a(f"v_add_u32 v5, s{sAREA}, v5")
        a(f"v_lshl_add_u32 v6, v2, 16, v3")
        def lds_copy(cvt):
            for nt in range(2):
                for mt in range(2):
                    for g in range(2):
                        acc = ACC + 16*(2*mt+nt) + 8*g
                        rr = TMP + 4*((2*mt+g) % 4) + 16*nt
                        if cvt:
                            for d in range(4): a(f"v_cvt_pk_bf16_f32 v{rr+d}, v{acc+2*d}, v{acc+2*d+1}")
                        a(f"ds_write_b128 v5, v[{rr}:{rr+3}] offset:{nt*4096 + mt*1024 + g*512}")
            go_add()
        if not P["epub"]: lds_copy(True)
        a("s_lshl_b32 s46, s18, 18")
        a("s_lshl_b32 s47, s17, 11")
        a("s_add_u32 s46, s46, s47")
        a(f"s_add_u32 s46, s46, {VF_OFF}")
        for nt in range(2):
            for mt in range(2):
                for g in range(2):
                    rr = TMP + 4*((2*mt+g) % 4) + 16*nt
                    if P["epub"]:
                        acc = ACC + 16*(2*mt+nt) + 8*g
                        for d in range(4): a(f"v_cvt_pk_bf16_f32 v{rr+d}, v{acc+2*d}, v{acc+2*d+1}")
                    a(f"buffer_store_dwordx4 v[{rr}:{rr+3}], v6, s[{SWS}:{SWS+3}], s46 offen offset:{mt*1024+g*512}{sc1}"); vq.issue("st")
            a("s_add_u32 s46, s46, 131072")
        if P["epub"]: lds_copy(False)
    def gs_add():
        a("s_mov_b64 exec, 1")
        a(f"v_mov_b32 v2, {F_GS}")
        a("v_mov_b32 v3, 1")
        a("ds_add_u32 v2, v3"); lq.issue("gs")
        a("s_mov_b64 exec, -1")
    for kindc, lab, epi in (("W", "Y_K", k_epilogue), ("V", "Y_V", v_epilogue)):
        a.label(lab)
        reset(True)
        a(f"s_setprio {P['prio_kv']}")
        def hook_step(g, lab=lab):
            if P.get("km") and g in (0, 7, 15, 23): mark(a, {0: 8, 7: 9, 15: 10, 23: 11}[g])
            if P["deep"]:
                if g == P["gstart"]: gs_add()
            elif lab == "Y_K" and g == P["gstart"]:
                a(f"v_mov_b32 v2, {F_GS}")
                a("v_mov_b32 v3, 1")
                a("ds_write_b32 v2, v3"); lq.issue("gs")
            if lab == "Y_K" and P["qstart"] and g == P["qstart"]:
                a(f"v_mov_b32 v2, {F_QD}")
                a("v_mov_b32 v3, 1")
                a("ds_write_b32 v2, v3"); lq.issue("qs")
        unit_body(a, vq, lq, kindc, False, hook_step)
        if not LNM[0] and not P.get("am"): mark(a, 8)
        epi()
        if not LNM[0] and not P.get("am"): mark(a, 9)
        lds_add1(a, F_P1)
        mark(a, 2)
        if P["epub"]:
            getnonce(a, f"{lab}_NC")
            publish(a, f"{lab}_PB")
        a("s_branch Y_AWAIT")
    a.label("Y_Q")
    reset(True)
    a(f"s_setprio {P['prio_kv'] if not P['qstart'] else P.get('prio_q', 2)}")
    if P["qstart"]: lds_spin(a, "Y_QS", F_QD, 1, sleep=2)
    unit_body(a, vq, lq, "W", False, (lambda g: gs_add() if g == P["gstart"] else None) if P["deep"] else None)
    a("s_mov_b32 s31, 0x3eb8aa3b")
    a(f"v_add_u32 v2, {L_QO}, v{vL16}")
    for nt in range(2):
        for hh in range(2):
            for mt in range(2):
                acc = ACC + 16*(2*mt+nt) + 8*hh
                rr = TMP + 4*((2*hh+mt) % 4) + 16*nt
                for d in range(8): a(f"v_mul_f32 v{acc+d}, s31, v{acc+d}")
                for d in range(4): a(f"v_cvt_pk_bf16_f32 v{rr+d}, v{acc+2*d}, v{acc+2*d+1}")
                a(f"ds_write_b128 v2, v[{rr}:{rr+3}] offset:{((2*nt+hh)*2+mt)*1024}"); lq.issue("qw")
    a("s_waitcnt lgkmcnt(0)")
    lds_add1(a, F_P1)
    lds_add1(a, F_GO)
    mark(a, 2)
    a("s_branch Y_AWAIT")
    a.label("Y_POLLER")
    def nonce_fetch():
        a("s_mov_b32 s98, 0")
        a.label("Y_NF")
        if P.get("ncv"):
            a("v_mov_b32 v2, 0")
            a(f"global_load_dwordx2 v[4:5], v2, s[{SDBG}:{SDBG+1}] sc1")
            a("s_waitcnt vmcnt(0)")
            a(f"v_readfirstlane_b32 s{sNC}, v4")
            a(f"v_readfirstlane_b32 s{sNC+1}, v5")
        else:
            a(f"s_load_dwordx2 s[{sNC}:{sNC+1}], s[{SDBG}:{SDBG+1}], 0 glc")
            a("s_waitcnt lgkmcnt(0)")
        a(f"s_cmp_lg_u32 s{sNC}, 0")
        a("s_cbranch_scc1 Y_NF_OK")
        a("s_sleep 4")
        a("s_add_u32 s98, s98, 1")
        a("s_cmp_lt_u32 s98, 0x40000")
        a("s_cbranch_scc1 Y_NF")
        a(f"s_mov_b32 s{sNC}, 1")
        a.label("Y_NF_OK")
        a("s_mov_b64 exec, 1")
        a(f"v_mov_b32 v2, {F_NC}")
        a(f"v_mov_b32 v4, s{sNC}")
        a(f"v_mov_b32 v5, s{sNC+1}")
        a("ds_write_b64 v2, v[4:5]")
        a("s_mov_b64 exec, -1")
        mark(a, 8)
        if TS_ENABLE[0]: a("s_add_u32 s68, s82, s98")
    if P["gtouch"] == 2: gutouch()
    nonce_fetch()
    if P["gtouch"] == 1:
        gutouch()
        a("s_waitcnt vmcnt(0)")
    a.label("Y_AWAIT")
    a(f"s_setprio {P['prio_att']}")
    att_setup(a)
    getnonce(a, "Y_ANC")
    lds_spin(a, "Y_SPIN", F_GO, 3)
    mark(a, 3)
    emit_att(a, vq, lq, dbg)
    a("s_branch Y_END")
    a.label("Y_G")
    a(f"s_setprio {P['prio_g']}")
    vq.order, vq.done, lq.order, lq.done = [], 0, [], 0
    PDG = GPD
    if P["gprime"] == 2:
        vq.order = [("w", g) for g in range(PDG) for _ in range(4)]
    if P["gprime"] == 1:
        for g in range(PDG): gdma(a, vq, g)
    a("s_and_b32 s22, s18, 1")
    a("s_sub_u32 s21, s16, 4")
    a("s_lshl_b32 s21, s21, 1")
    a("s_add_u32 s21, s21, s22")
    a("s_cmp_eq_u32 s22, 1")
    a("s_cselect_b32 s47, 0, 6")
    a("s_lshl_b32 s22, s22, 6")
    a("s_cmp_eq_u32 s16, 7")
    a("s_cselect_b32 s21, s47, s21")
    a("s_cselect_b32 s22, s22, 0")
    a(f"v_xor_b32 v{vT0}, s22, v{vT0}")
    a("s_lshl_b32 s48, s17, 3")
    a("s_add_u32 s48, s48, s18")
    a("s_mul_i32 s48, s48, 28672")
    a("s_lshl_b32 s22, s21, 12")
    a("s_add_u32 s48, s48, s22")
    a(f"s_add_u32 s48, s48, {HF_OFF}")
    a("s_mul_i32 s49, s18, 7")
    a("s_add_u32 s49, s49, s21")
    a("s_cmp_eq_u32 s16, 7")
    a("s_cselect_b32 s73, 1, 3")
    a("s_cselect_b32 s72, 1, 2")
    def stouch(nowait=False):
        a("s_mul_i32 s21, s19, 114688")
        a("s_sub_u32 s47, s16, 4")
        a("s_mul_i32 s22, s47, 28672")
        a("s_add_u32 s21, s21, s22")
        a("s_lshl_b32 s22, s18, 7")
        a("s_add_u32 s21, s21, s22")
        a(f"s_add_u32 s46, s{SD}, s21")
        a(f"s_addc_u32 s47, s{SD+1}, 0")
        for o in range(0, 28*1024, 1024): a(f"s_load_dword s{20 if nowait else 21}, s[46:47], {o}")
        if not nowait: a("s_waitcnt lgkmcnt(0)")
        a("s_lshl_b32 s21, s19, 15")
        a("s_sub_u32 s47, s16, 4")
        a("s_lshl_b32 s22, s47, 13")
        a("s_add_u32 s21, s21, s22")
        a("s_lshl_b32 s22, s18, 7")
        a("s_add_u32 s21, s21, s22")
        a(f"s_add_u32 s46, s{SO}, s21")
        a(f"s_addc_u32 s47, s{SO+1}, 0")
        for o in range(0, 8*1024, 1024): a(f"s_load_dword s{20 if nowait else 21}, s[46:47], {o}")
        if not nowait: a("s_waitcnt lgkmcnt(0)")
        a("s_cmp_eq_u32 s16, 7")
    def gstouch():
        a("s_lshl_b32 s21, s19, 5")
        a("s_sub_u32 s22, s16, 4")
        a("s_lshl_b32 s22, s22, 3")
        a("s_add_u32 s21, s21, s22")
        a("s_mul_i32 s21, s21, 3584")
        a("s_mul_i32 s22, s18, 448")
        a("s_add_u32 s21, s21, s22")
        for srd_ in (SG, SU):
            a(f"s_add_u32 s46, s{srd_}, s21")
            a(f"s_addc_u32 s47, s{srd_+1}, 0")
            for r in range(8):
                for l in range(4): a(f"s_load_dword s22, s[46:47], {r*3584 + l*128}")
        a("s_waitcnt lgkmcnt(0)")
    if P["gtouch"] == 3: gstouch()
    if P["stouch"] == 1: stouch()
    if P["gwait"]:
        if P.get("w7free"):
            a("s_cmp_eq_u32 s16, 7")
            a("s_cbranch_scc1 Y_GW_OK")
        lds_spin(a, "Y_GW", F_GS, 3 if P["deep"] else 1)
    if P["gprime"] == 0:
        for g in range(PDG): gdma(a, vq, g)
    mark(a, 8)
    def hpublish():
        a("s_mov_b32 s46, s73")
        a("s_mov_b32 s47, 0")
        a("s_lshl_b64 s[46:47], s[46:47], s49")
        a("s_mov_b64 exec, s[46:47]")
        flag_store(a); vq.issue("fl")
        a("s_mov_b64 exec, -1")
    sv = (list(vq.order), vq.done)
    a("s_cmp_eq_u32 s16, 7")
    a("s_cbranch_scc1 Y_G1")
    gunit(a, vq, lq, 2)
    mark(a, 10)
    if P["stouch"] == 4: stouch(True)
    gepilogue(a, vq, 2)
    mark(a, 9)
    a("s_branch Y_GDONE")
    a.label("Y_G1")
    vq.order, vq.done = sv
    lq.order, lq.done = [], 0
    gunit(a, vq, lq, 1)
    mark(a, 10)
    if P["stouch"] == 4: stouch(True)
    gepilogue(a, vq, 1)
    mark(a, 9)
    a.label("Y_GDONE")
    lds_add1(a, F_P1)
    SOUT = SQ
    a(f"s_load_dwordx2 s[{SOUT}:{SOUT+1}], s[0:1], {KA_OUT}")
    a(f"s_mov_b32 s{SOUT+2}, 2097152")
    getnonce(a, "Y_GNC")
    a("s_waitcnt vmcnt(0) lgkmcnt(0)")
    hpublish()
    gmark(a, 2)
    if P["stouch"] == 2: stouch()
    if P["stouch"] == 3: stouch(True)
    vq.order, vq.done, lq.order, lq.done = [], 0, [], 0
    lane_off8(a, vW8, 1024)
    tr_addr8(a, vT0, 9, f"s{sAREA}")
    a("s_sub_u32 s21, s16, 4")
    a("s_lshr_b32 s76, s21, 1")
    a("s_and_b32 s77, s21, 1")
    a("s_lshl_b32 s22, s77, 6")
    a(f"v_xor_b32 v{vT0}, s22, v{vT0}")
    a(f"v_xor_b32 v{vT0+1}, s22, v{vT0+1}")
    a("s_lshl_b32 s79, s21, 14")
    a(f"s_sub_u32 s22, s79, s{sAREA}")
    a(f"v_add_u32 v{vTx}, s22, v{vT0}")
    a(f"v_add_u32 v{vTx+1}, s22, v{vT0+1}")
    a("s_mul_i32 s29, s21, 458752")
    a("s_lshl_b32 s22, s18, 7")
    a("s_add_u32 s29, s29, s22")
    a("s_lshl_b32 s30, s17, 3")
    a("s_lshl_b32 s22, s21, 1")
    a("s_add_u32 s30, s30, s22")
    a("s_mul_i32 s30, s30, 28672")
    a(f"s_add_u32 s30, s30, {HF_OFF}")
    a("s_lshl_b32 s22, s76, 11")
    a("s_add_u32 s48, s30, s22")
    a("s_xor_b32 s22, s22, 2048")
    a("s_add_u32 s49, s30, s22")
    KS = [(c, u, q) for c in range(2) for u in range(7) for q in range(2)]
    NK = len(KS)
    NOWN = RINGG - 4
    DSLOT = [("o", 2048*i) for i in range(NOWN)] + [("x", 2048*i) for i in range(8)]
    NS = len(DSLOT)
    LW, LH = P["lw"], P["lh"]
    HR = LH + 1
    DACC, DFR, HB, PV = 64, 128, 144, 6
    assert HB + 8*HR <= 256 and LW < NS
    def ddma(t):
        c, u, q = KS[t]
        reg, off = DSLOT[t % NS]
        b = sAREA if reg == "o" else 79
        for i in range(2):
            a(f"s_add_u32 s31, s29, {(c*224 + u*32 + q*16 + 8*i)*1024}")
            a(f"s_add_u32 m0, s{b}, {off + 1024*i}")
            if P.get("nowd"): a("s_nop 0")
            else: a(f"buffer_load_dwordx4 v{vW8}, s[{SD}:{SD+3}], s31 offen lds")
            vq.issue(("d", t))
    def hload(t):
        c, u, q = KS[t]
        r = HB + 8*(t % HR)
        for m in range(2):
            a(f"s_add_u32 s31, s{48+m}, {c*28672 + u*4096 + q*1024}")
            if P.get("nohl"): a("s_nop 0")
            else: a(f"buffer_load_dwordx4 v[{r+4*m}:{r+4*m+3}], v{vL16}, s[{SWS}:{SWS+3}], s31 offen{S1('h1')}")
            vq.issue(("h", t))
    def dtr(t):
        reg, off = DSLOT[t % NS]
        v = vT0 if reg == "o" else vTx
        f = DFR + 8*(t % 2)
        for nt in range(2):
            a(f"ds_read_b64_tr_b16 v[{f+4*nt}:{f+4*nt+1}], v{v+nt} offset:{off}"); lq.issue(("f", t))
            a(f"ds_read_b64_tr_b16 v[{f+4*nt+2}:{f+4*nt+3}], v{v+nt} offset:{off+1024}"); lq.issue(("f", t))
    def dmm(t, m, n):
        a(mfma(DACC + 16*(2*m + n), DFR + 8*(t % 2) + 4*n, HB + 8*(t % HR) + 4*m, "0" if t == 0 else DACC + 16*(2*m + n)))
    def pollwait(pfx, sleep):
        a("s_mov_b32 s98, 0")
        a.label(f"{pfx}_C")
        a("s_and_b64 s[46:47], s[96:97], s[74:75]")
        a("s_cmp_eq_u64 s[46:47], s[74:75]")
        a(f"s_cbranch_scc1 {pfx}_D")
        if sleep: a(f"s_sleep {sleep}")
        a("s_mov_b64 exec, s[74:75]")
        a(f"buffer_load_dwordx2 v[{PV}:{PV+1}], v{vFO}, s[{SWS}:{SWS+3}], s99 offen sc1")
        a("s_waitcnt vmcnt(0)")
        a(f"v_cmp_eq_u64 vcc, s[{sNC}:{sNC+1}], v[{PV}:{PV+1}]")
        a("s_mov_b64 exec, -1")
        a("s_or_b64 s[96:97], s[96:97], vcc")
        a("s_add_u32 s98, s98, 1")
        a("s_cmp_lt_u32 s98, 0x40000")
        a(f"s_cbranch_scc1 {pfx}_C")
        a.label(f"{pfx}_D")
    for t in range(NOWN): ddma(t)
    a("s_mul_i32 s22, s21, 14")
    a("s_mov_b64 s[96:97], 0")
    a("s_mov_b32 s74, 0x3fff")
    a("s_mov_b32 s75, 0")
    a("s_lshl_b64 s[74:75], s[74:75], s22")
    if P.get("p1late") == 2:
        lds_spin(a, "Y_GS", F_P1, 7, sleep=2)
        for t in range(NOWN, LW): ddma(t)
        pollwait("Y_P1", P["hsleep"])
        gmark(a, 3)
        for t in range(LH): hload(t)
    elif P.get("p1late"):
        lds_spin(a, "Y_GS", F_P1, 7, sleep=4)
        gmark(a, 3)
        pollwait("Y_P1", P["hsleep"])
        for t in range(LH): hload(t)
    else:
        pollwait("Y_P1", P["hsleep"])
        for t in range(LH): hload(t)
        lds_spin(a, "Y_GS", F_P1, 7)
        gmark(a, 3)
    if P.get("p1late") != 2:
        for t in range(NOWN, LW): ddma(t)
    a(f"s_setprio {P['prio_d']}")
    vq.wait(("d", 0))
    dtr(0)
    for t in range(NK):
        nx = t + 1 < NK
        lq.wait(("f", t))
        vq.wait(("h", t))
        dmm(t, 0, 0)
        if nx:
            vq.wait(("d", t+1)); dtr(t+1)
        dmm(t, 0, 1)
        if t + LW < NK: ddma(t + LW)
        dmm(t, 1, 0)
        dmm(t, 1, 1)
        if t + LH < NK: hload(t + LH)
    gmark(a, 4)
    a("s_lshl_b32 s30, s77, 1")
    a("s_add_u32 s30, s30, s76")
    a("s_lshl_b32 s30, s30, 17")
    a("s_lshl_b32 s31, s18, 7")
    a("s_add_u32 s30, s30, s31")
    for i in range(16):
        a(f"s_add_u32 m0, s79, {1024*i}")
        a(f"buffer_load_dwordx4 v{vW8}, s[{SO}:{SO+3}], s30 offen lds")
        a("s_add_u32 s30, s30, 8192")
    XR = 24
    vXO = 3
    a(f"v_and_b32 v{vXO}, 31, v{vLn}")
    a(f"v_lshlrev_b32 v{vXO}, 10, v{vXO}")
    a(f"v_lshrrev_b32 v4, 5, v{vLn}")
    a(f"v_lshl_add_u32 v{vXO}, v4, 4, v{vXO}")
    a("s_lshl_b32 s78, s17, 16")
    a("s_lshl_b32 s47, s76, 15")
    a("s_add_u32 s78, s78, s47")
    a("s_lshl_b32 s47, s18, 7")
    a("s_add_u32 s78, s78, s47")
    a("s_lshl_b32 s47, s77, 6")
    a("s_add_u32 s78, s78, s47")
    a(f"v_mov_b32 v{vTx}, v{vXO}")
    vXO = vTx
    for q in range(2):
        a(f"buffer_load_dwordx4 v[{XR+4*q}:{XR+4*q+3}], v{vXO}, s[{SX}:{SX+3}], s78 offen offset:{32*q}")
    AO, AP = 32, 48
    for jj in range(1, 4):
        a(f"s_xor_b32 s46, s21, {jj}")
        if jj < 3:
            a(f"s_mul_i32 s46, s46, {SGR}")
            a(f"s_add_u32 s46, s46, {L_GR + SGR - 8192 + (jj-1)*4096}")
        else:
            a("s_lshl_b32 s46, s46, 12")
            a(f"s_add_u32 s46, s46, {L_AR}")
        a(f"v_add_u32 v2, s46, v{vL16}")
        for r4 in range(4):
            r = DACC + 16*jj + 4*r4
            a(f"ds_write_b128 v2, v[{r}:{r+3}] offset:{1024*r4}")
    a("s_waitcnt vmcnt(0) lgkmcnt(0)")
    lds_add1(a, F_PP)
    lds_spin(a, "Y_GPP", F_PP, 4)
    gmark(a, 5)
    a(f"s_mul_i32 s46, s21, {SGR}")
    a(f"s_add_u32 s46, s46, {L_GR + SGR - 8192}")
    a(f"v_add_u32 v2, s46, v{vL16}")
    a("s_lshl_b32 s46, s21, 12")
    a(f"s_add_u32 s46, s46, {L_AR}")
    a(f"v_add_u32 v3, s46, v{vL16}")
    for jj in range(3):
        for r4 in range(4):
            r = 80 + 16*jj + 4*r4
            if jj < 2: a(f"ds_read_b128 v[{r}:{r+3}], v2 offset:{4096*jj + 1024*r4}")
            else: a(f"ds_read_b128 v[{r}:{r+3}], v3 offset:{1024*r4}")
    a("s_waitcnt lgkmcnt(0)")
    for r in range(16):
        a(f"v_add_f32 v{AO+r}, v{DACC+r}, v{80+r}")
        a(f"v_add_f32 v{96+r}, v{96+r}, v{112+r}")
    for r in range(16):
        a(f"v_add_f32 v{AO+r}, v{AO+r}, v{96+r}")
        a(f"v_mov_b32 v{AP+r}, 0")
    WF = 128
    a(f"s_lshl_b32 s47, s77, 14")
    a(f"s_add_u32 s47, s47, {L_X}")
    tr_addr8(a, vT0, 9, "s47")
    for ks in range(16):
        off = (ks >> 3)*32768 + (ks & 7)*2048
        for nt in range(2):
            f = WF + 8*ks + 4*nt
            a(f"ds_read_b64_tr_b16 v[{f}:{f+1}], v{vT0+nt} offset:{off}")
            a(f"ds_read_b64_tr_b16 v[{f+2}:{f+3}], v{vT0+nt} offset:{off+1024}")
    a("s_waitcnt lgkmcnt(0)")
    gmark(a, 6)
    lds_spin(a, "Y_GOC", F_OC, 4, sleep=2)
    a("s_lshl_b32 s75, s77, 2")
    a("s_add_u32 s75, s75, 24")
    a("s_lshl_b32 s75, 15, s75")
    a("s_mov_b32 s74, 0")
    a("s_mov_b64 s[96:97], 0")
    pollwait("Y_PO", P["osleep"])
    gmark(a, 7)
    a("s_lshl_b32 s46, s17, 1")
    a("s_add_u32 s46, s46, s76")
    a("s_lshl_b32 s46, s46, 15")
    a("s_lshl_b32 s47, s77, 14")
    a("s_add_u32 s46, s46, s47")
    a(f"s_add_u32 s46, s46, {OF_OFF}")
    OFR = 64
    vq.order, vq.done = [], 0
    for ks in range(16):
        a(f"buffer_load_dwordx4 v[{OFR+4*ks}:{OFR+4*ks+3}], v{vL16}, s[{SWS}:{SWS+3}], s46 offen offset:{1024*(ks%4)}{S1('o1')}"); vq.issue(("o", ks))
        if ks % 4 == 3 and ks < 15: a("s_add_u32 s46, s46, 4096")
    a("s_cmp_eq_u32 s77, 0")
    a("s_cbranch_scc0 Y_OK1")
    for kh in range(2):
        if kh == 1: a.label("Y_OK1")
        sv = (list(vq.order), vq.done)
        for ks in range(16):
            vq.wait(("o", ks))
            a(mfma(AP, WF + 8*ks + 4*(1-kh), OFR + 4*ks, AP))
            a(mfma(AO, WF + 8*ks + 4*kh, OFR + 4*ks, AO))
        if kh == 0:
            a("s_branch Y_OK2")
            vq.order, vq.done = sv
    a.label("Y_OK2")
    gmark(a, 11)
    a("s_sub_u32 s21, s16, 4")
    a(f"s_mul_i32 s46, s21, {SGR}")
    a(f"s_add_u32 s46, s46, {L_GR}")
    a(f"v_add_u32 v2, s46, v{vL16}")
    a("s_nop 7")
    for r4 in range(4):
        a(f"ds_write_b128 v2, v[{AP+4*r4}:{AP+4*r4+3}] offset:{1024*r4}")
    a("s_waitcnt lgkmcnt(0)")
    a("s_lshl_b32 s47, s76, 2")
    a(f"s_add_u32 s47, s47, {F_X0}")
    a("s_mov_b64 exec, 1")
    a("v_mov_b32 v4, s47")
    a("v_mov_b32 v5, 1")
    a("ds_add_u32 v4, v5")
    a("s_mov_b64 exec, -1")
    a("v_mov_b32 v4, s47")
    a.label("Y_XS")
    a("ds_read_b32 v5, v4")
    a("s_waitcnt lgkmcnt(0)")
    a("v_readfirstlane_b32 s46, v5")
    a("s_cmp_ge_u32 s46, 2")
    a("s_cbranch_scc0 Y_XS")
    a("s_xor_b32 s21, s21, 1")
    a(f"s_mul_i32 s46, s21, {SGR}")
    a(f"s_add_u32 s46, s46, {L_GR}")
    a(f"v_add_u32 v2, s46, v{vL16}")
    for r4 in range(4):
        a(f"ds_read_b128 v[{AP+4*r4}:{AP+4*r4+3}], v2 offset:{1024*r4}")
    a("s_waitcnt lgkmcnt(0)")
    for r in range(16): a(f"v_add_f32 v{AO+r}, v{AO+r}, v{AP+r}")
    for q in range(2):
        for d in range(4): a(f"v_permlane32_swap_b32 v{AO+8*q+d}, v{AO+8*q+4+d}")
    for q in range(2):
        for d in range(4):
            a(f"v_lshlrev_b32 v4, 16, v{XR+4*q+d}")
            a(f"v_and_b32 v5, 0xffff0000, v{XR+4*q+d}")
            a(f"v_add_f32 v{AO+8*q+2*d}, v{AO+8*q+2*d}, v4")
            a(f"v_add_f32 v{AO+8*q+2*d+1}, v{AO+8*q+2*d+1}, v5")
        for d in range(4): a(f"v_cvt_pk_bf16_f32 v{AP+4*q+d}, v{AO+8*q+2*d}, v{AO+8*q+2*d+1}")
        a(f"buffer_store_dwordx4 v[{AP+4*q}:{AP+4*q+3}], v{vXO}, s[{SOUT}:{SOUT+3}], s78 offen offset:{32*q}")

def att_setup(a):
    R = P["kvr"]; KR = 136; VR = KR + 4*R
    if P["rdl"]:
        assert P["fsh"] == 7 and P["srd2"]
        a(f"v_lshlrev_b32 v{vSN}, 4, v{vFO}")
    a(f"v_lshrrev_b32 v2, 5, v{vLn}")
    a(f"v_lshlrev_b32 v{vVo}, 8, v2")
    a(f"v_and_b32 v2, 15, v{vLn}")
    a(f"v_lshl_add_u32 v{vVo}, v2, 4, v{vVo}")
    a(f"v_and_b32 v2, 27, v{vLn}")
    a(f"v_mov_b32 v{VR}, 0x3f803f80")
    a("v_cmp_eq_u32 vcc, 16, v2")
    a(f"v_cndmask_b32 v{VR}, 0, v{VR}, vcc")
    for r in range(1, 8*R): a(f"v_mov_b32 v{VR+r}, v{VR}")

def emit_att(a, vq, lq, dbg):
    pfx = "AT"
    R = P["kvr"]; LA = R - 1
    Qf = [24, 28]; NEG = [32, 48]; S = [64, 80]; O = [96, 112]; Pp = 128; KR = 136; VR = KR + 4*R; T = VR + 8*R
    assert T + 2 <= 256
    NIT = 64 // R
    a("s_mov_b32 s19, s16")
    a("s_lshl_b32 s21, s18, 2")
    a("s_add_u32 s21, s21, s19")
    a("s_lshl_b32 s21, s21, 16")
    a(f"s_add_u32 s21, s21, {KF_OFF}")
    a("s_lshl_b32 s22, s17, 11")
    a("s_mov_b32 s74, 1")
    a("s_mov_b32 s75, 1")
    a("s_mov_b32 s76, 0x0000ffff")
    a("s_mov_b32 s77, 0x0000ffff")
    vq.order, vq.done, lq.order, lq.done = [], 0, [], 0
    refresh = []
    SK, SV = (84, 88) if P["srd2"] else (SWS, SWS)
    if P["srd2"]:
        for sx, off in ((SK, 0), (SV, VF_OFF - KF_OFF)):
            a(f"s_add_u32 s46, s21, {off}")
            a(f"s_add_u32 s{sx}, s{SWS}, s46")
            a(f"s_addc_u32 s{sx+1}, s{SWS+1}, 0")
            a(f"s_mov_b32 s{sx+2}, 131072")
            a(f"s_mov_b32 s{sx+3}, 0x00020000")
    def kvitems(t, site):
        it = []
        I = lambda x: it.append(lambda: a(x))
        if t % 2 == 0:
            I("s_andn2_b32 s96, s74, s75")
            def br():
                a(f"s_cbranch_scc0 {pfx}_RF{site}")
                a.label(f"{pfx}_BK{site}")
            it.append(br)
            I("s_ff1_i32_b32 s96, s96")
            if P["rdl"]:
                I(f"v_readlane_b32 s23, v{vSN}, s96")
                I("s_bitset1_b32 s75, s96")
                if P["ilv"]: I("s_nop 0"); I("s_nop 0"); it[-1] = it[-2] = (lambda: None)
                else: I("s_nop 3")
            else:
                I("s_bitset1_b32 s75, s96")
                I("s_add_u32 s23, s96, s17")
                I("s_and_b32 s23, s23, 15")
                I("s_xor_b32 s96, s96, s17")
                I("s_and_b32 s96, s96, 16")
                I("s_or_b32 s23, s23, s96")
                I("s_lshl_b32 s23, s23, 11")
            refresh.append(site)
        else:
            I("s_add_u32 s23, s23, 1024")
        so = 23 if P["srd2"] else 46
        if not P["srd2"]: I("s_add_u32 s46, s21, s23")
        def kl():
            a(f"buffer_load_dwordx4 v[{KR+4*(t%R)}:{KR+4*(t%R)+3}], v{vL16}, s[{SK}:{SK+3}], s{so} offen{S1('kv1')}"); vq.issue(("K", t))
        it.append(kl)
        sv = 23 if P["srd2"] else 47
        if not P["srd2"]: I(f"s_add_u32 s47, s46, {VF_OFF-KF_OFF}")
        def vl():
            a("s_mov_b64 exec, s[76:77]")
            r = VR + 8*(t % R)
            a(f"buffer_load_dwordx4 v[{r}:{r+3}], v{vVo}, s[{SV}:{SV+3}], s{sv} offen{S1('kv1')}"); vq.issue(("V", t))
            a(f"buffer_load_dwordx4 v[{r+4}:{r+7}], v{vVo}, s[{SV}:{SV+3}], s{sv} offen offset:512{S1('kv1')}"); vq.issue(("V", t))
            a("s_mov_b64 exec, -1")
        it.append(vl)
        return it
    def kvload(t, site):
        for f in kvitems(t, site): f()
    def emit_refresh(site):
        a.label(f"{pfx}_RF{site}")
        a("s_mov_b32 s98, 0")
        a.label(f"{pfx}_RL{site}")
        a(f"v_mov_b32 v2, {F_MASK}")
        a("ds_read_b32 v3, v2")
        a("s_waitcnt lgkmcnt(0)")
        a("v_readfirstlane_b32 s96, v3")
        a("s_or_b32 s74, s74, s96")
        a("s_andn2_b32 s96, s74, s75")
        a(f"s_cbranch_scc1 {pfx}_BK{site}")
        if P["lock"]:
            a("s_mov_b64 exec, 1")
            a(f"v_mov_b32 v2, {F_LK}")
            a("v_mov_b32 v3, 1")
            a("ds_wrxchg_rtn_b32 v4, v2, v3")
            a("s_waitcnt lgkmcnt(0)")
            a("v_readfirstlane_b32 s96, v4")
            a("s_mov_b64 exec, -1")
            a("s_cmp_eq_u32 s96, 0")
            a(f"s_cbranch_scc1 {pfx}_RG{site}")
            a(f"s_sleep {P['lsleep']}")
            a(f"s_branch {pfx}_RC{site}")
            a.label(f"{pfx}_RG{site}")
        poll_once(a)
        if P["lock"]:
            if P["lock"] == 2:
                a("s_andn2_b32 s96, s74, s75")
                a(f"s_cbranch_scc1 {pfx}_RR{site}")
                a(f"s_sleep {P['rsleep']}")
                a.label(f"{pfx}_RR{site}")
            a("s_mov_b64 exec, 1")
            a(f"v_mov_b32 v2, {F_LK}")
            a("v_mov_b32 v3, 0")
            a("ds_write_b32 v2, v3")
            a("s_mov_b64 exec, -1")
        if TS_ENABLE[0]: a("s_add_u32 s64, s64, 1")
        a("s_andn2_b32 s96, s74, s75")
        a(f"s_cbranch_scc1 {pfx}_BK{site}")
        if P["lock"] != 2: a(f"s_sleep {P['rsleep']}")
        a.label(f"{pfx}_RC{site}")
        a("s_add_u32 s98, s98, 1")
        a("s_cmp_lt_u32 s98, 0x40000")
        a(f"s_cbranch_scc1 {pfx}_RL{site}")
        a("s_not_b32 s96, s75")
        a(f"s_branch {pfx}_BK{site}")
    if TS_ENABLE[0]: a("s_mov_b32 s64, s82")
    a("s_lshl_b32 s46, s19, 11")
    a(f"s_add_u32 s47, s46, {L_QO}")
    a(f"v_add_u32 v2, s47, v{vL16}")
    a(f"ds_read_b128 v[{Qf[0]}:{Qf[0]+3}], v2")
    a(f"ds_read_b128 v[{Qf[1]}:{Qf[1]+3}], v2 offset:1024")
    a(f"s_add_u32 s47, s46, {L_AR}")
    a(f"v_add_u32 v2, s47, v{vL16}")
    a(f"ds_read_b128 v[{KR}:{KR+3}], v2")
    a(f"ds_read_b128 v[{KR+4}:{KR+7}], v2 offset:1024")
    a(f"s_add_u32 s47, s46, {L_AR + SA}")
    a(f"v_add_u32 v2, s47, v{vVo}")
    a("s_mov_b64 exec, s[76:77]")
    for t in range(2):
        a(f"ds_read_b128 v[{VR+8*t}:{VR+8*t+3}], v2 offset:{1024*t}")
        a(f"ds_read_b128 v[{VR+8*t+4}:{VR+8*t+7}], v2 offset:{1024*t+512}")
    a("s_mov_b64 exec, -1")
    for q in range(2):
        for r in range(16): a(f"v_mov_b32 v{O[q]+r}, 0")
    a("s_waitcnt lgkmcnt(0)")
    m = T
    for q in range(2):
        a(mfma(S[0], KR, Qf[q], "0"))
        a(mfma(S[1], KR+4, Qf[q], "0"))
        a(f"v_max3_f32 v{m}, v{S[0]}, v{S[0]+1}, v{S[0]+2}")
        for r in range(3, 15, 2):
            a(f"v_max3_f32 v{m}, v{m}, v{S[0]+r}, v{S[0]+r+1}")
        a(f"v_max3_f32 v{m}, v{m}, v{S[0]+15}, v{S[1]}")
        for r in range(1, 15, 2):
            a(f"v_max3_f32 v{m}, v{m}, v{S[1]+r}, v{S[1]+r+1}")
        a(f"v_max_f32 v{m}, v{m}, v{S[1]+15}")
        a(f"v_mov_b32 v{m+1}, v{m}")
        a(f"v_permlane32_swap_b32 v{m}, v{m+1}")
        a(f"v_max_f32 v{m}, v{m}, v{m+1}")
        a(f"v_add_f32 v{m}, {hexf(ATT_OFFSET)}, v{m}")
        a(f"v_sub_f32 v{NEG[q]}, 0, v{m}")
        for r in range(1, 16): a(f"v_mov_b32 v{NEG[q]+r}, v{NEG[q]}")
    for r in range(4 if P["sched"] == 1 else 0, 8): a(f"v_mov_b32 v{Pp+r}, 0")
    if not P.get("am"): mark(a, 11)
    if not P["epub"]:
        a("s_cmp_lt_u32 s16, 2")
        a(f"s_cbranch_scc0 {pfx}_NP")
        publish(a, "KVP")
        a.label(f"{pfx}_NP")
    for t in range(2, LA): kvload(t, f'P{t}')
    a(mfma(S[0], KR, Qf[0], NEG[0]))
    a("s_mov_b32 s26, 0")
    a("s_nop 7")
    mark(a, 4)
    E = lambda r: a(f"v_exp_f32 v{r}, v{r}")
    C = lambda d, r: a(f"v_cvt_pk_bf16_f32 v{d}, v{r}, v{r+1}")
    entry = [("V", 0), ("V", 0)] + [x for i in range(1, LA) for x in (("K", i), ("V", i), ("V", i))]
    def body(last):
        vq.order = list(entry); vq.done = 0
        for t in range(R):
            for q in range(2):
                Sa = S[q]; Sb = S[1-q]
                def QK():
                    if q == 0:
                        a(mfma(Sb, KR + 4*(t % R), Qf[1], NEG[1]))
                    elif not (last and t == R-1):
                        vq.wait(("K", t+1))
                        a(mfma(Sb, KR + 4*((t+1) % R), Qf[0], NEG[0]))
                def KVL():
                    if q == 0 and (not last or t + LA < R): kvload(t + LA, f'{"Z" if last else "L"}{t}')
                tp = t if q == 1 else t - 1
                if P["sched"] == 1:
                    QK()
                    E(Sa+0); E(Sa+1); E(Sa+2); E(Sa+3)
                    C(Pp+0, Sa+0); E(Sa+4); C(Pp+1, Sa+2); E(Sa+5); E(Sa+6); E(Sa+7)
                    a(mfma(O[1-q], VR + 8*(tp % R) + 4, Pp+4, O[1-q]))
                    KVL()
                    E(Sa+8); C(Pp+2, Sa+4); E(Sa+9); C(Pp+3, Sa+6); E(Sa+10); E(Sa+11)
                    E(Sa+12); C(Pp+4, Sa+8)
                    if q == 0: vq.wait(("V", t))
                    a(mfma(O[q], VR + 8*(t % R), Pp, O[q]))
                    E(Sa+13); C(Pp+5, Sa+10); E(Sa+14); E(Sa+15)
                    C(Pp+6, Sa+12); C(Pp+7, Sa+14)
                else:
                    if q == 1: vq.wait(("V", t))
                    if P["ptog"]: a(f"s_setprio {P['phi']}")
                    a(mfma(O[1-q], VR + 8*(tp % R), Pp, O[1-q]))
                    E(Sa+0); E(Sa+1); E(Sa+2)
                    a(mfma(O[1-q], VR + 8*(tp % R) + 4, Pp+4, O[1-q]))
                    E(Sa+3); E(Sa+4); E(Sa+5)
                    QK()
                    if P["ptog"]: a(f"s_setprio {P['prio_att']}")
                    if P["ilv"]:
                        its = kvitems(t + LA, f'{"Z" if last else "L"}{t}') if (q == 0 and (not last or t + LA < R)) else []
                        per = P["ilv"]
                        def EE(r):
                            E(r)
                            for _ in range(per):
                                if its: its.pop(0)()
                        EE(Sa+6); C(Pp+0, Sa+0); EE(Sa+7); C(Pp+1, Sa+2); EE(Sa+8); C(Pp+2, Sa+4); EE(Sa+9)
                        EE(Sa+10); C(Pp+3, Sa+6); EE(Sa+11); C(Pp+4, Sa+8); EE(Sa+12); EE(Sa+13); C(Pp+5, Sa+10); EE(Sa+14)
                        while its: its.pop(0)()
                        E(Sa+15)
                        C(Pp+6, Sa+12); C(Pp+7, Sa+14)
                    else:
                        E(Sa+6); C(Pp+0, Sa+0); E(Sa+7); C(Pp+1, Sa+2); E(Sa+8); C(Pp+2, Sa+4); E(Sa+9)
                        KVL()
                        E(Sa+10); C(Pp+3, Sa+6); E(Sa+11); C(Pp+4, Sa+8); E(Sa+12); E(Sa+13); C(Pp+5, Sa+10); E(Sa+14); E(Sa+15)
                        C(Pp+6, Sa+12); C(Pp+7, Sa+14)
        if not last:
            shift = lambda tg: (tg[0], tg[1] - R)
            known_k = ("K", R)
            tail = [shift(x) for x in vq.order[[i for i, x in enumerate(vq.order) if x == known_k][-1]+1:]]
            assert tail == entry, (tail, entry)
    a.label(f"{pfx}_LOOP")
    body(False)
    a("s_add_u32 s26, s26, 1")
    if P.get("am") and TS_ENABLE[0] and not P.get("km"):
        for k, mi in ((1, 8), (3, 9), (5, 10), (7, 11)):
            a(f"s_cmp_eq_u32 s26, {k*NIT//8}")
            a(f"s_cbranch_scc0 {pfx}_AM{k}")
            mark(a, mi)
            a.label(f"{pfx}_AM{k}")
    a(f"s_cmp_lt_u32 s26, {NIT-1}")
    a(f"s_cbranch_scc1 {pfx}_LOOP")
    body(True)
    mark(a, 5)
    if P["ptog"]: a(f"s_setprio {P['phi']}")
    if P["sched"] != 1:
        a("s_nop 1")
        a(mfma(O[1], VR + 8*(R-1), Pp, O[1]))
    a(mfma(O[1], VR + 8*(R-1) + 4, Pp+4, O[1]))
    OWN, TT, QOWN = 80, 48, 60
    a("s_nop 15")
    for q in range(2):
        a("s_mov_b32 s46, 0x207")
        a("s_mov_b32 s47, 0x2ff")
        for r in range(9): a(f"v_mov_b32 v{OWN+r}, v{O[q]+r}")
        a(f"v_cmp_class_f32 s[78:79], v{OWN+8}, s47")
        for r in range(8):
            a(f"v_cmp_class_f32 vcc, v{OWN+r}, s46")
            a("s_or_b64 s[78:79], s[78:79], vcc")
        a("s_cmp_lg_u64 s[78:79], 0")
        a(f"s_cbranch_scc1 {pfx}_SLOW{q}")
        a.label(f"{pfx}_OUT{q}")
        a(f"v_rcp_f32 v{TT}, v{OWN+8}")
        for r in range(8): a(f"v_mul_f32 v{OWN+r}, v{OWN+r}, v{TT}")
        for d in range(4): a(f"v_cvt_pk_bf16_f32 v{T-8+4*q+d}, v{OWN+2*d}, v{OWN+2*d+1}")
        a("s_lshl_b32 s46, s17, 1"); a(f"s_add_u32 s46, s46, {q}"); a("s_lshl_b32 s46, s46, 15")
        a("s_lshl_b32 s47, s18, 2"); a("s_add_u32 s47, s47, s19"); a("s_lshl_b32 s47, s47, 10")
        a("s_add_u32 s46, s46, s47"); a(f"s_add_u32 s46, s46, {OF_OFF}")
        a(f"buffer_store_dwordx4 v[{T-8+4*q}:{T-5+4*q}], v{vL16}, s[{SWS}:{SWS+3}], s46 offen sc1")
    a("s_waitcnt vmcnt(0)")
    mark(a, 6)
    a("s_mov_b64 exec, 1")
    a(f"v_mov_b32 v2, {F_OC+12}")
    a("v_mov_b32 v3, 1")
    a("ds_add_rtn_u32 v4, v2, v3")
    a("s_waitcnt lgkmcnt(0)")
    a("v_readfirstlane_b32 s46, v4")
    a("s_cmp_eq_u32 s46, 3")
    a(f"s_cbranch_scc0 {pfx}_NOPUB")
    a("s_mov_b32 exec_lo, 0")
    a("s_mov_b32 exec_hi, 1")
    flag_store(a)
    a(f"v_mov_b32 v2, {F_OC}")
    a("v_mov_b32 v3, 4")
    a("ds_write_b32 v2, v3")
    a.label(f"{pfx}_NOPUB")
    a("s_mov_b64 exec, -1")
    a(f"s_branch {pfx}_END")
    for site in refresh: emit_refresh(site)
    KS, VS, SS, NS_, PS = KR, VR, S[0], NEG[0], Pp
    for q in range(2):
        a.label(f"{pfx}_SLOW{q}")
        for r in range(4): a(f"v_mov_b32 v{QOWN+r}, v{Qf[q]+r}")
        a("s_mov_b32 s46, s21")
        a(f"v_mov_b32 v{TT}, 0xff800000")
        a("s_mov_b32 s26, 0")
        a.label(f"{pfx}_SL1_{q}")
        a(f"buffer_load_dwordx4 v[{KS}:{KS+3}], v{vL16}, s[{SWS}:{SWS+3}], s46 offen sc1")
        a("s_waitcnt vmcnt(0)")
        a(mfma(SS, KS, QOWN, "0"))
        for r in range(0, 16, 2):
            a(f"v_max3_f32 v{TT}, v{TT}, v{SS+r}, v{SS+r+1}")
        a("s_add_u32 s46, s46, 1024")
        a("s_add_u32 s26, s26, 1")
        a("s_cmp_lt_u32 s26, 64")
        a(f"s_cbranch_scc1 {pfx}_SL1_{q}")
        a(f"v_mov_b32 v{TT+1}, v{TT}")
        a(f"v_permlane32_swap_b32 v{TT}, v{TT+1}")
        a(f"v_max_f32 v{TT}, v{TT}, v{TT+1}")
        a(f"v_sub_f32 v{NS_}, 0, v{TT}")
        for r in range(1, 16): a(f"v_mov_b32 v{NS_+r}, v{NS_}")
        for r in range(16): a(f"v_mov_b32 v{OWN+r}, 0")
        a("s_mov_b32 s46, s21")
        a("s_mov_b32 s26, 0")
        a.label(f"{pfx}_SL2_{q}")
        a(f"buffer_load_dwordx4 v[{KS}:{KS+3}], v{vL16}, s[{SWS}:{SWS+3}], s46 offen sc1")
        a(f"s_add_u32 s47, s46, {VF_OFF-KF_OFF}")
        a("s_mov_b64 exec, s[76:77]")
        a(f"buffer_load_dwordx4 v[{VS}:{VS+3}], v{vVo}, s[{SWS}:{SWS+3}], s47 offen sc1")
        a(f"buffer_load_dwordx4 v[{VS+4}:{VS+7}], v{vVo}, s[{SWS}:{SWS+3}], s47 offen offset:512 sc1")
        a("s_mov_b64 exec, -1")
        a("s_waitcnt vmcnt(0)")
        a(mfma(SS, KS, QOWN, NS_))
        for r in range(16): E(SS+r)
        for d in range(8): C(PS+d, SS+2*d)
        a(mfma(OWN, VS, PS, OWN))
        a(mfma(OWN, VS+4, PS+4, OWN))
        a("s_add_u32 s46, s46, 1024")
        a("s_add_u32 s26, s26, 1")
        a("s_cmp_lt_u32 s26, 64")
        a(f"s_cbranch_scc1 {pfx}_SL2_{q}")
        a("s_nop 15")
        a(f"s_branch {pfx}_OUT{q}")
    a.label(f"{pfx}_END")

def gen_y(label, dbg=False):
    k = Kernel(label, 256, 512, LDS_TOTAL, 256, 100)
    a = k.a
    a("s_cmp_ge_u32 s2, 256")
    a("s_cbranch_scc1 Y_END")
    emit_y(a, dbg)
    a.label("Y_END")
    return k

if __name__ == "__main__":
    import sys
    out = sys.argv[1]; opts = sys.argv[2:]
    if "ts" in opts: TS_ENABLE[0] = True
    if "lnm" in opts: LNM[0] = True
    for o in opts:
        if "=" in o:
            kk, vv = o.split("="); P[kk] = int(vv)
    ks = [gen_y(NAME + "_kernel", dbg="dbg" in opts)]
    open(out, "w").write(build_file(ks))
```

```python
from common import *
import z
from z import lane_off8, tr_addr8, ln_loads, gen_fin2, PF_OFF, ATT_OFFSET
P = dict(gstart=28, prio_kv=3, prio_att=0, prio_g=0, gwait=1, zrow=1, psleep=8, rsleep=4, ringa=4, ringg=8, gprime=0, pdx=1, prio_e=2, prio_d=0, lw=9, lh=7, hsleep=8, fsleep=16, osleep=2, dual=1, kvr=8, stouch=1, pwait=1, ncv=1, fsh=7, lock=1, lsleep=2, kv1=1, h1=1, o1=1, sched=1, ptog=0, phi=2, pk=0, qstart=0, deep=0, fa=1, spr=0, gspr=0, gtouch=0, ilv=0, srd2=0, epub=0, rdl=0, kah=0, lnpk=0)
sBOR = 50
def OST(): return ["", " sc1", " nt", " sc0 sc1"][P.get("ost", 0)]
def S1(k): return " sc1" if P[k] else ""
import sys
for o in sys.argv[2:]:
    if "=" in o:
        kk, vv = o.split("="); P[kk] = int(vv)

L_X, L_AR, LDS_TOTAL = 0, 65536, 163840
SA, SGR = P["ringa"]*2048, P["ringg"]*2048
L_GR = L_AR + 3*SA
L_QO = L_AR + 2*SA
L_FL = 159744
assert L_GR + 4*SGR <= L_FL and SA >= 8192 and SGR >= 8192 + 2*2048
F_PUB, F_GO, F_QD, F_GS, F_P1, F_MASK = L_FL, L_FL+4, L_FL+8, L_FL+12, L_FL+16, L_FL+20
SQ, SG, SU, SX, SD, SO, SWS, SDBG = 4, 8, 12, 24, 32, 36, 40, 44
sAREA = 28
vLn, vW8, vWm, vT0, vTm, vX0, vL16, vVo, vTx = 1, 10, 11, 12, 14, 16, 20, 21, 22
LNX, LNT = 64, 96
ACC, FR, XB = 128, 192, 208
RINGG = P["ringg"]
def ring_of(kind): return P["ringa"] if kind in "WV" else RINGG
LNM = [False]
FL_OFF = 0x3000000
FL2_OFF = FL_OFF + 0x10000
F_PP, F_FM, F_OC, F_X0, F_NC = L_FL+24, L_FL+28, L_FL+32, L_FL+48, L_FL+56
F_LK = L_FL+64
sNC = 2
vFO, vSN = 8, 9

def ids(a):
    a("v_and_b32 v1, 63, v0")
    a("v_lshrrev_b32 v2, 6, v0")
    a("v_readfirstlane_b32 s16, v2")
    if P.get("badmap"):
        a("s_lshr_b32 s20, s2, 5"); a("s_and_b32 s21, s2, 31")
    else:
        a("s_and_b32 s20, s2, 7")
        a("s_lshr_b32 s21, s2, 3")
    a("s_lshr_b32 s19, s21, 1")
    a("s_lshr_b32 s17, s20, 2")
    a("s_lshl_b32 s17, s17, 4")
    a("s_add_u32 s17, s17, s19")
    a("s_and_b32 s18, s20, 3")
    a("s_lshl_b32 s18, s18, 1")
    a("s_and_b32 s21, s21, 1")
    a("s_add_u32 s18, s18, s21")

def ln_addr_x(a):
    r, c = LNT+2, LNT+3
    a(f"v_lshrrev_b32 v{r}, 3, v{vLn}")
    a(f"v_and_b32 v{c}, 7, v{vLn}")
    a(f"v_lshlrev_b32 v{LNT}, 10, v{r}")
    a(f"v_lshl_add_u32 v{LNT}, v{c}, 4, v{LNT}")
    a("s_lshl_b32 s23, s17, 16")
    a("s_lshl_b32 s22, s16, 13")
    a("s_add_u32 s23, s23, s22")

def ln_addr_rest(a):
    r, c = LNT+2, LNT+3
    t = LNT+4
    a(f"v_lshrrev_b32 v{t}, 1, v{c}")
    a(f"v_lshlrev_b32 v{t}, 10, v{t}")
    a(f"v_and_b32 v{t+1}, 1, v{c}")
    a(f"v_lshl_add_u32 v{t}, v{t+1}, 9, v{t}")
    a("s_and_b32 s21, s16, 3")
    a("s_lshl_b32 s21, s21, 7")
    a("s_lshr_b32 s22, s16, 2")
    a("s_lshl_b32 s22, s22, 15")
    a("s_add_u32 s22, s22, s21")
    a(f"v_xor_b32 v{t+1}, v{r}, v{c}")
    a(f"v_lshl_add_u32 v{LNT+1}, v{t+1}, 4, v{t}")
    a(f"v_add_u32 v{LNT+1}, s22, v{LNT+1}")
    a(f"v_lshrrev_b32 v{t}, 5, v{vLn}")
    for q in range(4):
        a(f"v_add_u32 v{t+1}, {2*q}, v{t}")
        a(f"v_xor_b32 v{t+1}, v{t+1}, v{vLn}")
        a(f"v_lshlrev_b32 v{vX0+q}, 4, v{t+1}")

def ln_stats(a, vq):
    X = LNX
    ONES, A1, B1, A2, B2 = LNT+8, LNT+9, LNT+10, LNT+11, LNT+12
    a(f"v_mov_b32 v{ONES}, 0x3f803f80")
    for r in (A1, B1, A2, B2): a(f"v_mov_b32 v{r}, 0")
    if LNM[0]: mark(a, 8)
    for i in range(8):
        vq.wait(("x", i))
        if LNM[0] and i == 0: mark(a, 9)
        for d in range(4):
            r = X + 4*i + d
            a(f"v_dot2c_f32_bf16 v{A1 if d%2==0 else B1}, v{r}, v{ONES}")
            a(f"v_dot2c_f32_bf16 v{A2 if d%2==0 else B2}, v{r}, v{r}")
    a("s_nop 2")
    if LNM[0]: mark(a, 10)

def ln_norm(a, lq):
    X = LNX
    ONES, A1, B1, A2, B2 = LNT+8, LNT+9, LNT+10, LNT+11, LNT+12
    a(f"v_add_f32 v{A1}, v{A1}, v{B1}")
    a(f"v_add_f32 v{A2}, v{A2}, v{B2}")
    for mod in ("quad_perm:[1,0,3,2]", "quad_perm:[2,3,0,1]", "row_half_mirror"):
        a(f"v_add_f32_dpp v{A1}, v{A1}, v{A1} {mod} row_mask:0xf bank_mask:0xf")
        a(f"v_add_f32_dpp v{A2}, v{A2}, v{A2} {mod} row_mask:0xf bank_mask:0xf")
    a(f"v_mul_f32 v{A1}, 0x3b000000, v{A1}")
    a(f"v_mul_f32 v{A2}, 0x3b000000, v{A2}")
    a(f"v_fma_f32 v{A2}, -v{A1}, v{A1}, v{A2}")
    a(f"v_max_f32 v{A2}, 0, v{A2}")
    a(f"v_add_f32 v{A2}, 0x3727c5ac, v{A2}")
    SC, BI = LNT+14, (LNT+12 if P["lnpk"] else LNT+13)
    a(f"v_rsq_f32 v{SC}, v{A2}")
    a(f"v_mul_f32 v{BI}, v{A1}, v{SC}")
    a(f"v_sub_f32 v{BI}, 0, v{BI}")
    T = LNT+16
    for kx in range(32):
        r = X + kx; t = T + 2*(kx % 4)
        a(f"v_lshlrev_b32 v{t}, 16, v{r}")
        a(f"v_and_b32 v{t+1}, 0xffff0000, v{r}")
        if P["lnpk"]:
            a(f"v_pk_fma_f32 v[{t}:{t+1}], v[{t}:{t+1}], v[{SC}:{SC+1}], v[{BI}:{BI+1}] op_sel_hi:[1,0,0]")
        else:
            a(f"v_fma_f32 v{t}, v{t}, v{SC}, v{BI}")
            a(f"v_fma_f32 v{t+1}, v{t+1}, v{SC}, v{BI}")
        a(f"v_cvt_pk_bf16_f32 v{r}, v{t}, v{t+1}")
        if kx % 4 == 3:
            i = kx // 4
            a(f"ds_write_b128 v{LNT+1}, v[{X+4*i}:{X+4*i+3}] offset:{i*4096}")
            lq.issue(("xw", i))

def dma_step(a, vq, kind, slot, tag, base=None, half=None):
    sl = slot * 2048
    if kind in "WV":
        for i in (range(2) if half is None else [half]):
            a(f"s_add_u32 m0, s{sAREA if base is None else base}, {sl + 1024*i}")
            a(f"buffer_load_dwordx4 v{vW8}, s[{SQ}:{SQ+3}], s29 offen lds"); vq.issue(tag)
            a(f"s_add_u32 s29, s29, {8*3072}")
    else:
        a(f"s_add_u32 m0, s{sAREA}, {sl}")
        a(f"buffer_load_dwordx4 v{vWm}, s[{SG}:{SG+3}], s30 offen lds"); vq.issue(tag)
        a(f"s_add_u32 m0, s{sAREA}, {sl + 1024}")
        a(f"buffer_load_dwordx4 v{vWm}, s[{SU}:{SU+3}], s30 offen lds"); vq.issue(tag)
        a(f"s_add_u32 s30, s30, {16*3584}")

def unit_body(a, vq, lq, kind, wrap, hook_step=None, dma_pre=None, phase=0, dma_post=None):
    RING = ring_of(kind); PD = RING - 1 + P["pdx"]
    deep = P["deep"] and kind in "WV"
    dslot = lambda g: g % 8 if (g < 28 or P["deep"] == 2) else g - 28
    def ddma(gp):
        sl = dslot(gp)
        dma_step(a, vq, kind, sl % 4, ("w", gp), base=(sBOR if sl >= 4 else None))
    def trr(g):
        sl = ((g + phase) % RING) * 2048
        vt = vT0
        if deep:
            sl = (dslot(g) % 4) * 2048
            if dslot(g) >= 4: vt = vTx
        f = fbuf(g)
        for nt in range(2):
            if kind in "WV":
                a(f"ds_read_b64_tr_b16 v[{f+4*nt}:{f+4*nt+1}], v{vt+nt} offset:{sl}"); lq.issue(("f", g))
                a(f"ds_read_b64_tr_b16 v[{f+4*nt+2}:{f+4*nt+3}], v{vt+nt} offset:{sl+512}"); lq.issue(("f", g))
            else:
                a(f"ds_read_b64_tr_b16 v[{f+4*nt}:{f+4*nt+1}], v{vTm} offset:{sl+nt*1024}"); lq.issue(("f", g))
                a(f"ds_read_b64_tr_b16 v[{f+4*nt+2}:{f+4*nt+3}], v{vTm} offset:{sl+nt*1024+256}"); lq.issue(("f", g))
    FA = P["fa"]
    fbuf = (lambda g: [FR, FR+8, 224][g % 3]) if FA == 3 else (lambda g: FR + 8*(g % 2))
    xbuf = (lambda g: [XB, XB+8, 232][g % 3]) if FA == 3 else (lambda g: XB + 8*(g % 2))
    def xread(g):
        for mt in range(2):
            xb = xbuf(g) + 4*mt
            a(f"ds_read_b128 v[{xb}:{xb+3}], v{vX0 + g%4} offset:{mt*32768 + g*1024}"); lq.issue(("f", g))
    def mm(g, nt, mt):
        f = fbuf(g) + 4*nt; xb = xbuf(g) + 4*mt
        acc = ACC + 16*(2*mt+nt)
        c = "0" if g == 0 else acc
        a(mfma(acc, xb, f, c) if kind == "V" else mfma(acc, f, xb, c))
    if deep:
        assert RING == 4 and PD == 4 and P["gstart"] >= (24 if P["deep"] == 1 else 31)
        for gp in range(4, 8): ddma(gp)
    vq.wait(("w", 0))
    trr(0); xread(0)
    AH = 2 if FA == 3 else 1
    if FA == 3:
        vq.wait(("w", 1)); trr(1); xread(1)
    for g in range(32):
        nx = g + AH < 32
        lq.wait(("f", g))
        if nx and FA >= 2: xread(g+AH)
        mm(g, 0, 0)
        if nx:
            vq.wait(("w", g+AH)); trr(g+AH)
        mm(g, 1, 0)
        if nx and FA == 1: xread(g+1)
        if P["spr"] and not deep and g + PD < 32:
            dma_step(a, vq, kind, (g+PD+phase) % RING, ("w", g+PD), half=0)
            mm(g, 0, 1)
            dma_step(a, vq, kind, (g+PD+phase) % RING, ("w", g+PD), half=1)
            mm(g, 1, 1)
            if hook_step: hook_step(g)
            continue
        mm(g, 0, 1)
        if deep:
            if g < (20 if P["deep"] == 1 else 24): ddma(g + 8)
            elif 24 <= g < 28 and P["deep"] == 1: ddma(g + 4)
        elif g + PD < 32 or wrap:
            if dma_pre: dma_pre(g + PD)
            dma_step(a, vq, kind, (g+PD+phase) % RING, ("w", g+PD))
            if dma_post: dma_post(g + PD)
        mm(g, 1, 1)
        if hook_step: hook_step(g)

def glu_epilogue(a, vq, sdst):
    a(f"s_mov_b32 s31, {hexf(-1.4426950408889634)}")
    H = XB
    for mt in range(2):
        g = ACC + 32*mt; u = g + 16
        for i in range(16): a(f"v_mul_f32 v{g+i}, s31, v{g+i}")
        for i in range(16): a(f"v_exp_f32 v{g+i}, v{g+i}")
        for i in range(16): a(f"v_add_f32 v{g+i}, 1.0, v{g+i}")
        for i in range(16): a(f"v_rcp_f32 v{g+i}, v{g+i}")
        for i in range(16): a(f"v_mul_f32 v{g+i}, v{g+i}, v{u+i}")
        for d in range(8): a(f"v_cvt_pk_bf16_f32 v{H+8*mt+d}, v{g+2*d}, v{g+2*d+1}")
    for mt in range(2):
        for q in range(2):
            a(f"buffer_store_dwordx4 v[{H+8*mt+4*q}:{H+8*mt+4*q+3}], v{vL16}, s[{SWS}:{SWS+3}], s{sdst} offen offset:{mt*2048 + q*1024} sc1"); vq.issue("hst")

GRING = 4
GPD = GRING - 1 + P["pdx"]
GF, GX, GACC = 64, 96, 128
def gdma(a, vq, g, part=None):
    sl = (g % GRING) * 4096
    if part in (None, 0): a(f"s_add_u32 s31, s30, {8*3584}")
    for i, (srd_, so) in enumerate(((SG, 30), (SG, 31), (SU, 30), (SU, 31))):
        if part is not None and i != part: continue
        a(f"s_add_u32 m0, s{sAREA}, {sl + 1024*i}")
        a(f"buffer_load_dwordx4 v{vWm}, s[{srd_}:{srd_+3}], s{so} offen lds"); vq.issue(("w", g))
    if part in (None, 3): a(f"s_add_u32 s30, s30, {16*3584}")

def gunit(a, vq, lq, nu):
    tiles = [(p, n) for p in range(2) for n in range(nu)]
    def trr(g, p):
        sl = (g % GRING) * 4096 + p*2048
        for n in range(nu):
            f = GF + 16*(g % 2) + 4*(2*p + n)
            a(f"ds_read_b64_tr_b16 v[{f}:{f+1}], v{vT0+n} offset:{sl}"); lq.issue(("f", g))
            a(f"ds_read_b64_tr_b16 v[{f+2}:{f+3}], v{vT0+n} offset:{sl+512}"); lq.issue(("f", g))
    def xread(g):
        for mt in range(2):
            xb = GX + 8*(g % 2) + 4*mt
            a(f"ds_read_b128 v[{xb}:{xb+3}], v{vX0 + g%4} offset:{mt*32768 + g*1024}"); lq.issue(("f", g))
    def mm(g, p, n, mt):
        f = GF + 16*(g % 2) + 4*(2*p + n); xb = GX + 8*(g % 2) + 4*mt
        acc = GACC + 16*(4*mt + 2*p + n)
        a(mfma(acc, f, xb, "0" if g == 0 else acc))
    vq.wait(("w", 0))
    trr(0, 0); trr(0, 1); xread(0)
    for g in range(32):
        nx = g + 1 < 32
        lq.wait(("f", g))
        seq = [(p, n, mt) for mt in range(2) for (p, n) in tiles]
        acts = []
        if nx:
            acts.append(lambda: (vq.wait(("w", g+1)), trr(g+1, 0)))
            acts.append(lambda: trr(g+1, 1))
            acts.append(lambda: xread(g+1))
        if g + GPD < 32:
            if P["gspr"]:
                for part in range(4): acts.append(lambda part=part: gdma(a, vq, g + GPD, part))
            else: acts.append(lambda: gdma(a, vq, g + GPD))
        for i, (p, n, mt) in enumerate(seq):
            mm(g, p, n, mt)
            if i < len(acts): acts[i]()
        for act in acts[len(seq):]: act()
        if P.get("gma") and g in (0, 3, 7, 11, 15, 23): mark(a, {0: 2, 3: 3, 7: 4, 11: 5, 15: 6, 23: 7}[g])

def gepilogue(a, vq, nu):
    a(f"s_mov_b32 s31, {hexf(-1.4426950408889634)}")
    if P["pk"]:
        a("s_mov_b32 s30, s31")
        a("s_mov_b32 s31, 1.0")
    a(f"s_setprio {P['prio_e']}")
    for n in range(nu):
        H = GF + 16*n
        for mt in range(2):
            g = GACC + 16*(4*mt + n); u = g + 32
            if P["pk"]:
                for i in range(0, 16, 2): a(f"v_pk_mul_f32 v[{g+i}:{g+i+1}], v[{g+i}:{g+i+1}], s[30:31] op_sel_hi:[1,0]")
                for i in range(16): a(f"v_exp_f32 v{g+i}, v{g+i}")
                for i in range(0, 16, 2): a(f"v_pk_add_f32 v[{g+i}:{g+i+1}], v[{g+i}:{g+i+1}], s[30:31] op_sel:[0,1] op_sel_hi:[1,1]")
                for i in range(16): a(f"v_rcp_f32 v{g+i}, v{g+i}")
                for i in range(0, 16, 2): a(f"v_pk_mul_f32 v[{g+i}:{g+i+1}], v[{g+i}:{g+i+1}], v[{u+i}:{u+i+1}]")
            else:
                for i in range(16): a(f"v_mul_f32 v{g+i}, s31, v{g+i}")
                for i in range(16): a(f"v_exp_f32 v{g+i}, v{g+i}")
                for i in range(16): a(f"v_add_f32 v{g+i}, 1.0, v{g+i}")
                for i in range(16): a(f"v_rcp_f32 v{g+i}, v{g+i}")
                for i in range(16): a(f"v_mul_f32 v{g+i}, v{g+i}, v{u+i}")
            for d in range(8): a(f"v_cvt_pk_bf16_f32 v{H+8*mt+d}, v{g+2*d}, v{g+2*d+1}")
            if n == 1 and mt == 0: a("s_add_u32 s47, s48, 4096")
            so = 48 if n == 0 else 47
            for q in range(2):
                a(f"buffer_store_dwordx4 v[{H+8*mt+4*q}:{H+8*mt+4*q+3}], v{vL16}, s[{SWS}:{SWS+3}], s{so} offen offset:{mt*2048 + q*1024} sc1"); vq.issue("hst")
    a(f"s_setprio {P['prio_g']}")

def gmark(a, i):
    if not P.get("gm") and not P.get("gma"): mark(a, i)

def lds_add1(a, addr, ret=None):
    a("s_mov_b64 exec, 1")
    a(f"v_mov_b32 v2, {addr}")
    a("v_mov_b32 v3, 1")
    if ret is None: a("ds_add_u32 v2, v3")
    else: a(f"ds_add_rtn_u32 v{ret}, v2, v3")
    a("s_mov_b64 exec, -1")

def lds_spin(a, lab, addr, val, sleep=1, cmp="ge"):
    a(f"v_mov_b32 v2, {addr}")
    a.label(lab)
    a("ds_read_b32 v3, v2")
    a("s_waitcnt lgkmcnt(0)")
    a("v_readfirstlane_b32 s46, v3")
    a(f"s_cmp_{cmp}_u32 s46, {val}")
    a(f"s_cbranch_scc1 {lab}_OK")
    a(f"s_sleep {sleep}")
    a(f"s_branch {lab}")
    a.label(f"{lab}_OK")

def getnonce(a, lab):
    a(f"v_mov_b32 v2, {F_NC}")
    a.label(lab)
    a("ds_read_b64 v[4:5], v2")
    a("s_waitcnt lgkmcnt(0)")
    a(f"v_readfirstlane_b32 s{sNC}, v4")
    a(f"v_readfirstlane_b32 s{sNC+1}, v5")
    a(f"s_cmp_lg_u32 s{sNC}, 0")
    a(f"s_cbranch_scc1 {lab}_OK")
    a("s_sleep 1")
    a(f"s_branch {lab}")
    a.label(f"{lab}_OK")

def flag_store(a):
    a(f"v_mov_b32 v4, s{sNC}")
    a(f"v_mov_b32 v5, s{sNC+1}")
    a(f"buffer_store_dwordx2 v[4:5], v{vFO}, s[{SWS}:{SWS+3}], s99 offen sc1")

def publish(a, pfx):
    a("s_waitcnt vmcnt(0)")
    if not LNM[0] and not P.get("am"): mark(a, 10)
    a("s_mov_b64 exec, 1")
    a(f"v_mov_b32 v2, {F_PUB}")
    a("v_mov_b32 v3, 1")
    a("ds_add_rtn_u32 v4, v2, v3")
    a("s_waitcnt lgkmcnt(0)")
    a("v_readfirstlane_b32 s46, v4")
    a("s_cmp_eq_u32 s46, 1")
    a(f"s_cbranch_scc0 {pfx}_NOPUB")
    flag_store(a)
    a.label(f"{pfx}_NOPUB")
    a("s_mov_b64 exec, -1")

def mirror(a):
    a("s_or_b32 s74, s74, s96")
    a("s_mov_b64 exec, 1")
    a(f"v_mov_b32 v2, {F_MASK}")
    a("v_mov_b32 v3, s96")
    a("ds_or_b32 v2, v3")
    a("s_mov_b64 exec, -1")

def poll_once(a):
    a("s_mov_b32 exec_hi, 0")
    a(f"buffer_load_dwordx2 v[4:5], v{vFO}, s[{SWS}:{SWS+3}], s99 offen sc1")
    a("s_waitcnt vmcnt(0)")
    a(f"v_cmp_eq_u64 vcc, s[{sNC}:{sNC+1}], v[4:5]")
    a("s_mov_b32 exec_hi, -1")
    a("s_mov_b32 s96, vcc_lo")
    mirror(a)

def emit_y(a, dbg=False):
    sc1 = " sc1"
    srd(a, SX, KA_X, 2097152); srd(a, SQ, KA_WQKV, 512*1536*2)
    srd(a, SG, KA_WG, 512*1792*2); srd(a, SU, KA_WU, 512*1792*2)
    srd(a, SD, KA_WD, 1792*512*2); srd(a, SO, KA_WO, 512*512*2); srd(a, SWS, KA_WS, WS_BYTES)
    a(f"s_load_dwordx2 s[{SDBG}:{SDBG+1}], s[0:1], {KA_DBG}")
    a("s_mov_b32 s98, s2")
    ids(a)
    ln_addr_x(a)
    a("s_waitcnt lgkmcnt(0)")
    mark(a, 0)
    vq = Q(a, "vmcnt", 63); lq = Q(a, "lgkmcnt", 15)
    ln_loads(a, vq)
    a("s_barrier")
    ln_addr_rest(a)
    a(f"v_lshlrev_b32 v{vL16}, 4, v{vLn}")
    a(f"s_mul_i32 s21, s16, {SA}")
    a(f"s_add_u32 s21, s21, {L_AR}")
    a(f"s_mul_i32 s22, s16, {SGR}")
    a(f"s_add_u32 s22, s22, {L_GR - 4*SGR}")
    a("s_cmp_lt_u32 s16, 4")
    a(f"s_cselect_b32 s{sAREA}, s21, s22")
    lane_off8(a, vW8, 3072)
    lane_off8(a, vWm, 3584)
    a("s_add_u32 s21, s16, 1")
    a("s_cmp_eq_u32 s21, 3")
    a("s_cselect_b32 s21, 0, s21")
    a("s_lshl_b32 s29, s21, 10")
    a("s_lshl_b32 s21, s18, 7")
    a("s_add_u32 s29, s29, s21")
    a("s_lshr_b32 s21, s18, 1")
    a("s_mul_i32 s30, s21, 896")
    a("s_and_b32 s21, s18, 1")
    a("s_lshl_b32 s21, s21, 9")
    a("s_sub_u32 s22, s16, 4")
    a("s_lshl_b32 s22, s22, 7")
    a("s_add_u32 s21, s21, s22")
    a("s_cmp_eq_u32 s16, 7")
    a("s_cselect_b32 s21, 384, s21")
    a("s_add_u32 s30, s30, s21")
    tr_addr8(a, vT0, 10, f"s{sAREA}")
    if P["deep"]:
        a(f"s_mul_i32 s{sBOR}, s16, {SGR}")
        a(f"s_add_u32 s{sBOR}, s{sBOR}, {L_GR}")
        a(f"s_sub_u32 s21, s{sBOR}, s{sAREA}")
        a(f"v_add_u32 v{vTx}, s21, v{vT0}")
        a(f"v_add_u32 v{vTx+1}, s21, v{vT0+1}")
    a(f"v_add_u32 v2, s17, v{vLn}")
    a("v_and_b32 v2, 15, v2")
    a(f"v_xor_b32 v3, s17, v{vLn}")
    a("v_and_b32 v3, 16, v3")
    a(f"v_or_b32 v{vFO}, v2, v3")
    a(f"v_lshlrev_b32 v{vFO}, {P['fsh']}, v{vFO}")
    a("s_lshl_b32 s99, s18, 12")
    a(f"s_add_u32 s99, s99, {FL_OFF}")
    a("s_lshl_b32 s21, s17, 13")
    a(f"s_mul_i32 s22, s18, {4096 - (1 << P['fsh'])}")
    a("s_sub_u32 s21, s21, s22")
    a(f"s_add_u32 s21, s21, {FL2_OFF - FL_OFF + (56 << P['fsh'])}")
    a("v_mov_b32 v2, s21")
    a(f"v_cmp_lt_u32 vcc, 31, v{vLn}")
    a(f"v_cndmask_b32 v{vFO}, v{vFO}, v2, vcc")
    a("v_mov_b32 v2, 0")
    a(f"v_lshlrev_b32 v3, 2, v{vLn}")
    a(f"v_add_u32 v3, {L_FL}, v3")
    a("ds_write_b32 v3, v2")
    T0 = LNT + 24
    vqx = Q(Asm(), "vmcnt", 63)
    base = list(vq.order)
    a("s_cmp_ge_u32 s16, 4")
    a("s_cbranch_scc1 Y_EG")
    a("s_cmp_eq_u32 s16, 3")
    a("s_cbranch_scc1 Y_E3")
    for g in range(ring_of("W") - 1 + P["pdx"]): dma_step(a, vq, "W", g, ("w", g))
    ln_stats(a, vq)
    a("s_branch Y_PRIMED")
    a.label("Y_E3")
    vq.order, vq.done = list(base), 0
    a(f"v_and_b32 v2, 31, v{vLn}")
    a(f"v_mul_u32_u24 v{T0}, 3072, v2")
    a(f"v_lshrrev_b32 v2, 5, v{vLn}")
    a(f"v_lshl_add_u32 v{T0+1}, v2, 10, v{T0}")
    a("s_lshl_b32 s21, s19, 5")
    a("s_mul_i32 s48, s21, 3072")
    a("s_lshl_b32 s22, s18, 7")
    a("s_add_u32 s48, s48, s22")
    a(f"buffer_load_dword v{T0+2}, v{T0+1}, s[{SQ}:{SQ+3}], s48 offen offset:1024"); vq.issue("t")
    a("s_mov_b32 exec_hi, 0")
    a(f"buffer_load_dword v{T0+3}, v{T0}, s[{SQ}:{SQ+3}], s48 offen"); vq.issue("t")
    a("s_mov_b32 exec_hi, -1")
    a(f"v_lshrrev_b32 v2, 2, v{vLn}")
    a(f"v_and_b32 v3, 3, v{vLn}")
    a(f"v_mul_u32_u24 v{T0}, 3584, v2")
    a(f"v_lshl_add_u32 v{T0}, v3, 7, v{T0}")
    a("s_mul_i32 s47, s21, 3584")
    a("s_mul_i32 s22, s18, 448")
    a("s_add_u32 s47, s47, s22")
    a(f"s_add_u32 s48, s47, {16*3584}")
    ln_stats(a, vq)
    def gutouch():
        a(f"buffer_load_dword v{T0+4}, v{T0}, s[{SG}:{SG+3}], s47 offen")
        a(f"buffer_load_dword v{T0+5}, v{T0}, s[{SU}:{SU+3}], s47 offen")
        a(f"buffer_load_dword v{T0+6}, v{T0}, s[{SG}:{SG+3}], s48 offen")
        a(f"buffer_load_dword v{T0+7}, v{T0}, s[{SU}:{SU+3}], s48 offen")
    if P["gtouch"] == 0: gutouch()
    a("s_branch Y_PRIMED")
    a.label("Y_EG")
    vq.order, vq.done = list(base), 0
    a(f"v_lshlrev_b32 v{vFO}, {P['fsh']}, v{vLn}")
    a("s_lshl_b32 s99, s17, 13")
    a(f"s_add_u32 s99, s99, {FL2_OFF}")
    if P["gprime"] == 2:
        for g in range(GPD): gdma(a, vq, g)
        ln_stats(a, vq)
    else:
        ln_stats(a, vq)
    a("s_cmp_eq_u32 s98, 0")
    a("s_cbranch_scc0 Y_PRIMED")
    a("s_cmp_eq_u32 s16, 7")
    a("s_cbranch_scc0 Y_PRIMED")
    a("s_memrealtime s[46:47]")
    a("s_mov_b64 exec, 1")
    a("v_mov_b32 v2, 0")
    a("s_waitcnt lgkmcnt(0)")
    a("s_or_b32 s46, s46, 1")
    a("v_mov_b32 v4, s46")
    a("v_mov_b32 v5, s47")
    a(f"global_store_dwordx2 v2, v[4:5], s[{SDBG}:{SDBG+1}] sc0 sc1")
    a("s_mov_b64 exec, -1")
    a.label("Y_PRIMED")
    ln_norm(a, lq)
    a("s_waitcnt lgkmcnt(0)"); lq.known_all()
    if LNM[0]: mark(a, 11)
    a("s_barrier")
    mark(a, 1)
    def reset(nprimed):
        vq.order = [("w", g) for g in range(ring_of("W") - 1 + P["pdx"]) for _ in range(2)] if nprimed else []
        vq.done = 0
        lq.order, lq.done = [], 0
    a("s_cmp_ge_u32 s16, 4")
    a("s_cbranch_scc1 Y_G")
    a("s_cmp_eq_u32 s16, 1")
    a("s_cbranch_scc1 Y_V")
    a("s_cmp_eq_u32 s16, 2")
    a("s_cbranch_scc1 Y_Q")
    a("s_cmp_eq_u32 s16, 3")
    a("s_cbranch_scc1 Y_POLLER")
    TMP = 224
    def go_add():
        a("s_waitcnt lgkmcnt(0)")
        lds_add1(a, F_GO)
    def k_epilogue():
        a(f"v_add_u32 v5, s{sAREA}, v{vL16}")
        def lds_copy(cvt):
            for nt in range(2):
                for hh in range(2):
                    for mt in range(2):
                        acc = ACC + 16*(2*mt+nt) + 8*hh
                        rr = TMP + 4*((2*hh+mt) % 4) + 16*nt
                        if cvt:
                            for d in range(4): a(f"v_cvt_pk_bf16_f32 v{rr+d}, v{acc+2*d}, v{acc+2*d+1}")
                        a(f"ds_write_b128 v5, v[{rr}:{rr+3}] offset:{(2*nt+hh)*2048 + mt*1024}")
            go_add()
        if not P["epub"]: lds_copy(True)
        a("s_lshl_b32 s46, s18, 18")
        a("s_lshl_b32 s47, s17, 11")
        a("s_add_u32 s46, s46, s47")
        a(f"s_add_u32 s46, s46, {KF_OFF}")
        for nt in range(2):
            for hh in range(2):
                for mt in range(2):
                    rr = TMP + 4*((2*hh+mt) % 4) + 16*nt
                    if P["epub"]:
                        acc = ACC + 16*(2*mt+nt) + 8*hh
                        for d in range(4): a(f"v_cvt_pk_bf16_f32 v{rr+d}, v{acc+2*d}, v{acc+2*d+1}")
                    a(f"buffer_store_dwordx4 v[{rr}:{rr+3}], v{vL16}, s[{SWS}:{SWS+3}], s46 offen offset:{mt*1024}{sc1}"); vq.issue("st")
                a("s_add_u32 s46, s46, 65536")
        if P["epub"]: lds_copy(False)
        assert not P["dual"]
    def v_epilogue():
        a(f"v_lshrrev_b32 v2, 5, v{vLn}")
        a(f"v_lshlrev_b32 v3, 8, v2")
        a(f"v_and_b32 v2, 15, v{vLn}")
        a(f"v_lshl_add_u32 v3, v2, 4, v3")
        a(f"v_bfe_u32 v2, v{vLn}, 4, 1")
        a(f"v_lshl_add_u32 v5, v2, 11, v3")
        a(f"v_add_u32 v5, s{sAREA}, v5")
        a(f"v_lshl_add_u32 v6, v2, 16, v3")
        def lds_copy(cvt):
            for nt in range(2):
                for mt in range(2):
                    for g in range(2):
                        acc = ACC + 16*(2*mt+nt) + 8*g
                        rr = TMP + 4*((2*mt+g) % 4) + 16*nt
                        if cvt:
                            for d in range(4): a(f"v_cvt_pk_bf16_f32 v{rr+d}, v{acc+2*d}, v{acc+2*d+1}")
                        a(f"ds_write_b128 v5, v[{rr}:{rr+3}] offset:{nt*4096 + mt*1024 + g*512}")
            go_add()
        if not P["epub"]: lds_copy(True)
        a("s_lshl_b32 s46, s18, 18")
        a("s_lshl_b32 s47, s17, 11")
        a("s_add_u32 s46, s46, s47")
        a(f"s_add_u32 s46, s46, {VF_OFF}")
        for nt in range(2):
            for mt in range(2):
                for g in range(2):
                    rr = TMP + 4*((2*mt+g) % 4) + 16*nt
                    if P["epub"]:
                        acc = ACC + 16*(2*mt+nt) + 8*g
                        for d in range(4): a(f"v_cvt_pk_bf16_f32 v{rr+d}, v{acc+2*d}, v{acc+2*d+1}")
                    a(f"buffer_store_dwordx4 v[{rr}:{rr+3}], v6, s[{SWS}:{SWS+3}], s46 offen offset:{mt*1024+g*512}{sc1}"); vq.issue("st")
            a("s_add_u32 s46, s46, 131072")
        if P["epub"]: lds_copy(False)
    def gs_add():
        a("s_mov_b64 exec, 1")
        a(f"v_mov_b32 v2, {F_GS}")
        a("v_mov_b32 v3, 1")
        a("ds_add_u32 v2, v3"); lq.issue("gs")
        a("s_mov_b64 exec, -1")
    for kindc, lab, epi in (("W", "Y_K", k_epilogue), ("V", "Y_V", v_epilogue)):
        a.label(lab)
        reset(True)
        a(f"s_setprio {P['prio_kv']}")
        def hook_step(g, lab=lab):
            if P.get("km") and g in (0, 7, 15, 23): mark(a, {0: 8, 7: 9, 15: 10, 23: 11}[g])
            if P["deep"]:
                if g == P["gstart"]: gs_add()
            elif lab == "Y_K" and g == P["gstart"]:
                a(f"v_mov_b32 v2, {F_GS}")
                a("v_mov_b32 v3, 1")
                a("ds_write_b32 v2, v3"); lq.issue("gs")
            if lab == "Y_K" and P["qstart"] and g == P["qstart"]:
                a(f"v_mov_b32 v2, {F_QD}")
                a("v_mov_b32 v3, 1")
                a("ds_write_b32 v2, v3"); lq.issue("qs")
        unit_body(a, vq, lq, kindc, False, hook_step)
        if not LNM[0] and not P.get("am"): mark(a, 8)
        epi()
        if not LNM[0] and not P.get("am"): mark(a, 9)
        lds_add1(a, F_P1)
        mark(a, 2)
        if P["epub"]:
            getnonce(a, f"{lab}_NC")
            publish(a, f"{lab}_PB")
        a("s_branch Y_AWAIT")
    a.label("Y_Q")
    reset(True)
    a(f"s_setprio {P['prio_kv'] if not P['qstart'] else P.get('prio_q', 2)}")
    if P["qstart"]: lds_spin(a, "Y_QS", F_QD, 1, sleep=2)
    unit_body(a, vq, lq, "W", False, (lambda g: gs_add() if g == P["gstart"] else None) if P["deep"] else None)
    a("s_mov_b32 s31, 0x3eb8aa3b")
    a(f"v_add_u32 v2, {L_QO}, v{vL16}")
    for nt in range(2):
        for hh in range(2):
            for mt in range(2):
                acc = ACC + 16*(2*mt+nt) + 8*hh
                rr = TMP + 4*((2*hh+mt) % 4) + 16*nt
                for d in range(8): a(f"v_mul_f32 v{acc+d}, s31, v{acc+d}")
                for d in range(4): a(f"v_cvt_pk_bf16_f32 v{rr+d}, v{acc+2*d}, v{acc+2*d+1}")
                a(f"ds_write_b128 v2, v[{rr}:{rr+3}] offset:{((2*nt+hh)*2+mt)*1024}"); lq.issue("qw")
    a("s_waitcnt lgkmcnt(0)")
    lds_add1(a, F_P1)
    lds_add1(a, F_GO)
    mark(a, 2)
    a("s_branch Y_AWAIT")
    a.label("Y_POLLER")
    def nonce_fetch():
        a("s_mov_b32 s98, 0")
        a.label("Y_NF")
        if P.get("ncv"):
            a("v_mov_b32 v2, 0")
            a(f"global_load_dwordx2 v[4:5], v2, s[{SDBG}:{SDBG+1}] sc1")
            a("s_waitcnt vmcnt(0)")
            a(f"v_readfirstlane_b32 s{sNC}, v4")
            a(f"v_readfirstlane_b32 s{sNC+1}, v5")
        else:
            a(f"s_load_dwordx2 s[{sNC}:{sNC+1}], s[{SDBG}:{SDBG+1}], 0 glc")
            a("s_waitcnt lgkmcnt(0)")
        a(f"s_cmp_lg_u32 s{sNC}, 0")
        a("s_cbranch_scc1 Y_NF_OK")
        a("s_sleep 4")
        a("s_add_u32 s98, s98, 1")
        a("s_cmp_lt_u32 s98, 0x40000")
        a("s_cbranch_scc1 Y_NF")
        a(f"s_mov_b32 s{sNC}, 1")
        a.label("Y_NF_OK")
        a("s_mov_b64 exec, 1")
        a(f"v_mov_b32 v2, {F_NC}")
        a(f"v_mov_b32 v4, s{sNC}")
        a(f"v_mov_b32 v5, s{sNC+1}")
        a("ds_write_b64 v2, v[4:5]")
        a("s_mov_b64 exec, -1")
        mark(a, 8)
        if TS_ENABLE[0]: a("s_add_u32 s68, s82, s98")
    if P["gtouch"] == 2: gutouch()
    nonce_fetch()
    if P["gtouch"] == 1:
        gutouch()
        a("s_waitcnt vmcnt(0)")
    a.label("Y_AWAIT")
    a(f"s_setprio {P['prio_att']}")
    att_setup(a)
    getnonce(a, "Y_ANC")
    lds_spin(a, "Y_SPIN", F_GO, 3, sleep=P.get("sp_a", 1))
    mark(a, 3)
    emit_att(a, vq, lq, dbg)
    a("s_branch Y_END")
    a.label("Y_G")
    a(f"s_setprio {P['prio_g']}")
    vq.order, vq.done, lq.order, lq.done = [], 0, [], 0
    PDG = GPD
    if P["gprime"] == 2:
        vq.order = [("w", g) for g in range(PDG) for _ in range(4)]
    if P["gprime"] == 1:
        for g in range(PDG): gdma(a, vq, g)
    a("s_and_b32 s22, s18, 1")
    a("s_sub_u32 s21, s16, 4")
    a("s_lshl_b32 s21, s21, 1")
    a("s_add_u32 s21, s21, s22")
    a("s_cmp_eq_u32 s22, 1")
    a("s_cselect_b32 s47, 0, 6")
    a("s_lshl_b32 s22, s22, 6")
    a("s_cmp_eq_u32 s16, 7")
    a("s_cselect_b32 s21, s47, s21")
    a("s_cselect_b32 s22, s22, 0")
    a(f"v_xor_b32 v{vT0}, s22, v{vT0}")
    a("s_lshl_b32 s48, s17, 3")
    a("s_add_u32 s48, s48, s18")
    a("s_mul_i32 s48, s48, 28672")
    a("s_lshl_b32 s22, s21, 12")
    a("s_add_u32 s48, s48, s22")
    a(f"s_add_u32 s48, s48, {HF_OFF}")
    a("s_mul_i32 s49, s18, 7")
    a("s_add_u32 s49, s49, s21")
    a("s_cmp_eq_u32 s16, 7")
    a("s_cselect_b32 s73, 1, 3")
    a("s_cselect_b32 s72, 1, 2")
    def stouch(nowait=False):
        a("s_mul_i32 s21, s19, 114688")
        a("s_sub_u32 s47, s16, 4")
        a("s_mul_i32 s22, s47, 28672")
        a("s_add_u32 s21, s21, s22")
        a("s_lshl_b32 s22, s18, 7")
        a("s_add_u32 s21, s21, s22")
        a(f"s_add_u32 s46, s{SD}, s21")
        a(f"s_addc_u32 s47, s{SD+1}, 0")
        for o in range(0, P.get("nwd", 28)*1024, 1024): a(f"s_load_dword s{20 if nowait else 21}, s[46:47], {o}")
        if not nowait: a("s_waitcnt lgkmcnt(0)")
        a("s_lshl_b32 s21, s19, 15")
        a("s_sub_u32 s47, s16, 4")
        a("s_lshl_b32 s22, s47, 13")
        a("s_add_u32 s21, s21, s22")
        a("s_lshl_b32 s22, s18, 7")
        a("s_add_u32 s21, s21, s22")
        a(f"s_add_u32 s46, s{SO}, s21")
        a(f"s_addc_u32 s47, s{SO+1}, 0")
        for o in range(0, 8*1024, 1024): a(f"s_load_dword s{20 if nowait else 21}, s[46:47], {o}")
        if not nowait: a("s_waitcnt lgkmcnt(0)")
        a("s_cmp_eq_u32 s16, 7")
    def gstouch():
        a("s_lshl_b32 s21, s19, 5")
        a("s_sub_u32 s22, s16, 4")
        a("s_lshl_b32 s22, s22, 3")
        a("s_add_u32 s21, s21, s22")
        a("s_mul_i32 s21, s21, 3584")
        a("s_mul_i32 s22, s18, 448")
        a("s_add_u32 s21, s21, s22")
        for srd_ in (SG, SU):
            a(f"s_add_u32 s46, s{srd_}, s21")
            a(f"s_addc_u32 s47, s{srd_+1}, 0")
            for r in range(8):
                for l in range(4): a(f"s_load_dword s22, s[46:47], {r*3584 + l*128}")
        a("s_waitcnt lgkmcnt(0)")
    if P["gtouch"] == 3: gstouch()
    if P["stouch"] == 1: stouch()
    if P["gwait"]:
        if P.get("w7free"):
            a("s_cmp_eq_u32 s16, 7")
            a("s_cbranch_scc1 Y_GW_OK")
        lds_spin(a, "Y_GW", F_GS, 3 if P["deep"] else 1, sleep=P.get("sp_g", 1))
    if P["gprime"] == 0:
        for g in range(PDG): gdma(a, vq, g)
    mark(a, 8)
    def hpublish():
        a("s_mov_b32 s46, s73")
        a("s_mov_b32 s47, 0")
        a("s_lshl_b64 s[46:47], s[46:47], s49")
        a("s_mov_b64 exec, s[46:47]")
        flag_store(a); vq.issue("fl")
        a("s_mov_b64 exec, -1")
    sv = (list(vq.order), vq.done)
    a("s_cmp_eq_u32 s16, 7")
    a("s_cbranch_scc1 Y_G1")
    gunit(a, vq, lq, 2)
    mark(a, 10)
    if P["stouch"] == 4: stouch(True)
    gepilogue(a, vq, 2)
    mark(a, 9)
    a("s_branch Y_GDONE")
    a.label("Y_G1")
    vq.order, vq.done = sv
    lq.order, lq.done = [], 0
    gunit(a, vq, lq, 1)
    mark(a, 10)
    if P["stouch"] == 4: stouch(True)
    gepilogue(a, vq, 1)
    mark(a, 9)
    a.label("Y_GDONE")
    lds_add1(a, F_P1)
    SOUT = SQ
    a(f"s_load_dwordx2 s[{SOUT}:{SOUT+1}], s[0:1], {KA_OUT}")
    a(f"s_mov_b32 s{SOUT+2}, 2097152")
    getnonce(a, "Y_GNC")
    a("s_waitcnt vmcnt(0) lgkmcnt(0)")
    hpublish()
    gmark(a, 2)
    if P["stouch"] == 2: stouch()
    if P["stouch"] == 3: stouch(True)
    vq.order, vq.done, lq.order, lq.done = [], 0, [], 0
    lane_off8(a, vW8, 1024)
    tr_addr8(a, vT0, 9, f"s{sAREA}")
    a("s_sub_u32 s21, s16, 4")
    a("s_lshr_b32 s76, s21, 1")
    a("s_and_b32 s77, s21, 1")
    a("s_lshl_b32 s22, s77, 6")
    a(f"v_xor_b32 v{vT0}, s22, v{vT0}")
    a(f"v_xor_b32 v{vT0+1}, s22, v{vT0+1}")
    a("s_lshl_b32 s79, s21, 14")
    a(f"s_sub_u32 s22, s79, s{sAREA}")
    a(f"v_add_u32 v{vTx}, s22, v{vT0}")
    a(f"v_add_u32 v{vTx+1}, s22, v{vT0+1}")
    a("s_mul_i32 s29, s21, 458752")
    a("s_lshl_b32 s22, s18, 7")
    a("s_add_u32 s29, s29, s22")
    a("s_lshl_b32 s30, s17, 3")
    a("s_lshl_b32 s22, s21, 1")
    a("s_add_u32 s30, s30, s22")
    a("s_mul_i32 s30, s30, 28672")
    a(f"s_add_u32 s30, s30, {HF_OFF}")
    a("s_lshl_b32 s22, s76, 11")
    a("s_add_u32 s48, s30, s22")
    a("s_xor_b32 s22, s22, 2048")
    a("s_add_u32 s49, s30, s22")
    KS = [(c, u, q) for c in range(2) for u in range(7) for q in range(2)]
    NK = len(KS)
    NOWN = RINGG - 4
    DSLOT = [("o", 2048*i) for i in range(NOWN)] + [("x", 2048*i) for i in range(8)]
    NS = len(DSLOT)
    LW, LH = P["lw"], P["lh"]
    HR = LH + 1
    DACC, DFR, HB, PV = 64, 128, 144, 6
    assert HB + 8*HR <= 256 and LW < NS
    def ddma(t):
        c, u, q = KS[t]
        reg, off = DSLOT[t % NS]
        b = sAREA if reg == "o" else 79
        for i in range(2):
            a(f"s_add_u32 s31, s29, {(c*224 + u*32 + q*16 + 8*i)*1024}")
            a(f"s_add_u32 m0, s{b}, {off + 1024*i}")
            if P.get("nowd"): a("s_nop 0")
            else: a(f"buffer_load_dwordx4 v{vW8}, s[{SD}:{SD+3}], s31 offen lds")
            vq.issue(("d", t))
    def hload(t):
        c, u, q = KS[t]
        r = HB + 8*(t % HR)
        for m in range(2):
            a(f"s_add_u32 s31, s{48+m}, {c*28672 + u*4096 + q*1024}")
            if P.get("nohl"): a("s_nop 0")
            else: a(f"buffer_load_dwordx4 v[{r+4*m}:{r+4*m+3}], v{vL16}, s[{SWS}:{SWS+3}], s31 offen{S1('h1')}")
            vq.issue(("h", t))
    def dtr(t):
        reg, off = DSLOT[t % NS]
        v = vT0 if reg == "o" else vTx
        f = DFR + 8*(t % 2)
        for nt in range(2):
            a(f"ds_read_b64_tr_b16 v[{f+4*nt}:{f+4*nt+1}], v{v+nt} offset:{off}"); lq.issue(("f", t))
            a(f"ds_read_b64_tr_b16 v[{f+4*nt+2}:{f+4*nt+3}], v{v+nt} offset:{off+1024}"); lq.issue(("f", t))
    def dmm(t, m, n):
        a(mfma(DACC + 16*(2*m + n), DFR + 8*(t % 2) + 4*n, HB + 8*(t % HR) + 4*m, "0" if t == 0 else DACC + 16*(2*m + n)))
    def pollwait(pfx, sleep):
        a("s_mov_b32 s98, 0")
        a.label(f"{pfx}_C")
        a("s_and_b64 s[46:47], s[96:97], s[74:75]")
        a("s_cmp_eq_u64 s[46:47], s[74:75]")
        a(f"s_cbranch_scc1 {pfx}_D")
        if sleep: a(f"s_sleep {sleep}")
        a("s_mov_b64 exec, s[74:75]")
        a(f"buffer_load_dwordx2 v[{PV}:{PV+1}], v{vFO}, s[{SWS}:{SWS+3}], s99 offen sc1")
        a("s_waitcnt vmcnt(0)")
        a(f"v_cmp_eq_u64 vcc, s[{sNC}:{sNC+1}], v[{PV}:{PV+1}]")
        a("s_mov_b64 exec, -1")
        a("s_or_b64 s[96:97], s[96:97], vcc")
        a("s_add_u32 s98, s98, 1")
        a("s_cmp_lt_u32 s98, 0x40000")
        a(f"s_cbranch_scc1 {pfx}_C")
        a.label(f"{pfx}_D")
    for t in range(NOWN): ddma(t)
    a("s_mul_i32 s22, s21, 14")
    a("s_mov_b64 s[96:97], 0")
    a("s_mov_b32 s74, 0x3fff")
    a("s_mov_b32 s75, 0")
    a("s_lshl_b64 s[74:75], s[74:75], s22")
    if P.get("p1late") == 2:
        lds_spin(a, "Y_GS", F_P1, 7, sleep=P.get("sp_s", 2))
        for t in range(NOWN, LW): ddma(t)
        pollwait("Y_P1", P["hsleep"])
        gmark(a, 3)
        for t in range(LH): hload(t)
    elif P.get("p1late"):
        lds_spin(a, "Y_GS", F_P1, 7, sleep=4)
        gmark(a, 3)
        pollwait("Y_P1", P["hsleep"])
        for t in range(LH): hload(t)
    else:
        pollwait("Y_P1", P["hsleep"])
        for t in range(LH): hload(t)
        lds_spin(a, "Y_GS", F_P1, 7)
        gmark(a, 3)
    if P.get("p1late") != 2:
        for t in range(NOWN, LW): ddma(t)
    a(f"s_setprio {P['prio_d']}")
    vq.wait(("d", 0))
    dtr(0)
    for t in range(NK):
        nx = t + 1 < NK
        lq.wait(("f", t))
        vq.wait(("h", t))
        dmm(t, 0, 0)
        if nx:
            vq.wait(("d", t+1)); dtr(t+1)
        dmm(t, 0, 1)
        if t + LW < NK: ddma(t + LW)
        dmm(t, 1, 0)
        dmm(t, 1, 1)
        if t + LH < NK: hload(t + LH)
    gmark(a, 4)
    a("s_lshl_b32 s30, s77, 1")
    a("s_add_u32 s30, s30, s76")
    a("s_lshl_b32 s30, s30, 17")
    a("s_lshl_b32 s31, s18, 7")
    a("s_add_u32 s30, s30, s31")
    for i in range(16):
        a(f"s_add_u32 m0, s79, {1024*i}")
        a(f"buffer_load_dwordx4 v{vW8}, s[{SO}:{SO+3}], s30 offen lds")
        a("s_add_u32 s30, s30, 8192")
    XR = 24
    vXO = 3
    a(f"v_and_b32 v{vXO}, 31, v{vLn}")
    a(f"v_lshlrev_b32 v{vXO}, 10, v{vXO}")
    a(f"v_lshrrev_b32 v4, 5, v{vLn}")
    a(f"v_lshl_add_u32 v{vXO}, v4, 4, v{vXO}")
    a("s_lshl_b32 s78, s17, 16")
    a("s_lshl_b32 s47, s76, 15")
    a("s_add_u32 s78, s78, s47")
    a("s_lshl_b32 s47, s18, 7")
    a("s_add_u32 s78, s78, s47")
    a("s_lshl_b32 s47, s77, 6")
    a("s_add_u32 s78, s78, s47")
    a(f"v_mov_b32 v{vTx}, v{vXO}")
    vXO = vTx
    for q in range(2):
        a(f"buffer_load_dwordx4 v[{XR+4*q}:{XR+4*q+3}], v{vXO}, s[{SX}:{SX+3}], s78 offen offset:{32*q}")
    AO, AP = 32, 48
    for jj in range(1, 4):
        a(f"s_xor_b32 s46, s21, {jj}")
        if jj < 3:
            a(f"s_mul_i32 s46, s46, {SGR}")
            a(f"s_add_u32 s46, s46, {L_GR + SGR - 8192 + (jj-1)*4096}")
        else:
            a("s_lshl_b32 s46, s46, 12")
            a(f"s_add_u32 s46, s46, {L_AR}")
        a(f"v_add_u32 v2, s46, v{vL16}")
        for r4 in range(4):
            r = DACC + 16*jj + 4*r4
            a(f"ds_write_b128 v2, v[{r}:{r+3}] offset:{1024*r4}")
    a("s_waitcnt vmcnt(0) lgkmcnt(0)")
    lds_add1(a, F_PP)
    lds_spin(a, "Y_GPP", F_PP, 4)
    gmark(a, 5)
    a(f"s_mul_i32 s46, s21, {SGR}")
    a(f"s_add_u32 s46, s46, {L_GR + SGR - 8192}")
    a(f"v_add_u32 v2, s46, v{vL16}")
    a("s_lshl_b32 s46, s21, 12")
    a(f"s_add_u32 s46, s46, {L_AR}")
    a(f"v_add_u32 v3, s46, v{vL16}")
    for jj in range(3):
        for r4 in range(4):
            r = 80 + 16*jj + 4*r4
            if jj < 2: a(f"ds_read_b128 v[{r}:{r+3}], v2 offset:{4096*jj + 1024*r4}")
            else: a(f"ds_read_b128 v[{r}:{r+3}], v3 offset:{1024*r4}")
    a("s_waitcnt lgkmcnt(0)")
    for r in range(16):
        a(f"v_add_f32 v{AO+r}, v{DACC+r}, v{80+r}")
        a(f"v_add_f32 v{96+r}, v{96+r}, v{112+r}")
    for r in range(16):
        a(f"v_add_f32 v{AO+r}, v{AO+r}, v{96+r}")
        a(f"v_mov_b32 v{AP+r}, 0")
    WF = 128
    a(f"s_lshl_b32 s47, s77, 14")
    a(f"s_add_u32 s47, s47, {L_X}")
    tr_addr8(a, vT0, 9, "s47")
    for ks in range(16):
        off = (ks >> 3)*32768 + (ks & 7)*2048
        for nt in range(2):
            f = WF + 8*ks + 4*nt
            a(f"ds_read_b64_tr_b16 v[{f}:{f+1}], v{vT0+nt} offset:{off}")
            a(f"ds_read_b64_tr_b16 v[{f+2}:{f+3}], v{vT0+nt} offset:{off+1024}")
    a("s_waitcnt lgkmcnt(0)")
    gmark(a, 6)
    lds_spin(a, "Y_GOC", F_OC, 4, sleep=2)
    a("s_lshl_b32 s75, s77, 2")
    a("s_add_u32 s75, s75, 24")
    a("s_lshl_b32 s75, 15, s75")
    a("s_mov_b32 s74, 0")
    a("s_mov_b64 s[96:97], 0")
    pollwait("Y_PO", P["osleep"])
    gmark(a, 7)
    a("s_lshl_b32 s46, s17, 1")
    a("s_add_u32 s46, s46, s76")
    a("s_lshl_b32 s46, s46, 15")
    a("s_lshl_b32 s47, s77, 14")
    a("s_add_u32 s46, s46, s47")
    a(f"s_add_u32 s46, s46, {OF_OFF}")
    OFR = 64
    vq.order, vq.done = [], 0
    for ks in range(16):
        a(f"buffer_load_dwordx4 v[{OFR+4*ks}:{OFR+4*ks+3}], v{vL16}, s[{SWS}:{SWS+3}], s46 offen offset:{1024*(ks%4)}{S1('o1')}"); vq.issue(("o", ks))
        if ks % 4 == 3 and ks < 15: a("s_add_u32 s46, s46, 4096")
    a("s_cmp_eq_u32 s77, 0")
    a("s_cbranch_scc0 Y_OK1")
    for kh in range(2):
        if kh == 1: a.label("Y_OK1")
        sv = (list(vq.order), vq.done)
        for ks in range(16):
            vq.wait(("o", ks))
            a(mfma(AP, WF + 8*ks + 4*(1-kh), OFR + 4*ks, AP))
            a(mfma(AO, WF + 8*ks + 4*kh, OFR + 4*ks, AO))
        if kh == 0:
            a("s_branch Y_OK2")
            vq.order, vq.done = sv
    a.label("Y_OK2")
    gmark(a, 11)
    a("s_sub_u32 s21, s16, 4")
    a(f"s_mul_i32 s46, s21, {SGR}")
    a(f"s_add_u32 s46, s46, {L_GR}")
    a(f"v_add_u32 v2, s46, v{vL16}")
    a("s_nop 7")
    for r4 in range(4):
        a(f"ds_write_b128 v2, v[{AP+4*r4}:{AP+4*r4+3}] offset:{1024*r4}")
    a("s_waitcnt lgkmcnt(0)")
    a("s_lshl_b32 s47, s76, 2")
    a(f"s_add_u32 s47, s47, {F_X0}")
    a("s_mov_b64 exec, 1")
    a("v_mov_b32 v4, s47")
    a("v_mov_b32 v5, 1")
    a("ds_add_u32 v4, v5")
    a("s_mov_b64 exec, -1")
    a("v_mov_b32 v4, s47")
    a.label("Y_XS")
    a("ds_read_b32 v5, v4")
    a("s_waitcnt lgkmcnt(0)")
    a("v_readfirstlane_b32 s46, v5")
    a("s_cmp_ge_u32 s46, 2")
    a("s_cbranch_scc0 Y_XS")
    a("s_xor_b32 s21, s21, 1")
    a(f"s_mul_i32 s46, s21, {SGR}")
    a(f"s_add_u32 s46, s46, {L_GR}")
    a(f"v_add_u32 v2, s46, v{vL16}")
    for r4 in range(4):
        a(f"ds_read_b128 v[{AP+4*r4}:{AP+4*r4+3}], v2 offset:{1024*r4}")
    a("s_waitcnt lgkmcnt(0)")
    for r in range(16): a(f"v_add_f32 v{AO+r}, v{AO+r}, v{AP+r}")
    for q in range(2):
        for d in range(4): a(f"v_permlane32_swap_b32 v{AO+8*q+d}, v{AO+8*q+4+d}")
    for q in range(2):
        for d in range(4):
            a(f"v_lshlrev_b32 v4, 16, v{XR+4*q+d}")
            a(f"v_and_b32 v5, 0xffff0000, v{XR+4*q+d}")
            a(f"v_add_f32 v{AO+8*q+2*d}, v{AO+8*q+2*d}, v4")
            a(f"v_add_f32 v{AO+8*q+2*d+1}, v{AO+8*q+2*d+1}, v5")
        for d in range(4): a(f"v_cvt_pk_bf16_f32 v{AP+4*q+d}, v{AO+8*q+2*d}, v{AO+8*q+2*d+1}")
        a(f"buffer_store_dwordx4 v[{AP+4*q}:{AP+4*q+3}], v{vXO}, s[{SOUT}:{SOUT+3}], s78 offen offset:{32*q}{OST()}")

def att_setup(a):
    R = P["kvr"]; KR = 136; VR = KR + 4*R
    if P["rdl"]:
        assert P["fsh"] == 7 and P["srd2"]
        a(f"v_lshlrev_b32 v{vSN}, 4, v{vFO}")
    a(f"v_lshrrev_b32 v2, 5, v{vLn}")
    a(f"v_lshlrev_b32 v{vVo}, 8, v2")
    a(f"v_and_b32 v2, 15, v{vLn}")
    a(f"v_lshl_add_u32 v{vVo}, v2, 4, v{vVo}")
    a(f"v_and_b32 v2, 27, v{vLn}")
    a(f"v_mov_b32 v{VR}, 0x3f803f80")
    a("v_cmp_eq_u32 vcc, 16, v2")
    a(f"v_cndmask_b32 v{VR}, 0, v{VR}, vcc")
    for r in range(1, 8*R): a(f"v_mov_b32 v{VR+r}, v{VR}")

def emit_att(a, vq, lq, dbg):
    pfx = "AT"
    R = P["kvr"]; LA = R - 1
    Qf = [24, 28]; NEG = [32, 48]; S = [64, 80]; O = [96, 112]; Pp = 128; KR = 136; VR = KR + 4*R; T = VR + 8*R
    assert T + 2 <= 256
    NIT = 64 // R
    a("s_mov_b32 s19, s16")
    a("s_lshl_b32 s21, s18, 2")
    a("s_add_u32 s21, s21, s19")
    a("s_lshl_b32 s21, s21, 16")
    a(f"s_add_u32 s21, s21, {KF_OFF}")
    a("s_lshl_b32 s22, s17, 11")
    a("s_mov_b32 s74, 1")
    a("s_mov_b32 s75, 1")
    a("s_mov_b32 s76, 0x0000ffff")
    a("s_mov_b32 s77, 0x0000ffff")
    vq.order, vq.done, lq.order, lq.done = [], 0, [], 0
    refresh = []
    SK, SV = (SG, SU) if P["srd2"] else (SWS, SWS)
    if P["srd2"]:
        for sx, off in ((SK, 0), (SV, VF_OFF - KF_OFF)):
            a(f"s_add_u32 s46, s21, {off}")
            a(f"s_add_u32 s{sx}, s{SWS}, s46")
            a(f"s_addc_u32 s{sx+1}, s{SWS+1}, 0")
            a(f"s_mov_b32 s{sx+2}, 131072")
            a(f"s_mov_b32 s{sx+3}, 0x00020000")
    def kvitems(t, site, part=None):
        it = []
        I = lambda x: it.append(lambda: a(x))
        if part == "V": pass
        elif t % 2 == 0:
            I("s_andn2_b32 s96, s74, s75")
            def br():
                a(f"s_cbranch_scc0 {pfx}_RF{site}")
                a.label(f"{pfx}_BK{site}")
            it.append(br)
            I("s_ff1_i32_b32 s96, s96")
            if P["rdl"]:
                I(f"v_readlane_b32 s23, v{vSN}, s96")
                I("s_bitset1_b32 s75, s96")
                if P["ilv"]: I("s_nop 0"); I("s_nop 0"); it[-1] = it[-2] = (lambda: None)
                else: I("s_nop 3")
            else:
                I("s_bitset1_b32 s75, s96")
                I("s_add_u32 s23, s96, s17")
                I("s_and_b32 s23, s23, 15")
                I("s_xor_b32 s96, s96, s17")
                I("s_and_b32 s96, s96, 16")
                I("s_or_b32 s23, s23, s96")
                I("s_lshl_b32 s23, s23, 11")
            refresh.append(site)
        else:
            I("s_add_u32 s23, s23, 1024")
        so = 23 if P["srd2"] else 46
        if not P["srd2"]: I("s_add_u32 s46, s21, s23")
        def kl():
            a(f"buffer_load_dwordx4 v[{KR+4*(t%R)}:{KR+4*(t%R)+3}], v{vL16}, s[{SK}:{SK+3}], s{so} offen{S1('kv1')}"); vq.issue(("K", t))
        if part != "V": it.append(kl)
        if part == "K": return it
        if part == "V": it = []
        sv = 23 if P["srd2"] else 47
        if not P["srd2"]: I(f"s_add_u32 s47, s46, {VF_OFF-KF_OFF}")
        def vl():
            a("s_mov_b64 exec, s[76:77]")
            r = VR + 8*(t % R)
            a(f"buffer_load_dwordx4 v[{r}:{r+3}], v{vVo}, s[{SV}:{SV+3}], s{sv} offen{S1('kv1')}"); vq.issue(("V", t))
            a(f"buffer_load_dwordx4 v[{r+4}:{r+7}], v{vVo}, s[{SV}:{SV+3}], s{sv} offen offset:512{S1('kv1')}"); vq.issue(("V", t))
            a("s_mov_b64 exec, -1")
        it.append(vl)
        return it
    def kvload(t, site):
        for f in kvitems(t, site): f()
    def emit_refresh(site):
        a.label(f"{pfx}_RF{site}")
        a("s_mov_b32 s98, 0")
        a.label(f"{pfx}_RL{site}")
        a(f"v_mov_b32 v2, {F_MASK}")
        a("ds_read_b32 v3, v2")
        a("s_waitcnt lgkmcnt(0)")
        a("v_readfirstlane_b32 s96, v3")
        a("s_or_b32 s74, s74, s96")
        a("s_andn2_b32 s96, s74, s75")
        a(f"s_cbranch_scc1 {pfx}_BK{site}")
        if P["lock"]:
            a("s_mov_b64 exec, 1")
            a(f"v_mov_b32 v2, {F_LK}")
            a("v_mov_b32 v3, 1")
            a("ds_wrxchg_rtn_b32 v4, v2, v3")
            a("s_waitcnt lgkmcnt(0)")
            a("v_readfirstlane_b32 s96, v4")
            a("s_mov_b64 exec, -1")
            a("s_cmp_eq_u32 s96, 0")
            a(f"s_cbranch_scc1 {pfx}_RG{site}")
            a(f"s_sleep {P['lsleep']}")
            a(f"s_branch {pfx}_RC{site}")
            a.label(f"{pfx}_RG{site}")
        poll_once(a)
        if P["lock"]:
            if P["lock"] == 2:
                a("s_andn2_b32 s96, s74, s75")
                a(f"s_cbranch_scc1 {pfx}_RR{site}")
                a(f"s_sleep {P['rsleep']}")
                a.label(f"{pfx}_RR{site}")
            a("s_mov_b64 exec, 1")
            a(f"v_mov_b32 v2, {F_LK}")
            a("v_mov_b32 v3, 0")
            a("ds_write_b32 v2, v3")
            a("s_mov_b64 exec, -1")
        if TS_ENABLE[0]: a("s_add_u32 s64, s64, 1")
        a("s_andn2_b32 s96, s74, s75")
        a(f"s_cbranch_scc1 {pfx}_BK{site}")
        if P["lock"] != 2: a(f"s_sleep {P['rsleep']}")
        a.label(f"{pfx}_RC{site}")
        a("s_add_u32 s98, s98, 1")
        a("s_cmp_lt_u32 s98, 0x40000")
        a(f"s_cbranch_scc1 {pfx}_RL{site}")
        a("s_not_b32 s96, s75")
        a(f"s_branch {pfx}_BK{site}")
    if TS_ENABLE[0]: a("s_mov_b32 s64, s82")
    a("s_lshl_b32 s46, s19, 11")
    a(f"s_add_u32 s47, s46, {L_QO}")
    a(f"v_add_u32 v2, s47, v{vL16}")
    a(f"ds_read_b128 v[{Qf[0]}:{Qf[0]+3}], v2")
    a(f"ds_read_b128 v[{Qf[1]}:{Qf[1]+3}], v2 offset:1024")
    a(f"s_add_u32 s47, s46, {L_AR}")
    a(f"v_add_u32 v2, s47, v{vL16}")
    a(f"ds_read_b128 v[{KR}:{KR+3}], v2")
    a(f"ds_read_b128 v[{KR+4}:{KR+7}], v2 offset:1024")
    a(f"s_add_u32 s47, s46, {L_AR + SA}")
    a(f"v_add_u32 v2, s47, v{vVo}")
    a("s_mov_b64 exec, s[76:77]")
    for t in range(2):
        a(f"ds_read_b128 v[{VR+8*t}:{VR+8*t+3}], v2 offset:{1024*t}")
        a(f"ds_read_b128 v[{VR+8*t+4}:{VR+8*t+7}], v2 offset:{1024*t+512}")
    a("s_mov_b64 exec, -1")
    for q in range(2):
        for r in range(16): a(f"v_mov_b32 v{O[q]+r}, 0")
    a("s_waitcnt lgkmcnt(0)")
    m = T
    for q in range(2):
        a(mfma(S[0], KR, Qf[q], "0"))
        a(mfma(S[1], KR+4, Qf[q], "0"))
        a(f"v_max3_f32 v{m}, v{S[0]}, v{S[0]+1}, v{S[0]+2}")
        for r in range(3, 15, 2):
            a(f"v_max3_f32 v{m}, v{m}, v{S[0]+r}, v{S[0]+r+1}")
        a(f"v_max3_f32 v{m}, v{m}, v{S[0]+15}, v{S[1]}")
        for r in range(1, 15, 2):
            a(f"v_max3_f32 v{m}, v{m}, v{S[1]+r}, v{S[1]+r+1}")
        a(f"v_max_f32 v{m}, v{m}, v{S[1]+15}")
        a(f"v_mov_b32 v{m+1}, v{m}")
        a(f"v_permlane32_swap_b32 v{m}, v{m+1}")
        a(f"v_max_f32 v{m}, v{m}, v{m+1}")
        a(f"v_add_f32 v{m}, {hexf(ATT_OFFSET)}, v{m}")
        a(f"v_sub_f32 v{NEG[q]}, 0, v{m}")
        for r in range(1, 16): a(f"v_mov_b32 v{NEG[q]+r}, v{NEG[q]}")
    for r in range(4 if P["sched"] == 1 else 0, 8): a(f"v_mov_b32 v{Pp+r}, 0")
    if not P.get("am"): mark(a, 11)
    if not P["epub"]:
        a("s_cmp_lt_u32 s16, 2")
        a(f"s_cbranch_scc0 {pfx}_NP")
        publish(a, "KVP")
        a.label(f"{pfx}_NP")
    for t in range(2, LA): kvload(t, f'P{t}')
    if P["kah"]:
        assert P["srd2"] and P["ilv"] and P["sched"] == 2
        for f in kvitems(LA, f'P{LA}', "K"): f()
    a(mfma(S[0], KR, Qf[0], NEG[0]))
    a("s_mov_b32 s26, 0")
    a("s_nop 7")
    mark(a, 4)
    E = lambda r: a(f"v_exp_f32 v{r}, v{r}")
    C = lambda d, r: a(f"v_cvt_pk_bf16_f32 v{d}, v{r}, v{r+1}")
    entry = [("V", 0), ("V", 0)] + [x for i in range(1, LA) for x in (("K", i), ("V", i), ("V", i))]
    if P["kah"]: entry = entry + [("K", LA)]
    def body(last):
        vq.order = list(entry); vq.done = 0
        for t in range(R):
            for q in range(2):
                Sa = S[q]; Sb = S[1-q]
                def QK():
                    if q == 0:
                        a(mfma(Sb, KR + 4*(t % R), Qf[1], NEG[1]))
                    elif not (last and t == R-1):
                        vq.wait(("K", t+1))
                        a(mfma(Sb, KR + 4*((t+1) % R), Qf[0], NEG[0]))
                def KVL():
                    if q == 0 and (not last or t + LA < R): kvload(t + LA, f'{"Z" if last else "L"}{t}')
                tp = t if q == 1 else t - 1
                if P["sched"] == 1:
                    QK()
                    E(Sa+0); E(Sa+1); E(Sa+2); E(Sa+3)
                    C(Pp+0, Sa+0); E(Sa+4); C(Pp+1, Sa+2); E(Sa+5); E(Sa+6); E(Sa+7)
                    a(mfma(O[1-q], VR + 8*(tp % R) + 4, Pp+4, O[1-q]))
                    KVL()
                    E(Sa+8); C(Pp+2, Sa+4); E(Sa+9); C(Pp+3, Sa+6); E(Sa+10); E(Sa+11)
                    E(Sa+12); C(Pp+4, Sa+8)
                    if q == 0: vq.wait(("V", t))
                    a(mfma(O[q], VR + 8*(t % R), Pp, O[q]))
                    E(Sa+13); C(Pp+5, Sa+10); E(Sa+14); E(Sa+15)
                    C(Pp+6, Sa+12); C(Pp+7, Sa+14)
                else:
                    if q == 1: vq.wait(("V", t))
                    if P["ptog"]: a(f"s_setprio {P['phi']}")
                    a(mfma(O[1-q], VR + 8*(tp % R), Pp, O[1-q]))
                    E(Sa+0); E(Sa+1); E(Sa+2)
                    a(mfma(O[1-q], VR + 8*(tp % R) + 4, Pp+4, O[1-q]))
                    E(Sa+3); E(Sa+4); E(Sa+5)
                    QK()
                    if P["ptog"]: a(f"s_setprio {P['prio_att']}")
                    if P["ilv"]:
                        its = []
                        if q == 0 and not P["kah"]:
                            if not last or t + LA < R: its = kvitems(t + LA, f'{"Z" if last else "L"}{t}')
                        elif q == 0:
                            if not last or t + LA < R: its += kvitems(t + LA, None, "V")
                            if not last or t + LA + 1 < R: its += kvitems(t + LA + 1, f'{"Z" if last else "L"}{t}', "K")
                        per = P["ilv"]
                        def EE(r):
                            E(r)
                            for _ in range(per):
                                if its: its.pop(0)()
                        EE(Sa+6); C(Pp+0, Sa+0); EE(Sa+7); C(Pp+1, Sa+2); EE(Sa+8); C(Pp+2, Sa+4); EE(Sa+9)
                        EE(Sa+10); C(Pp+3, Sa+6); EE(Sa+11); C(Pp+4, Sa+8); EE(Sa+12); EE(Sa+13); C(Pp+5, Sa+10); EE(Sa+14)
                        while its: its.pop(0)()
                        E(Sa+15)
                        C(Pp+6, Sa+12); C(Pp+7, Sa+14)
                    else:
                        E(Sa+6); C(Pp+0, Sa+0); E(Sa+7); C(Pp+1, Sa+2); E(Sa+8); C(Pp+2, Sa+4); E(Sa+9)
                        KVL()
                        E(Sa+10); C(Pp+3, Sa+6); E(Sa+11); C(Pp+4, Sa+8); E(Sa+12); E(Sa+13); C(Pp+5, Sa+10); E(Sa+14); E(Sa+15)
                        C(Pp+6, Sa+12); C(Pp+7, Sa+14)
        if not last:
            shift = lambda tg: (tg[0], tg[1] - R)
            known_k = ("K", R)
            tail = [shift(x) for x in vq.order[[i for i, x in enumerate(vq.order) if x == known_k][-1]+1:]]
            assert tail == entry, (tail, entry)
    a.label(f"{pfx}_LOOP")
    body(False)
    a("s_add_u32 s26, s26, 1")
    if P.get("am") and TS_ENABLE[0] and not P.get("km"):
        for k, mi in ((1, 8), (3, 9), (5, 10), (7, 11)):
            a(f"s_cmp_eq_u32 s26, {k*NIT//8}")
            a(f"s_cbranch_scc0 {pfx}_AM{k}")
            mark(a, mi)
            a.label(f"{pfx}_AM{k}")
    a(f"s_cmp_lt_u32 s26, {NIT-1}")
    a(f"s_cbranch_scc1 {pfx}_LOOP")
    body(True)
    mark(a, 5)
    if P["ptog"]: a(f"s_setprio {P['phi']}")
    if P["sched"] != 1:
        a("s_nop 1")
        a(mfma(O[1], VR + 8*(R-1), Pp, O[1]))
    a(mfma(O[1], VR + 8*(R-1) + 4, Pp+4, O[1]))
    OWN, TT, QOWN = 80, 48, 60
    a("s_nop 15")
    for q in range(2):
        a("s_mov_b32 s46, 0x207")
        a("s_mov_b32 s47, 0x2ff")
        for r in range(9): a(f"v_mov_b32 v{OWN+r}, v{O[q]+r}")
        a(f"v_cmp_class_f32 s[78:79], v{OWN+8}, s47")
        for r in range(8):
            a(f"v_cmp_class_f32 vcc, v{OWN+r}, s46")
            a("s_or_b64 s[78:79], s[78:79], vcc")
        a("s_cmp_lg_u64 s[78:79], 0")
        a(f"s_cbranch_scc1 {pfx}_SLOW{q}")
        a.label(f"{pfx}_OUT{q}")
        a(f"v_rcp_f32 v{TT}, v{OWN+8}")
        for r in range(8): a(f"v_mul_f32 v{OWN+r}, v{OWN+r}, v{TT}")
        for d in range(4): a(f"v_cvt_pk_bf16_f32 v{T-8+4*q+d}, v{OWN+2*d}, v{OWN+2*d+1}")
        a("s_lshl_b32 s46, s17, 1"); a(f"s_add_u32 s46, s46, {q}"); a("s_lshl_b32 s46, s46, 15")
        a("s_lshl_b32 s47, s18, 2"); a("s_add_u32 s47, s47, s19"); a("s_lshl_b32 s47, s47, 10")
        a("s_add_u32 s46, s46, s47"); a(f"s_add_u32 s46, s46, {OF_OFF}")
        a(f"buffer_store_dwordx4 v[{T-8+4*q}:{T-5+4*q}], v{vL16}, s[{SWS}:{SWS+3}], s46 offen sc1")
    a("s_waitcnt vmcnt(0)")
    mark(a, 6)
    a("s_mov_b64 exec, 1")
    a(f"v_mov_b32 v2, {F_OC+12}")
    a("v_mov_b32 v3, 1")
    a("ds_add_rtn_u32 v4, v2, v3")
    a("s_waitcnt lgkmcnt(0)")
    a("v_readfirstlane_b32 s46, v4")
    a("s_cmp_eq_u32 s46, 3")
    a(f"s_cbranch_scc0 {pfx}_NOPUB")
    a("s_mov_b32 exec_lo, 0")
    a("s_mov_b32 exec_hi, 1")
    flag_store(a)
    a(f"v_mov_b32 v2, {F_OC}")
    a("v_mov_b32 v3, 4")
    a("ds_write_b32 v2, v3")
    a.label(f"{pfx}_NOPUB")
    a("s_mov_b64 exec, -1")
    a(f"s_branch {pfx}_END")
    for site in refresh: emit_refresh(site)
    KS, VS, SS, NS_, PS = KR, VR, S[0], NEG[0], Pp
    for q in range(2):
        a.label(f"{pfx}_SLOW{q}")
        for r in range(4): a(f"v_mov_b32 v{QOWN+r}, v{Qf[q]+r}")
        a("s_mov_b32 s46, s21")
        a(f"v_mov_b32 v{TT}, 0xff800000")
        a("s_mov_b32 s26, 0")
        a.label(f"{pfx}_SL1_{q}")
        a(f"buffer_load_dwordx4 v[{KS}:{KS+3}], v{vL16}, s[{SWS}:{SWS+3}], s46 offen sc1")
        a("s_waitcnt vmcnt(0)")
        a(mfma(SS, KS, QOWN, "0"))
        for r in range(0, 16, 2):
            a(f"v_max3_f32 v{TT}, v{TT}, v{SS+r}, v{SS+r+1}")
        a("s_add_u32 s46, s46, 1024")
        a("s_add_u32 s26, s26, 1")
        a("s_cmp_lt_u32 s26, 64")
        a(f"s_cbranch_scc1 {pfx}_SL1_{q}")
        a(f"v_mov_b32 v{TT+1}, v{TT}")
        a(f"v_permlane32_swap_b32 v{TT}, v{TT+1}")
        a(f"v_max_f32 v{TT}, v{TT}, v{TT+1}")
        a(f"v_sub_f32 v{NS_}, 0, v{TT}")
        for r in range(1, 16): a(f"v_mov_b32 v{NS_+r}, v{NS_}")
        for r in range(16): a(f"v_mov_b32 v{OWN+r}, 0")
        a("s_mov_b32 s46, s21")
        a("s_mov_b32 s26, 0")
        a.label(f"{pfx}_SL2_{q}")
        a(f"buffer_load_dwordx4 v[{KS}:{KS+3}], v{vL16}, s[{SWS}:{SWS+3}], s46 offen sc1")
        a(f"s_add_u32 s47, s46, {VF_OFF-KF_OFF}")
        a("s_mov_b64 exec, s[76:77]")
        a(f"buffer_load_dwordx4 v[{VS}:{VS+3}], v{vVo}, s[{SWS}:{SWS+3}], s47 offen sc1")
        a(f"buffer_load_dwordx4 v[{VS+4}:{VS+7}], v{vVo}, s[{SWS}:{SWS+3}], s47 offen offset:512 sc1")
        a("s_mov_b64 exec, -1")
        a("s_waitcnt vmcnt(0)")
        a(mfma(SS, KS, QOWN, NS_))
        for r in range(16): E(SS+r)
        for d in range(8): C(PS+d, SS+2*d)
        a(mfma(OWN, VS, PS, OWN))
        a(mfma(OWN, VS+4, PS+4, OWN))
        a("s_add_u32 s46, s46, 1024")
        a("s_add_u32 s26, s26, 1")
        a("s_cmp_lt_u32 s26, 64")
        a(f"s_cbranch_scc1 {pfx}_SL2_{q}")
        a("s_nop 15")
        a(f"s_branch {pfx}_OUT{q}")
    a.label(f"{pfx}_END")

def gen_y(label, dbg=False):
    k = Kernel(label, 256, 512, LDS_TOTAL, 256, 100)
    a = k.a
    a("s_cmp_ge_u32 s2, 256")
    a("s_cbranch_scc1 Y_END")
    emit_y(a, dbg)
    a.label("Y_END")
    return k

if __name__ == "__main__":
    import sys
    out = sys.argv[1]; opts = sys.argv[2:]
    if "ts" in opts: TS_ENABLE[0] = True
    if "lnm" in opts: LNM[0] = True
    for o in opts:
        if "=" in o:
            kk, vv = o.split("="); P[kk] = int(vv)
    ks = [gen_y(NAME + "_kernel", dbg="dbg" in opts)]
    open(out, "w").write(build_file(ks))
```
